```python
import torch

def _softmax(x, axis=-1):
    return torch.softmax(x, dim=axis)
def _gelu(x):
    return torch.nn.functional.gelu(x, approximate="tanh")
def _silu(x):
    return torch.nn.functional.silu(x)
def _sigmoid(x):
    return torch.sigmoid(x)
def _layernorm(x, axis=-1, eps=1e-5):
    m = x.mean(dim=axis, keepdim=True)
    v = x.var(dim=axis, keepdim=True, unbiased=False)
    return (x - m) / torch.sqrt(v + eps)
def _scatter_add(tgt, idx, src, axis=0):
    return tgt.clone().index_add_(axis, idx, src)
def _segment_sum(src, seg, n):
    out = torch.zeros((n,) + src.shape[1:], dtype=src.dtype)
    return out.index_add_(0, seg, src)
def _pad(x, pw):
    flat = tuple(v for pair in reversed(pw) for v in pair)
    return torch.nn.functional.pad(x, flat)

kernel_name = 'recurrent_scan__mha_block_cached__swiglu_ffn__prompt'

def setup_inputs():

    _w = (lambda a: (lambda t: t.to(torch.bfloat16) if t.is_floating_point() else t)(torch.as_tensor(a)))
    def _A_setup():
        B, Sq, D = 1, 2048, 512
        H, Sk, Dh = 32, 2048, 128
        return {
            "x": _w((lambda *s: torch.randn(*s, dtype=torch.bfloat16) * 0.05)(B, Sq, D)),
            "k_cache": _w((lambda *s: torch.randn(*s, dtype=torch.bfloat16) * 0.8)(B, H, Sk, Dh)),
            "v_cache": _w((lambda *s: torch.randn(*s, dtype=torch.bfloat16) * 0.2)(B, H, Sk, Dh)),
            "wq": _w((lambda *s: torch.randn(*s, dtype=torch.bfloat16) * 0.8)(D, H * Dh) * (D ** -0.5)),
            "wo": _w((lambda *s: torch.randn(*s, dtype=torch.bfloat16) * 0.2)(H * Dh, D) * ((H * Dh) ** -0.5)),
        }
    _A_in = _A_setup()

    def _B_setup():
        B, S, D, F = 1, 2048, 512, 1792
        return {
            "x": _w((lambda *s: torch.randn(*s, dtype=torch.bfloat16) * 0.05)(B, S, D)),
            "w_gate": _w((lambda *s: torch.randn(*s, dtype=torch.bfloat16) * 0.1)(D, F)),
            "w_up": _w((lambda *s: torch.randn(*s, dtype=torch.bfloat16) * 0.1)(D, F)),
            "w_down": _w((lambda *s: torch.randn(*s, dtype=torch.bfloat16) * 0.1)(F, D)),
        }
    _B_in = _B_setup()

    return {
        "A_x": _A_in["x"],
        "A_k_cache": _A_in["k_cache"],
        "A_v_cache": _A_in["v_cache"],
        "A_wq": _A_in["wq"],
        "A_wo": _A_in["wo"],
        "B_x": _B_in["x"],
        "B_w_gate": _B_in["w_gate"],
        "B_w_up": _B_in["w_up"],
        "B_w_down": _B_in["w_down"],
    }

def reference(A_x, A_k_cache, A_v_cache, A_wq, A_wo, B_x, B_w_gate, B_w_up, B_w_down):
    def _A_ref(x, k_cache, v_cache, wq, wo):
        B, Sq, D = x.shape
        H, Dh = 32, 128
        q = (lambda x, *d: x.permute(*d))((x @ wq).reshape(B, Sq, H, Dh), 0, 2, 1, 3)
        scores = torch.einsum("bhqd,bhkd->bhqk", q, k_cache) * (Dh ** -0.5)
        p = _softmax(scores, axis=-1)
        o = torch.einsum("bhqk,bhkd->bhqd", p, v_cache)
        return (lambda x, *d: x.permute(*d))(o, 0, 2, 1, 3).reshape(B, Sq, H * Dh) @ wo

    def _B_ref(x, w_gate, w_up, w_down):
        g = _silu(x @ w_gate)
        u = x @ w_up
        return (g * u) @ w_down

    x = A_x
    xn = _layernorm(x, axis=-1)
    s = _A_ref(xn, A_k_cache, A_v_cache, A_wq, A_wo)
    g = _silu(_B_ref(xn, B_w_gate, B_w_up, B_w_down))
    return x + s * g
```

```python
import re

TRANS = ("v_exp_f32", "v_log_f32", "v_rcp_f32", "v_rsq_f32", "v_sqrt_f32", "v_sin_f32", "v_cos_f32")

def parse_reg(tok):
    tok = tok.strip()
    neg = tok.lstrip("-")
    if neg.startswith("|") and neg.endswith("|"):
        neg = neg[1:-1]
    m = re.fullmatch(r"abs\((.*)\)", neg)
    if m: neg = m.group(1)
    tok = neg
    m = re.fullmatch(r"([vas])(\d+)", tok)
    if m: return [(m.group(1), int(m.group(2)))]
    m = re.fullmatch(r"([vas])\[(\d+):(\d+)\]", tok)
    if m: return [(m.group(1), i) for i in range(int(m.group(2)), int(m.group(3)) + 1)]
    if tok == "vcc": return [("vcc", 0)]
    if tok in ("vcc_lo", "vcc_hi"): return [("vcc", 0)]
    if tok == "exec": return [("exec", 0)]
    if tok == "m0": return [("m0", 0)]
    if tok == "scc": return [("scc", 0)]
    return []

class Inst:
    __slots__ = ("text", "op", "kind", "reads", "writes", "passes", "srcC", "srcAB", "tag", "wide_store", "comment")
    def __init__(self, text, tag=None, comment=None):
        self.text = text.strip()
        self.tag = tag
        self.comment = comment
        self.passes = 0
        self.srcC = []
        self.srcAB = []
        self.wide_store = False
        t = self.text
        if t.endswith(":") or t.startswith(".") or t.startswith(";") or t == "":
            self.op = t; self.kind = "label" if t.endswith(":") else "directive"; self.reads = set(); self.writes = set(); return
        parts = t.split(None, 1)
        op = parts[0]; self.op = op
        rest = parts[1] if len(parts) > 1 else ""
        ops = [o.strip() for o in rest.split(",")] if rest else []
        mods = ""
        if ops:
            last = ops[-1].split()
            ops[-1] = last[0] if last else ""
            mods = " ".join(last[1:])
        m = re.search(r"\s(op_sel|op_sel_hi|neg_lo|neg_hi|quad_perm|cbsz|blgp|abid)\b", " " + rest)
        if m:
            idx = rest.find(m.group(1))
            core = rest[:idx].strip(); mods = rest[idx:]
            ops = [o.strip() for o in core.split(",")]
            lastp = ops[-1].split()
            ops[-1] = lastp[0]
            mods = " ".join(lastp[1:]) + " " + mods
        R = [parse_reg(o) for o in ops]
        allr = lambda lst: set(x for r in lst for x in r)
        reads = set(); writes = set()
        if op.startswith("v_mfma"):
            self.kind = "mfma"
            self.passes = 8 if "32x32x16" in op else 4 if "16x16x32" in op else None
            assert self.passes
            writes = set(R[0]); reads = allr(R[1:]); self.srcC = R[3]; self.srcAB = R[1] + R[2]
        elif op.startswith("v_"):
            base = re.sub(r"_(e32|e64|dpp|sdwa)$", "", op)
            self.kind = "trans" if base in TRANS else "valu"
            if base.startswith("v_cmpx"):
                writes = set(R[0]) | {("exec", 0)}; reads = allr(R[1:])
            elif base.startswith("v_cmp"):
                writes = set(R[0]); reads = allr(R[1:])
            elif base in ("v_add_co_u32", "v_sub_co_u32", "v_subrev_co_u32"):
                writes = set(R[0]) | set(R[1]); reads = allr(R[2:])
            elif base in ("v_addc_co_u32", "v_subb_co_u32"):
                writes = set(R[0]) | set(R[1]); reads = allr(R[2:])
            elif base in ("v_permlane32_swap_b32", "v_permlane16_swap_b32", "v_swap_b32"):
                writes = allr(R[:2]); reads = allr(R[:2])
            elif base in ("v_fmac_f32", "v_dot2c_f32_bf16", "v_pk_fmac_f16", "v_writelane_b32", "v_mac_f32"):
                writes = set(R[0]); reads = allr(R)
            elif base == "v_nop":
                pass
            else:
                writes = set(R[0]); reads = allr(R[1:])
            if "dpp" in op or "row_" in mods or "quad_perm" in mods:
                self.tag = (self.tag or "") + " dpp"
                if "bound_ctrl" not in mods: reads |= writes
            reads |= {("exec", 0)}
        elif op.startswith("ds_"):
            if op.startswith("ds_read") or op.startswith("ds_bpermute") or op.startswith("ds_swizzle") or op.startswith("ds_permute"):
                self.kind = "lds"; writes = set(R[0]); reads = allr(R[1:])
            else:
                self.kind = "lds"; reads = allr(R)
        elif op.startswith("buffer_") or op.startswith("global_"):
            islds = (" lds" in (" " + mods)) or "_lds_" in op
            if op in ("buffer_wbl2", "buffer_inv"):
                self.kind = "vmem"
            elif islds:
                self.kind = "dma"; reads = allr(R) | {("m0", 0)}
            elif "_load" in op:
                self.kind = "vmem"; writes = set(R[0]); reads = allr(R[1:])
            elif "_store" in op:
                self.kind = "vmem"; reads = allr(R)
                if "x3" in op or "x4" in op: self.wide_store = True
            elif "atomic" in op:
                self.kind = "vmem"
                if "sc0" in mods:
                    writes = set(R[0]); reads = allr(R[1:])
                else:
                    reads = allr(R)
            else:
                raise ValueError(op)
        elif op.startswith("s_"):
            if op == "s_waitcnt": self.kind = "wait"
            elif op == "s_barrier": self.kind = "barrier"
            elif op == "s_nop": self.kind = "nop"
            elif op in ("s_branch", "s_endpgm", "s_setprio", "s_sleep"): self.kind = "ctl"
            elif op.startswith("s_cbranch"):
                self.kind = "ctl"
                reads = {("scc", 0)} if "scc" in op else {("vcc", 0)} if "vcc" in op else {("exec", 0)}
            elif op.startswith("s_load") or op.startswith("s_memtime") or op.startswith("s_memrealtime") or op.startswith("s_buffer_load"):
                self.kind = "smem"; writes = set(R[0]); reads = allr(R[1:])
            elif op.startswith("s_cmp") or op.startswith("s_bitcmp"):
                self.kind = "salu"; writes = {("scc", 0)}; reads = allr(R)
            elif op.startswith("s_getpc"):
                self.kind = "salu"; writes = set(R[0])
            elif op.startswith("s_getreg"):
                self.kind = "salu"; writes = set(R[0])
            else:
                self.kind = "salu"; writes = set(R[0]); reads = allr(R[1:])
                if op in ("s_addk_i32", "s_mulk_i32"): reads |= set(R[0])
                if op.startswith(("s_add", "s_sub", "s_and", "s_or", "s_xor", "s_lshl", "s_lshr", "s_ashr", "s_min", "s_max", "s_andn2", "s_bfe", "s_not")):
                    writes |= {("scc", 0)}
                if op.startswith(("s_addc", "s_subb", "s_cselect")): reads |= {("scc", 0)}
                if "saveexec" in op: writes |= {("exec", 0), ("scc", 0)}; reads |= {("exec", 0)}
        else:
            raise ValueError("unknown op " + op)
        self.reads = reads; self.writes = writes

    def nstates(self):
        if self.kind in ("label", "directive", "hint"): return 0
        if self.kind == "nop":
            return int(self.text.split()[1], 0) + 1
        return 1

def Hint(*regs):
    i = Inst(";hint")
    i.kind = "hint"
    i.reads = set(x for r in regs for x in parse_reg(r))
    return i

class Prog:
    def __init__(self):
        self.insts = []
    def __call__(self, text, tag=None):
        for line in text.strip("\n").split("\n"):
            line = line.split(";")[0].strip() if not line.strip().startswith(";") else line.strip()
            if line == "": continue
            self.insts.append(Inst(line, tag))
        return self
    def add(self, inst):
        if isinstance(inst, str): inst = Inst(inst)
        self.insts.append(inst)
    def extend(self, lst):
        for i in lst: self.add(i)
    def text(self):
        out = []
        for i in self.insts:
            if i.kind == "label": out.append(i.text)
            elif i.kind == "hint": continue
            else: out.append("    " + i.text)
        return "\n".join(out) + "\n"

def wait_fields(inst):
    vm = lg = None
    m = re.search(r"vmcnt\((\d+)\)", inst.text);  vm = int(m.group(1)) if m else None
    m = re.search(r"lgkmcnt\((\d+)\)", inst.text); lg = int(m.group(1)) if m else None
    return vm, lg

class WaitState:
    def __init__(self):
        self.vm = []; self.lg = []; self.smem = False
    def copy(self):
        w = WaitState(); w.vm = list(self.vm); w.lg = list(self.lg); w.smem = self.smem; return w
    def key(self):
        return (tuple(self.vm), tuple(self.lg), self.smem)

def compute_waits(insts, st):
    res = []
    for ins in insts:
        need_vm = need_lg = None
        touched = ins.reads | ins.writes
        if ins.kind not in ("wait", "label", "directive"):
            for i, d in enumerate(st.vm):
                if d & touched:
                    n = len(st.vm) - 1 - i
                    need_vm = n if need_vm is None else min(need_vm, n)
            for i, d in enumerate(st.lg):
                if d & touched:
                    n = len(st.lg) - 1 - i
                    if st.smem: n = 0
                    need_lg = n if need_lg is None else min(need_lg, n)
        if need_vm is not None:
            need_vm = min(need_vm, 63)
            st.vm = st.vm[len(st.vm) - need_vm:] if need_vm else []
        if need_lg is not None:
            need_lg = min(need_lg, 15)
            st.lg = st.lg[len(st.lg) - need_lg:] if need_lg else []
            if need_lg == 0: st.smem = False
        res.append((need_vm, need_lg))
        if ins.kind == "wait":
            vm, lg = wait_fields(ins)
            if vm is not None and len(st.vm) > vm: st.vm = st.vm[len(st.vm) - vm:] if vm else []
            if lg is not None:
                if st.smem and lg > 0:
                    pass
                elif len(st.lg) > lg: st.lg = st.lg[len(st.lg) - lg:] if lg else []
                if lg == 0: st.smem = False
        elif ins.kind in ("vmem", "dma"):
            st.vm.append(frozenset(ins.writes))
        elif ins.kind == "lds":
            st.lg.append(frozenset(ins.writes))
        elif ins.kind == "smem":
            st.lg.append(frozenset(ins.writes)); st.smem = True
    return res

def apply_waits(insts, waits):
    out = []
    for ins, (vm, lg) in zip(insts, waits):
        if vm is not None or lg is not None:
            t = "s_waitcnt"
            if vm is not None: t += f" vmcnt({vm})"
            if lg is not None: t += f" lgkmcnt({lg})"
            out.append(Inst(t, tag="auto"))
        out.append(ins)
    return out

def merge_waits(a, b):
    r = []
    for (x1, y1), (x2, y2) in zip(a, b):
        mn = lambda p, q: q if p is None else p if q is None else min(p, q)
        r.append((mn(x1, x2), mn(y1, y2)))
    return r

def auto_wait_linear(insts, st=None):
    st = st or WaitState()
    w = compute_waits(insts, st)
    return apply_waits(insts, w), st

def auto_wait_loop(body, st):
    s1 = st.copy(); w1 = compute_waits(body, s1)
    s2 = s1.copy(); w2 = compute_waits(body, s2)
    w = merge_waits(w1, w2)
    nb = apply_waits(body, w)
    sa = st.copy(); c1 = compute_waits(nb, sa); sb = sa.copy(); c2 = compute_waits(nb, sb); sc = sb.copy(); c3 = compute_waits(nb, sc)
    for c in (c1, c2, c3):
        assert all(x == (None, None) for x in c), "loop waits did not converge"
    return nb, sb

def check_hazards(insts, name="", fix=False):
    out = []
    pos = 0
    hist = []
    problems = []
    def need(ins):
        deficit = 0; why = None
        for p, h in reversed(hist):
            dist = pos - p
            if dist >= 20: break
            req = 0
            hv = h.kind in ("valu", "trans")
            iv = ins.kind in ("valu", "trans")
            ov_r = h.writes & ins.reads
            ov_w = h.writes & ins.writes
            vg = lambda s: set(x for x in s if x[0] in ("v", "a"))
            sg = lambda s: set(x for x in s if x[0] in ("s", "vcc"))
            if hv and ins.kind == "mfma" and vg(ov_r): req = max(req, 2)
            if h.kind == "mfma":
                xd = {4: (6, 8, 3), 8: (10, 12, 7)}[h.passes]
                if ins.kind == "mfma":
                    if set(ins.srcC) & h.writes:
                        if list(ins.srcC) == sorted(h.writes) and ins.passes == h.passes: pass
                        elif set(ins.srcC) == h.writes and ins.passes == h.passes: pass
                        else: req = max(req, xd[0])
                    if set(ins.srcAB) & h.writes: req = max(req, xd[1])
                    if (ins.writes & h.writes) and not (set(ins.srcC) & h.writes): req = max(req, xd[0])
                elif iv or ins.kind in ("lds", "vmem", "dma"):
                    if vg(ov_r) or vg(ov_w): req = max(req, xd[1])
                if iv and (set(h.srcC) & ins.writes): req = max(req, xd[2])
                if ins.kind in ("lds", "vmem") and (set(h.srcC) & ins.writes): req = max(req, xd[2])
            if h.kind == "trans" and ins.kind == "valu" and vg(ov_r): req = max(req, 1)
            if h.kind == "trans" and ins.kind in ("lds", "vmem", "dma") and vg(ov_r): req = max(req, 1)
            if hv and iv and sg(ov_r):
                req = max(req, 4 if ins.op.startswith(("v_readlane", "v_writelane")) else 2)
            if hv and ins.kind in ("vmem", "dma") and sg(ov_r): req = max(req, 5)
            if hv and ins.kind == "salu" and sg(ov_r): req = max(req, 1)
            if hv and ins.op.startswith(("v_readlane", "v_readfirstlane")) and vg(ov_r): req = max(req, 1)
            if hv and ins.op.startswith("v_permlane") and vg(ov_r): req = max(req, 2)
            if hv and iv and ins.tag and "dpp" in ins.tag and vg(ov_r): req = max(req, 2)
            if h.kind == "salu" and ("m0", 0) in h.writes and ins.kind == "dma": req = max(req, 1)
            if h.wide_store and (vg(h.reads) & ins.writes): req = max(req, 2)
            if hv and ("exec", 0) in h.writes:
                if ins.kind == "mfma": req = max(req, 4)
                if ins.tag and "dpp" in ins.tag: req = max(req, 5)
                if ins.op.startswith(("v_readlane", "v_readfirstlane", "v_writelane", "v_permlane")): req = max(req, 4)
            if hv and ("vcc", 0) in h.writes and ins.op in ("s_cbranch_vccz", "s_cbranch_vccnz"): req = max(req, 5)
            if req - dist > deficit:
                deficit = req - dist; why = (h.text, ins.text, req, dist)
        return deficit, why
    for ins in insts:
        if ins.kind in ("label", "directive", "hint"):
            out.append(ins); continue
        d, why = need(ins)
        if d > 0:
            if fix:
                n = d
                while n > 0:
                    k = min(n, 16)
                    nop = Inst(f"s_nop {k-1}", tag="hz")
                    out.append(nop); pos += k; n -= k
            else:
                problems.append(why)
        out.append(ins)
        pos += ins.nstates()
        hist.append((pos, ins))
        if len(hist) > 40: hist.pop(0)
    if fix: return out
    return problems

def merge_adjacent_waits(insts):
    out = []
    for ins in insts:
        if ins.kind == "wait":
            j = len(out) - 1
            while j >= 0 and out[j].kind == "hint": j -= 1
            if j >= 0 and out[j].kind == "wait":
                v1, l1 = wait_fields(out[j]); v2, l2 = wait_fields(ins)
                mn = lambda p, q: q if p is None else p if q is None else min(p, q)
                vm, lg = mn(v1, v2), mn(l1, l2)
                t = "s_waitcnt"
                if vm is not None: t += f" vmcnt({vm})"
                if lg is not None: t += f" lgkmcnt({lg})"
                out[j] = Inst(t, tag="auto")
                continue
        out.append(ins)
    return out
```

```python
import sys, math
sys.path.insert(0, "dev")
from asmdsl import *

NAME = "recurrent_scan__mha_block_cached__swiglu_ffn__prompt"
WS_XN = 0
WS_ACT = 4 << 20
WS_SLAB = 32 << 20
WS_TIME = 60 << 20
LOG2E = 1.4426950408889634
QSCALE = (128 ** -0.5) * LOG2E

def f32hex(x):
    import struct
    return "0x%08x" % struct.unpack("<I", struct.pack("<f", x))[0]

def kernel_text(label, insts, vgpr, accum, sgpr=102):
    p = Prog(); p.extend(insts)
    return f""".globl {label}
.p2align 8
.type {label},@function
{label}:
{p.text()}
.section .rodata,"a"
.p2align 6
.amdhsa_kernel {label}
  .amdhsa_next_free_vgpr {vgpr}
  .amdhsa_next_free_sgpr {sgpr}
  .amdhsa_accum_offset {accum}
  .amdhsa_group_segment_fixed_size 0
  .amdhsa_kernarg_size 96
  .amdhsa_user_sgpr_count 2
  .amdhsa_user_sgpr_kernarg_segment_ptr 1
  .amdhsa_system_sgpr_workgroup_id_x 1
  .amdhsa_float_denorm_mode_32 3
.end_amdhsa_kernel
.text
"""

def finish(insts):
    a, st = auto_wait_linear(insts)
    a = merge_adjacent_waits(a)
    return check_hazards(a, fix=True)

def reduce64(pr, v, tmp, op="v_add_f32"):
    pr(f"""
    s_nop 1
    {op}_dpp {v}, {v}, {v} quad_perm:[1,0,3,2] row_mask:0xf bank_mask:0xf
    s_nop 1
    {op}_dpp {v}, {v}, {v} quad_perm:[2,3,0,1] row_mask:0xf bank_mask:0xf
    s_nop 1
    {op}_dpp {v}, {v}, {v} row_half_mirror row_mask:0xf bank_mask:0xf
    s_nop 1
    {op}_dpp {v}, {v}, {v} row_mirror row_mask:0xf bank_mask:0xf
    v_mov_b32 {tmp}, {v}
    s_nop 1
    v_permlane16_swap_b32 {tmp}, {v}
    {op} {v}, {v}, {tmp}
    v_mov_b32 {tmp}, {v}
    s_nop 1
    v_permlane32_swap_b32 {tmp}, {v}
    {op} {v}, {v}, {tmp}
    """)

def rbf16(pr, v):
    pr(f"v_cvt_pk_bf16_f32 {v}, {v}, {v}\nv_and_b32 {v}, 0xffff0000, {v}")

def gen_k1(opts):
    pr = Prog()
    pr(f"""
    s_cmp_ge_u32 s2, 256
    s_cbranch_scc1 K1_end
    s_load_dwordx2 s[4:5], s[0:1], 0
    s_load_dwordx2 s[6:7], s[0:1], 88
    v_and_b32 v1, 63, v0
    v_lshrrev_b32 v2, 6, v0
    s_nop 0
    v_readfirstlane_b32 s3, v2
    s_lshl_b32 s16, s2, 3
    s_lshl_b32 s17, s3, 1
    s_add_u32 s16, s16, s17
    s_lshl_b32 s17, s16, 10
    v_lshlrev_b32 v2, 4, v1
    s_waitcnt lgkmcnt(0)
    s_mov_b32 s8, s4
    s_and_b32 s9, s5, 0xffff
    s_mov_b32 s10, {2048*1024}
    s_mov_b32 s11, 0x20000
    s_mov_b32 s12, s6
    s_and_b32 s13, s7, 0xffff
    s_mov_b32 s14, 0x10000000
    s_mov_b32 s15, 0x20000
    buffer_load_dwordx4 v[4:7], v2, s[8:11], s17 offen
    buffer_load_dwordx4 v[8:11], v2, s[8:11], s17 offen offset:1024
    """)
    pr(f"""
    v_lshrrev_b32 v3, 2, v1
    v_lshlrev_b32 v3, 14, v3
    v_and_b32 v12, 3, v1
    s_lshr_b32 s18, s16, 8
    s_lshl_b32 s18, s18, 18
    s_and_b32 s19, s16, 255
    s_lshl_b32 s20, s19, 6
    s_add_u32 s18, s18, s20
    s_add_u32 s18, s18, {WS_XN}
    s_lshr_b32 s20, s19, 2
    s_and_b32 s20, s20, 3
    s_and_b32 s21, s20, 1
    s_lshl_b32 s21, s21, 1
    s_lshr_b32 s22, s20, 1
    s_mul_i32 s22, s22, 3
    s_xor_b32 s21, s21, s22
    v_xor_b32 v12, s21, v12
    v_lshl_add_u32 v3, v12, 4, v3
    """)
    for k, base in enumerate((4, 8)):
        u = 16 + k * 16
        for i in range(4):
            pr(f"v_lshlrev_b32 v{u+2*i}, 16, v{base+i}")
            pr(f"v_and_b32 v{u+2*i+1}, 0xffff0000, v{base+i}")
        sm = f"v{u+8}"; tmp = f"v{u+9}"; var = f"v{u+10}"; d = f"v{u+11}"
        pr(f"v_add_f32 {sm}, v{u}, v{u+1}")
        for i in range(2, 8): pr(f"v_add_f32 {sm}, {sm}, v{u+i}")
        reduce64(pr, sm, tmp)
        pr(f"v_mul_f32 {sm}, {f32hex(1/512)}, {sm}")
        pr(f"v_sub_f32 {d}, v{u}, {sm}\nv_mul_f32 {var}, {d}, {d}")
        for i in range(1, 8):
            pr(f"v_sub_f32 {d}, v{u+i}, {sm}\nv_fmac_f32 {var}, {d}, {d}")
        reduce64(pr, var, tmp)
        pr(f"v_mul_f32 {var}, {f32hex(1/512)}, {var}")
        rbf16(pr, var)
        pr(f"v_add_f32 {var}, {f32hex(1e-5)}, {var}")
        rbf16(pr, var)
        pr(f"v_sqrt_f32 {var}, {var}")
        pr("s_nop 0")
        rbf16(pr, var)
        pr(f"v_rcp_f32 {var}, {var}")
        rbf16(pr, sm)
        for i in range(8):
            pr(f"v_sub_f32 v{u+i}, v{u+i}, {sm}")
        for i in range(4):
            pr(f"v_cvt_pk_bf16_f32 v{base+i}, v{u+2*i}, v{u+2*i+1}")
        for i in range(4):
            pr(f"v_lshlrev_b32 v{u+2*i}, 16, v{base+i}")
            pr(f"v_and_b32 v{u+2*i+1}, 0xffff0000, v{base+i}")
        for i in range(8):
            pr(f"v_mul_f32 v{u+i}, v{u+i}, {var}")
        for i in range(4):
            pr(f"v_cvt_pk_bf16_f32 v{base+i}, v{u+2*i}, v{u+2*i+1}")
        pr(f"buffer_store_dwordx4 v[{base}:{base+3}], v3, s[12:15], s18 offen offset:{64*k}")
    pr("K1_end:\ns_endpgm")
    return finish(pr.insts)

def S(sb, kb, qb, r=None):
    b = 16 + sb * 32 + (kb * 4 + qb) * 4
    return f"v[{b}:{b+3}]" if r is None else f"v{b+r}"
def P(pb, qb, i=None):
    b = 80 + pb * 16 + qb * 4
    return f"v[{b}:{b+3}]" if i is None else f"v{b+i}"
def NEGM(qb, r=None):
    b = 112 + qb * 4
    return f"v[{b}:{b+3}]" if r is None else f"v{b+r}"
def Qb(qb, ds): return 144 + (qb * 4 + ds) * 4
def Q(qb, ds):
    b = Qb(qb, ds)
    return f"v[{b}:{b+3}]"
VKA = lambda ds: f"v{208+ds}"
VVA = lambda db: f"v{212+db}"
VOFFK = lambda ii: f"v{220+ii}"
VOFFV = lambda par: f"v{224+par}"
L = lambda qb: f"v{226+qb}"
def O(db, qb, r=None):
    b = (db * 4 + qb) * 4
    return f"a[{b}:{b+3}]" if r is None else f"a{b+r}"
def KF(f):
    b = 128 + f * 4
    return f"a[{b}:{b+3}]"
def VF(db, u=None):
    b = 160 + db * 4
    if u is None: return f"a[{b}:{b+3}]"
    return f"a[{b+2*u}:{b+2*u+1}]"

SRD_K = "s[8:11]"; SRD_V = "s[12:15]"; SRD_K0 = "s[16:19]"; SRD_WS = "s[20:23]"
S_OFF = "s24"; S_WB = "s25"; S_CNT = "s26"
SRD_WQ = "s[36:39]"; SRD_G = "s[40:43]"; SRD_U = "s[44:47]"
S_RD = "s48"; S_DMA = "s49"; S_OX = "s50"; S_OWQ = "s51"; S_OGU = "s52"
S_MX = "s54"; S_MWQ = "s55"; S_MG = "s56"; S_MU = "s57"
H = 64

def k_read(half, f):
    tile = half >> 1; hb = half & 1
    slot = (tile + 3) & 3
    kb, ds = f >> 2, f & 3
    return Inst(f"ds_read_b128 {KF(f)}, {VKA(ds)} offset:{slot*16384 + (32*hb+16*kb)*256}")
def v_reads(half, db):
    tile = half >> 1; hb = half & 1
    slot = tile & 3
    return [Inst(f"ds_read_b64_tr_b16 {VF(db,u)}, {VVA(db)} offset:{slot*16384 + (32*hb+16*u)*256}") for u in range(2)]

def dma_k(slot, srd, soff):
    r = [[Inst(f"s_add_u32 m0, {S_WB}, {slot*16384}"), Inst(f"buffer_load_dwordx4 {VOFFK(0)}, {srd}, {soff} offen lds")]]
    for ii in range(1, 4):
        r.append([Inst(f"buffer_load_dwordx4 {VOFFK(ii)}, {srd}, {soff} offen offset:{ii*1024} lds")])
    return r
def dma_v(slot, soff):
    r = [[Inst(f"s_add_u32 m0, {S_WB}, {65536+slot*16384}"), Inst(f"buffer_load_dwordx4 {VOFFV(0)}, {SRD_V}, {soff} offen lds")]]
    for ii in range(1, 4):
        r.append([Inst(f"buffer_load_dwordx4 {VOFFV(ii&1)}, {SRD_V}, {soff} offen offset:{ii*1024} lds")])
    return r
def dma_list(T):
    return dma_k(T & 3, SRD_K, S_OFF) + dma_v(T & 3, S_OFF)

def emit_phase(p, opts, carry):
    do_qk = (p + 1) < H
    do_pv = (p - 1) >= 0
    do_sm = 0 <= p < H
    NG = 64
    gaps = [[] for _ in range(NG + 2)]
    pre = [[] for _ in range(NG + 2)]
    mem = [[] for _ in range(NG + 2)]
    sb = p & 1
    if do_sm:
        for e in range(32):
            kb, qb, r = e >> 4, (e >> 2) & 3, e & 3
            gaps[2 * e].append(Inst(f"v_exp_f32 {S(sb,kb,qb,r)}, {S(sb,kb,qb,r)}"))
            gaps[2 * e + 1].append(Inst(f"v_add_f32 {L(qb)}, {L(qb)}, {S(sb,kb,qb,r)}"))
            if e & 1:
                gaps[2 * e + 3].append(Inst(f"v_cvt_pk_bf16_f32 {P(sb,qb,kb*2+(r>>1))}, {S(sb,kb,qb,r-1)}, {S(sb,kb,qb,r)}"))
    for i, c in enumerate(carry): gaps[1].append(c)
    newcarry = gaps[NG] + gaps[NG + 1]
    for u in range(8):
        pp, uu = (p, u + 4) if u < 4 else (p + 1, u - 4)
        if 0 <= pp - 1 < H:
            vr = v_reads(pp - 1, uu)
            mem[8 * u + 3].append(vr[0]); mem[8 * u + 7].append(vr[1])
    kpos = [1, 5, 13, 21]
    for j in range(4):
        if 0 <= p + 1 < H: mem[kpos[j]].append(k_read(p + 1, 4 + j))
        if 0 <= p + 2 < H: mem[32 + kpos[j]].append(k_read(p + 2, j))
    if p % 2 == 0 and p >= 0:
        T = p // 2
        if T < 32:
            nvm = 8 if T + 1 < 32 else 0
            if T + 1 == 31: nvm = 4
            pre[32].append(Inst(f"s_waitcnt vmcnt({nvm})"))
            pre[32].append(Inst("s_barrier"))
    if p % 2 == 0:
        T = p // 2; slots = [(38, 0), (46, 1), (54, 2)]
    else:
        T = (p - 1) // 2; slots = [(6, 3), (14, 4), (22, 5), (30, 6), (38, 7)]
    if p >= 0 and T + 2 <= 31:
        dl = dma_list(T + 2)
        for gp, idx in slots:
            if T + 2 == 31 and idx < 4: continue
            d = dl[idx]
            gaps[gp - 1] = gaps[gp - 1] + d[:-1]
            mem[gp] += d[-1:]
        if p % 2 == 1:
            gaps[47].append(Inst(f"s_add_u32 {S_OFF}, {S_OFF}, 16384"))
    out = []
    for u in range(8):
        mf = []
        kb, qb = u >> 2, u & 3
        for ds in range(4):
            if do_qk:
                c = NEGM(qb) if ds == 0 else S(sb ^ 1, kb, qb)
                if p == -1 and ds == 0: c = "0"
                mf.append(Inst(f"v_mfma_f32_16x16x32_bf16 {S(sb^1,kb,qb)}, {KF(kb*4+ds)}, {Q(qb,ds)}, {c}"))
            else: mf.append(None)
        for q2 in range(4):
            if do_pv:
                mf.append(Inst(f"v_mfma_f32_16x16x32_bf16 {O(u,q2)}, {VF(u)}, {P(sb^1,q2)}, {O(u,q2)}"))
            else: mf.append(None)
        if u % 4 == 0 and do_qk:
            pre[8 * u].insert(0, Hint(*[KF(kb * 4 + ds) for ds in range(4)]))
        if u % 2 == 0 and do_pv:
            pre[8 * u + (0 if u % 4 == 0 else 4)].insert(0, Hint(VF(u), VF(u + 1)))
        for j in range(8):
            k = 8 * u + j
            out += pre[k]
            if mf[j] is not None: out.append(mf[j])
            out += mem[k]
            out += gaps[k]
    return out, newcarry

def QACC(cb, tb, r=None):
    b = 16 + (cb * 4 + tb) * 4
    return f"v[{b}:{b+3}]" if r is None else f"v{b+r}"
def GACC(cb, tb, r=None):
    b = (cb * 4 + tb) * 4
    return f"a[{b}:{b+3}]" if r is None else f"a{b+r}"
def UACC(cb, tb, r=None):
    b = 64 + (cb * 4 + tb) * 4
    return f"a[{b}:{b+3}]" if r is None else f"a{b+r}"
def AF(cb, u=None):
    b = 128 + cb * 4
    if u is None: return f"a[{b}:{b+3}]"
    return f"a[{b+2*u}:{b+2*u+1}]"
def BF(par, tb):
    b = 144 + par * 16 + tb * 4
    return f"v[{b}:{b+3}]"
VA_Q = lambda ds: f"v{176+ds}"
VA_G = lambda cb: f"v{180+cb}"
VA_B = "v184"
VB_Q = lambda ds: f"v{186+ds}"
VB_G = lambda cb: f"v{190+cb}"
VB_B = "v194"
VO_X = "v196"; VO_WQ = lambda ii: f"v{197+ii}"; VO_G = "v199"

def a_reads(cb):
    if cb < 8:
        ds, h = cb >> 1, cb & 1
        return [Inst(f"ds_read_b64_tr_b16 {AF(cb,u)}, {VA_Q(ds)} offset:{16384 + 8*h + 1024*u}") for u in range(2)]
    else:
        mat, c2 = (cb - 8) >> 2, (cb - 8) & 3
        return [Inst(f"ds_read_b64_tr_b16 {AF(cb,u)}, {VA_G(c2)} offset:{24576 + 4096*mat + 512*u}") for u in range(2)]
def b_read(par, tb):
    return Inst(f"ds_read_b128 {BF(par,tb)}, {VA_B} offset:{tb*1024}")
def addr_update():
    r = []
    for ds in range(4): r.append(Inst(f"v_add_u32 {VA_Q(ds)}, {S_RD}, {VB_Q(ds)}"))
    for cb in range(4): r.append(Inst(f"v_add_u32 {VA_G(cb)}, {S_RD}, {VB_G(cb)}"))
    r.append(Inst(f"v_add_u32 {VA_B}, {S_RD}, {VB_B}"))
    return r
def gemm_dma():
    r = []
    r.append([Inst(f"s_add_u32 m0, {S_DMA}, {S_MX}"), Inst(f"buffer_load_dwordx4 {VO_X}, {SRD_WS}, {S_OX} offen lds")])
    for ii in range(1, 4):
        r.append([Inst(f"buffer_load_dwordx4 {VO_X}, {SRD_WS}, {S_OX} offen offset:{ii*1024} lds")])
    r.append([Inst(f"s_add_u32 m0, {S_DMA}, {S_MWQ}"), Inst(f"buffer_load_dwordx4 {VO_WQ(0)}, {SRD_WQ}, {S_OWQ} offen lds")])
    r.append([Inst(f"buffer_load_dwordx4 {VO_WQ(1)}, {SRD_WQ}, {S_OWQ} offen offset:1024 lds")])
    r.append([Inst(f"s_add_u32 m0, {S_DMA}, {S_MG}"), Inst(f"buffer_load_dwordx4 {VO_G}, {SRD_G}, {S_OGU} offen lds")])
    r.append([Inst(f"s_add_u32 m0, {S_DMA}, {S_MU}"), Inst(f"buffer_load_dwordx4 {VO_G}, {SRD_U}, {S_OGU} offen lds")])
    adv = [Inst(f"s_add_u32 {S_OX}, {S_OX}, 16384"), Inst(f"s_add_u32 {S_OWQ}, {S_OWQ}, {32*8192}"),
           Inst(f"s_add_u32 {S_OGU}, {S_OGU}, {32*3584}"),
           Inst(f"s_add_u32 {S_DMA}, {S_DMA}, 32768"), Inst(f"s_and_b32 {S_DMA}, {S_DMA}, 0x1ffff")]
    return r, adv

def gemm_period(par, dma, nvm, read_next=True):
    NG = 64
    pre = [[] for _ in range(NG + 1)]; mem = [[] for _ in range(NG + 1)]; gaps = [[] for _ in range(NG + 1)]
    if nvm is not None: pre[0].append(Inst(f"s_waitcnt vmcnt({nvm})"))
    pre[0].append(Inst("s_barrier"))
    if read_next:
        gaps[0] += [Inst(f"s_add_u32 {S_RD}, {S_RD}, 32768"), Inst(f"s_and_b32 {S_RD}, {S_RD}, 0x1ffff")]
        au = addr_update()
        gaps[1] += au[:3]; gaps[2] += au[3:6]; gaps[3] += au[6:]
        for cb in range(16):
            rd = a_reads(cb)
            if cb < 15:
                mem[4 * cb + 4].append(rd[0]); mem[4 * cb + 5].append(rd[1])
            else:
                mem[63].append(rd[0]); mem[63].append(rd[1])
        for tb in range(4):
            mem[6 + 4 * tb].append(b_read(par ^ 1, tb))
    groups, adv = dma
    pos = [7, 11, 15, 19, 23, 27, 31, 35]
    for gp, d in zip(pos, groups):
        gaps[gp - 1] += d[:-1]
        mem[gp] += d[-1:]
    for i, a in enumerate(adv): gaps[37 + i].append(a)
    out = []
    for cb in range(16):
        if cb % 4 == 0:
            regs = [AF(c) for c in range(cb, cb + 4)]
            if cb == 0: regs += [BF(par, t) for t in range(4)]
            pre[4 * cb].insert(0, Hint(*regs))
        for tb in range(4):
            k = 4 * cb + tb
            if cb < 8: d = QACC(cb, tb)
            elif cb < 12: d = GACC(cb - 8, tb)
            else: d = UACC(cb - 12, tb)
            out += pre[k]
            out.append(Inst(f"v_mfma_f32_16x16x32_bf16 {d}, {AF(cb)}, {BF(par,tb)}, {d}"))
            out += mem[k]; out += gaps[k]
    return out

def stamp(pr, opts, idx):
    if opts.get("time"):
        pr(f"s_memrealtime s[{60+2*idx}:{61+2*idx}]")

def gen_k2(opts):
    pr = Prog()
    pr(f"""
    s_cmp_ge_u32 s2, 256
    s_cbranch_scc1 K2_end
    """)
    stamp(pr, opts, 0)
    pr(f"""
    s_load_dwordx4 s[28:31], s[0:1], 8
    s_load_dwordx2 s[32:33], s[0:1], 24
    s_load_dwordx4 s[40:43], s[0:1], 48
    s_load_dwordx2 s[34:35], s[0:1], 88
    v_and_b32 v1, 63, v0
    v_lshrrev_b32 v2, 6, v0
    s_nop 0
    v_readfirstlane_b32 s3, v2
    s_and_b32 s4, s2, 7
    s_lshl_b32 s4, s4, 2
    s_lshr_b32 s5, s2, 3
    s_and_b32 s6, s5, 3
    s_add_u32 s4, s4, s6
    s_lshr_b32 s5, s2, 5
    s_lshl_b32 {S_WB}, s3, 12
    s_waitcnt lgkmcnt(0)
    s_lshl_b32 s6, s4, 19
    s_add_u32 s16, s28, s6
    s_addc_u32 s17, s29, 0
    s_and_b32 s17, s17, 0xffff
    s_mov_b32 s18, 524288
    s_mov_b32 s19, 0x20000
    s_add_u32 s8, s16, 16384
    s_addc_u32 s9, s17, 0
    s_mov_b32 s10, {524288-16384}
    s_mov_b32 s11, 0x20000
    s_add_u32 s12, s30, s6
    s_addc_u32 s13, s31, 0
    s_and_b32 s13, s13, 0xffff
    s_mov_b32 s14, 524288
    s_mov_b32 s15, 0x20000
    s_mov_b32 s20, s34
    s_and_b32 s21, s35, 0xffff
    s_mov_b32 s22, 0x10000000
    s_mov_b32 s23, 0x20000
    s_mov_b32 s36, s32
    s_and_b32 s37, s33, 0xffff
    s_mov_b32 s38, {512*8192}
    s_mov_b32 s39, 0x20000
    s_mov_b32 s44, s42
    s_and_b32 s45, s43, 0xffff
    s_and_b32 s41, s41, 0xffff
    s_cmp_lt_u32 s4, 28
    s_cselect_b32 s42, {512*3584}, 0
    s_mov_b32 s46, s42
    s_mov_b32 s43, 0x20000
    s_mov_b32 s47, 0x20000
    s_mov_b32 {S_DMA}, 0
    s_mov_b32 {S_RD}, 0
    s_lshl_b32 {S_OX}, s5, 18
    s_add_u32 {S_OX}, {S_OX}, {WS_XN}
    s_lshl_b32 {S_OWQ}, s4, 8
    s_lshl_b32 {S_OGU}, s4, 7
    s_mov_b32 {S_MX}, {S_WB}
    s_lshl_b32 s6, s3, 11
    s_add_u32 {S_MWQ}, s6, 16384
    s_lshl_b32 s6, s3, 10
    s_add_u32 {S_MG}, s6, 24576
    s_add_u32 {S_MU}, s6, 28672
    """)
    pr(f"""
    v_lshlrev_b32 {VO_X}, 4, v1
    v_add_u32 {VO_X}, {S_WB}, {VO_X}
    v_lshrrev_b32 v2, 4, v1
    v_and_b32 v3, 15, v1
    v_lshlrev_b32 v4, 2, v2
    v_xor_b32 v4, v4, v3
    v_lshlrev_b32 v4, 4, v4
    s_lshl_b32 s6, s3, 3
    v_add_u32 v5, s6, v2
    v_lshlrev_b32 v5, 13, v5
    v_add_u32 {VO_WQ(0)}, v5, v4
    v_add_u32 {VO_WQ(1)}, {4*8192-1024}, {VO_WQ(0)}
    v_lshrrev_b32 v2, 3, v1
    v_and_b32 v3, 7, v1
    v_bfe_u32 v4, v1, 4, 1
    s_and_b32 s7, s3, 1
    s_lshl_b32 s7, s7, 1
    v_or_b32 v4, s7, v4
    v_lshlrev_b32 v4, 1, v4
    v_xor_b32 v4, v4, v3
    v_add_u32 v5, s6, v2
    s_movk_i32 s7, 3584
    v_mul_lo_u32 v5, v5, s7
    v_lshl_add_u32 {VO_G}, v4, 4, v5
    """)
    for c in range(3):
        groups, adv = gemm_dma()
        for d in groups:
            pr.extend(d[:-1])
            if len(d) > 1: pr("s_nop 0")
            pr.extend(d[-1:])
        pr.extend(adv)
    pr(f"""
    v_bfe_u32 v2, v1, 2, 2
    v_and_b32 v3, 3, v1
    v_lshrrev_b32 v4, 4, v1
    v_lshl_add_u32 v5, v4, 3, v2
    v_lshlrev_b32 v6, 8, v5
    v_lshlrev_b32 v7, 2, v2
    """)
    for ds in range(4):
        pr(f"""
        v_add_u32 v8, {4*ds}, v3
        v_xor_b32 v8, v8, v7
        v_lshl_add_u32 {VB_Q(ds)}, v8, 4, v6
        """)
    pr(f"""
    v_lshlrev_b32 v6, 7, v5
    v_and_b32 v7, 1, v3
    v_lshl_add_u32 v6, v7, 3, v6
    v_bfe_u32 v7, v1, 3, 1
    v_and_b32 v8, 1, v4
    v_lshl_or_b32 v7, v8, 1, v7
    v_lshlrev_b32 v7, 1, v7
    v_lshrrev_b32 v9, 1, v3
    """)
    for cb in range(4):
        pr(f"""
        v_add_u32 v8, {2*cb}, v9
        v_xor_b32 v8, v8, v7
        v_lshl_add_u32 {VB_G(cb)}, v8, 4, v6
        """)
    pr(f"""
    v_and_b32 v5, 15, v1
    v_lshlrev_b32 v6, 6, v5
    v_add_u32 v6, {S_WB}, v6
    v_and_b32 v7, 1, v2
    v_lshlrev_b32 v7, 1, v7
    v_lshrrev_b32 v8, 1, v2
    v_mul_u32_u24 v8, 3, v8
    v_xor_b32 v7, v7, v8
    v_xor_b32 v7, v7, v4
    v_lshl_add_u32 {VB_B}, v7, 4, v6
    """)
    pr.extend(addr_update())
    pr(f"""
    v_lshrrev_b32 v2, 4, v1
    v_and_b32 v3, 15, v1
    v_lshlrev_b32 v4, 8, v2
    v_add_u32 v4, {S_WB}, v4
    """)
    for ii in range(4):
        pr(f"""
        v_add_u32 v5, {4*ii}, v2
        v_xor_b32 v5, v5, v3
        v_lshl_add_u32 {VOFFK(ii)}, v5, 4, v4
        """)
    for par in range(2):
        pr(f"""
        v_add_u32 v5, {4*par}, v2
        v_lshlrev_b32 v5, 1, v5
        v_xor_b32 v5, v5, v3
        v_lshl_add_u32 {VOFFV(par)}, v5, 4, v4
        """)
    pr(f"""
    v_and_b32 v2, 15, v1
    v_lshrrev_b32 v3, 4, v1
    v_lshlrev_b32 v5, 8, v2
    """)
    for ds in range(4):
        pr(f"""
        v_add_u32 v6, {4*ds}, v3
        v_xor_b32 v6, v6, v2
        v_lshl_add_u32 {VKA(ds)}, v6, 4, v5
        """)
    pr(f"""
    v_bfe_u32 v2, v1, 2, 2
    v_and_b32 v3, 3, v1
    v_lshrrev_b32 v4, 4, v1
    v_lshl_add_u32 v6, v4, 2, v2
    v_and_b32 v8, 7, v6
    v_lshlrev_b32 v8, 1, v8
    v_lshlrev_b32 v6, 8, v6
    v_add_u32 v6, 65536, v6
    v_and_b32 v7, 1, v3
    v_lshl_add_u32 v6, v7, 3, v6
    v_lshrrev_b32 v7, 1, v3
    """)
    for db in range(8):
        pr(f"""
        v_add_u32 v9, {2*db}, v7
        v_xor_b32 v9, v9, v8
        v_lshl_add_u32 {VVA(db)}, v9, 4, v6
        """)
    for i in range(128): pr(f"v_mov_b32 v{16+i}, 0")
    for i in range(128): pr(f"v_accvgpr_write_b32 a{i}, 0")
    pr("s_waitcnt vmcnt(16)\ns_barrier")
    stamp(pr, opts, 1)
    for cb in range(16): pr.extend(a_reads(cb))
    for tb in range(4): pr.add(b_read(0, tb))
    pr(f"s_mov_b32 {S_CNT}, 6")
    seg_a = pr.insts
    body = gemm_period(0, gemm_dma(), 8) + gemm_period(1, gemm_dma(), 8)
    body += [Inst(f"s_sub_u32 {S_CNT}, {S_CNT}, 1"), Inst(f"s_cmp_lg_u32 {S_CNT}, 0"), Inst("s_cbranch_scc1 K2_gloop")]
    p2 = Prog()
    p2.extend(gemm_period(0, gemm_dma(), 8))
    p2(f"s_mov_b32 s6, 0\ns_mov_b32 s7, 16384")
    p2.extend(gemm_period(1, (dma_k(0, SRD_K, "s6") + dma_k(1, SRD_K, "s7"), []), 8))
    p2.extend(gemm_period(0, (dma_k(3, SRD_K0, "0"), []), 8))
    p2.extend(gemm_period(1, (dma_v(0, "s6") + dma_v(1, "s7"), []), None, read_next=False))
    stamp(p2, opts, 2)
    p2(f"s_mov_b32 s6, {f32hex(QSCALE)}")
    for tb in range(4):
        for ds in range(4):
            for h in range(2):
                cb = 2 * ds + h
                for i in range(2):
                    a, b = QACC(cb, tb, 2 * i), QACC(cb, tb, 2 * i + 1)
                    p2(f"v_mul_f32 {a}, s6, {a}\nv_mul_f32 {b}, s6, {b}")
            for h in range(2):
                cb = 2 * ds + h
                for i in range(2):
                    p2(f"v_cvt_pk_bf16_f32 v{Qb(tb,ds)+2*h+i}, {QACC(cb,tb,2*i)}, {QACC(cb,tb,2*i+1)}")
    p2("s_cmp_ge_u32 s4, 28\ns_cbranch_scc1 K2_noh")
    p2(f"""
    s_lshl_b32 s6, s5, 1
    s_lshr_b32 s7, s3, 1
    s_add_u32 s6, s6, s7
    s_mul_i32 s6, s6, 92
    s_add_u32 s6, s6, s4
    s_add_u32 s6, s6, 64
    s_lshl_b32 s6, s6, 14
    s_and_b32 s7, s3, 1
    s_lshl_b32 s7, s7, 13
    s_add_u32 s6, s6, s7
    s_add_u32 s6, s6, {WS_ACT}
    s_add_u32 s7, s6, 4096
    v_and_b32 v2, 15, v1
    v_lshrrev_b32 v3, 4, v1
    v_bfe_u32 v4, v1, 1, 3
    v_xor_b32 v4, v4, v3
    v_lshlrev_b32 v4, 4, v4
    v_lshl_add_u32 v2, v2, 7, v4
    v_xor_b32 v3, 64, v2
    s_mov_b32 s27, {f32hex(-LOG2E)}
    """)
    for tb in range(4):
        for e in range(2):
            t0 = 16 + (e) * 32
            for hh in range(2):
                cb = 2 * e + hh
                for r in range(4):
                    j = hh * 4 + r
                    p2(f"v_accvgpr_read_b32 v{t0+j}, {GACC(cb,tb,r)}")
                    p2(f"v_accvgpr_read_b32 v{t0+8+j}, {UACC(cb,tb,r)}")
            for j in range(8): p2(f"v_mul_f32 v{t0+16+j}, s27, v{t0+j}")
            for j in range(8): p2(f"v_exp_f32 v{t0+16+j}, v{t0+16+j}")
            for j in range(8): p2(f"v_mul_f32 v{t0+j}, v{t0+j}, v{t0+8+j}")
            for j in range(8): p2(f"v_add_f32 v{t0+16+j}, 1.0, v{t0+16+j}")
            for j in range(8): p2(f"v_rcp_f32 v{t0+16+j}, v{t0+16+j}")
            p2("s_nop 0")
            for j in range(8): p2(f"v_mul_f32 v{t0+j}, v{t0+j}, v{t0+16+j}")
            for i in range(4): p2(f"v_cvt_pk_bf16_f32 v{t0+24+i}, v{t0+2*i}, v{t0+2*i+1}")
            p2(f"buffer_store_dwordx4 v[{t0+24}:{t0+27}], v{2+e}, {SRD_WS}, s{6+(tb>>1)} offen offset:{(tb&1)*2048}")
    p2("K2_noh:")
    for i in range(128): p2(f"v_accvgpr_write_b32 a{i}, 0")
    for qb in range(4): p2(f"v_mov_b32 {L(qb)}, 0")
    p2(f"s_mov_b32 {S_OFF}, 32768")
    p2("s_waitcnt vmcnt(0)\ns_barrier")
    stamp(p2, opts, 3)
    for f in range(4): p2.add(k_read(0, f))
    ph, carry = emit_phase(-1, opts, [])
    p2.extend(ph)
    for qb in range(4):
        m = f"v{232+qb}"
        p2(f"v_max3_f32 {m}, {S(0,0,qb,0)}, {S(0,0,qb,1)}, {S(0,0,qb,2)}")
        p2(f"v_max3_f32 {m}, {m}, {S(0,0,qb,3)}, {S(0,1,qb,0)}")
        p2(f"v_max3_f32 {m}, {m}, {S(0,1,qb,1)}, {S(0,1,qb,2)}")
        p2(f"v_max_f32 {m}, {m}, {S(0,1,qb,3)}")
        p2(f"v_mov_b32 v236, {m}")
        p2(f"v_permlane32_swap_b32 v236, {m}")
        p2(f"v_max_f32 {m}, {m}, v236")
        p2(f"v_mov_b32 v236, {m}")
        p2(f"v_permlane16_swap_b32 v236, {m}")
        p2(f"v_max_f32 {m}, {m}, v236")
        for r in range(4): p2(f"v_sub_f32 {NEGM(qb,r)}, 0, {m}")
        for kb in range(2):
            for r in range(4): p2(f"v_sub_f32 {S(0,kb,qb,r)}, {S(0,kb,qb,r)}, {m}")
    ph, carry = emit_phase(0, opts, carry)
    p2.extend(ph)
    p2(f"s_mov_b32 {S_CNT}, 7")
    abody = []
    c2 = carry
    for p in range(1, 9):
        ph, c2 = emit_phase(p, opts, c2)
        abody += ph
    abody += [Inst(f"s_sub_u32 {S_CNT}, {S_CNT}, 1"), Inst(f"s_cmp_lg_u32 {S_CNT}, 0"), Inst("s_cbranch_scc1 K2_aloop")]
    tail = []
    c3 = c2
    for p in range(57, 65):
        ph, c3 = emit_phase(p, opts, c3)
        tail += ph
    tail += c3
    post = Prog()
    stamp(post, opts, 4)
    for qb in range(4):
        post(f"""
        v_mov_b32 v236, {L(qb)}
        v_permlane32_swap_b32 v236, {L(qb)}
        v_add_f32 {L(qb)}, {L(qb)}, v236
        v_mov_b32 v236, {L(qb)}
        v_permlane16_swap_b32 v236, {L(qb)}
        v_add_f32 {L(qb)}, {L(qb)}, v236
        v_rcp_f32 {L(qb)}, {L(qb)}
        """)
    post(f"""
    s_lshl_b32 s6, s5, 1
    s_lshr_b32 s7, s3, 1
    s_add_u32 s6, s6, s7
    s_mul_i32 s6, s6, 92
    s_lshl_b32 s7, s4, 1
    s_add_u32 s6, s6, s7
    s_lshl_b32 s6, s6, 14
    s_and_b32 s7, s3, 1
    s_lshl_b32 s7, s7, 13
    s_add_u32 s6, s6, s7
    s_add_u32 s28, s6, {WS_ACT}
    s_add_u32 s29, s28, 4096
    s_add_u32 s30, s28, 16384
    s_add_u32 s31, s28, {16384+4096}
    v_and_b32 v2, 15, v1
    v_lshrrev_b32 v3, 4, v1
    v_bfe_u32 v4, v1, 1, 3
    v_xor_b32 v4, v4, v3
    v_lshlrev_b32 v4, 4, v4
    v_lshl_add_u32 v2, v2, 7, v4
    v_xor_b32 v3, 64, v2
    """)
    for qb in range(4):
        for e in range(4):
            t0 = 16 + (e & 1) * 16
            for hh in range(2):
                for r in range(4):
                    post(f"v_accvgpr_read_b32 v{t0+hh*4+r}, {O(2*e+hh,qb,r)}")
            for j in range(8): post(f"v_mul_f32 v{t0+j}, v{t0+j}, {L(qb)}")
            for i in range(4): post(f"v_cvt_pk_bf16_f32 v{t0+8+i}, v{t0+2*i}, v{t0+2*i+1}")
            post(f"buffer_store_dwordx4 v[{t0+8}:{t0+11}], v{2+(e&1)}, {SRD_WS}, s{28+(qb>>1)+2*(e>>1)} offen offset:{(qb&1)*2048}")
    if opts.get("time"):
        post("s_waitcnt vmcnt(0)")
        stamp(post, opts, 5)
        post(f"""
        s_waitcnt lgkmcnt(0)
        s_lshl_b32 s6, s2, 2
        s_add_u32 s6, s6, s3
        s_lshl_b32 s6, s6, 5
        s_add_u32 s6, s6, {WS_TIME}
        v_mov_b32 v3, s6
        """)
        for i in range(6):
            post(f"v_mov_b32 v2, s{60+2*i}\nbuffer_store_dword v2, v3, {SRD_WS}, 0 offen offset:{4*i}")
    post("K2_end:\ns_endpgm")

    a2, st = auto_wait_linear(seg_a)
    a2 = check_hazards(merge_adjacent_waits(a2), fix=True)
    b2, st = auto_wait_loop(body, st)
    b2 = merge_adjacent_waits(b2)
    q2, st = auto_wait_linear(p2.insts, st)
    q2 = check_hazards(b2[-40:] + merge_adjacent_waits(q2), fix=True)[40:]
    ab2, st = auto_wait_loop(abody, st)
    ab2 = merge_adjacent_waits(ab2)
    t2, st = auto_wait_linear(tail, st)
    t2 = check_hazards(merge_adjacent_waits(t2), fix=True)
    po2, _ = auto_wait_linear(post.insts, st)
    po2 = check_hazards([Inst("s_nop 15")] + merge_adjacent_waits(po2), fix=True)
    for nm, seq in (("gloop", a2[-60:] + b2 + b2 + q2[:80]), ("aloop", q2[-60:] + ab2 + ab2 + t2 + po2[:40])):
        for p_ in check_hazards(seq): print("HAZARD", nm, p_, file=sys.stderr)
    full = a2 + [Inst("K2_gloop:")] + b2 + q2 + [Inst("K2_aloop:")] + ab2 + t2 + po2
    return full

def gen_k3(opts):
    NST = 5
    RING = NST * 32768
    ACC = lambda st_, cb, tb, r=None: (f"a[{st_*64+(cb*4+tb)*4}:{st_*64+(cb*4+tb)*4+3}]" if r is None else f"a{st_*64+(cb*4+tb)*4+r}")
    def AF3(s, cb, u=None):
        b = 16 + (s * 4 + cb) * 4
        return f"v[{b}:{b+3}]" if u is None else f"v[{b+2*u}:{b+2*u+1}]"
    def BF3(s, tb):
        b = 48 + (s * 4 + tb) * 4
        return f"v[{b}:{b+3}]"
    VA = lambda cb: f"v{80+cb}"; VBs = lambda s: f"v{84+s}"
    VAb = lambda cb: f"v{86+cb}"; VBb = lambda s: f"v{90+s}"
    VOW = lambda ii: f"v{92+ii}"; VOA = "v96"
    SRD_W = "s[8:11]"; SRD_WS3 = "s[12:15]"
    S_RD3 = "s16"; S_DMA3 = "s17"; S_GP = "s18"; S_OA = "s19"; S_OW = "s20"; S_MW = "s21"; S_MA = "s22"; S_REM = "s23"
    S_OA2 = "s38"; S_OW2 = "s39"
    def a_rd(s, cb):
        return [Inst(f"ds_read_b64_tr_b16 {AF3(s,cb,u)}, {VA(cb)} offset:{(32*s+16*u)*256}") for u in range(2)]
    def b_rd(s, tb):
        return Inst(f"ds_read_b128 {BF3(s,tb)}, {VBs(s)} offset:{16384 + tb*2048}")
    def addr_upd():
        return [Inst(f"v_add_u32 {VA(cb)}, {S_RD3}, {VAb(cb)}") for cb in range(4)] + [Inst(f"v_add_u32 {VBs(s)}, {S_RD3}, {VBb(s)}") for s in range(2)]
    def ring_adv(s):
        return [Inst(f"s_add_u32 {s}, {s}, 32768"), Inst(f"s_cmp_eq_u32 {s}, {RING}"), Inst(f"s_cselect_b32 {s}, 0, {s}")]
    def dma():
        pre = [Inst(f"s_cmp_lt_u32 {S_GP}, 64"), Inst("s_cselect_b32 s8, s24, s26"), Inst("s_cselect_b32 s9, s25, s27"),
               Inst(f"s_cmp_gt_i32 {S_REM}, 0"), Inst(f"s_cselect_b32 {S_OA2}, {S_OA}, 0xf0000000"), Inst(f"s_cselect_b32 {S_OW2}, {S_OW}, 0xf0000000")]
        r = []
        r.append([Inst(f"s_add_u32 m0, {S_DMA3}, {S_MW}"), Inst(f"buffer_load_dwordx4 {VOW(0)}, {SRD_W}, {S_OW2} offen lds")])
        for ii in range(1, 4):
            r.append([Inst(f"buffer_load_dwordx4 {VOW(ii)}, {SRD_W}, {S_OW2} offen offset:{ii*1024} lds")])
        r.append([Inst(f"s_add_u32 m0, {S_DMA3}, {S_MA}"), Inst(f"buffer_load_dwordx4 {VOA}, {SRD_WS3}, {S_OA2} offen lds")])
        for ii in range(1, 4):
            r.append([Inst(f"buffer_load_dwordx4 {VOA}, {SRD_WS3}, {S_OA2} offen offset:{ii*1024} lds")])
        adv = [Inst(f"s_add_u32 {S_GP}, {S_GP}, 1"), Inst(f"s_add_u32 {S_OA}, {S_OA}, 16384"), Inst(f"s_add_u32 {S_OW}, {S_OW}, 65536"),
               Inst(f"s_sub_u32 {S_REM}, {S_REM}, 1")] + ring_adv(S_DMA3)
        return pre, r, adv
    def period(accset):
        NG = 32
        pre = [[] for _ in range(NG + 1)]; mem = [[] for _ in range(NG + 1)]; gaps = [[] for _ in range(NG + 1)]
        dpre, groups, adv = dma()
        rd = []
        for cb in range(4): rd += a_rd(1, cb)
        for tb in range(4): rd.append(b_rd(1, tb))
        rd = rd[0:2] + rd[8:12] + rd[2:8]
        for i, x in enumerate(rd): mem[i].append(x)
        for gp, d in zip([3, 6, 9, 12], groups[4:]):
            gaps[gp - 1] += d[:-1]; mem[gp] += d[-1:]
        gaps[12] += adv[:2]; gaps[13] += adv[2:4]; gaps[14] += adv[4:]
        gaps[15] += ring_adv(S_RD3)
        pre[16] += [Inst("s_waitcnt vmcnt(16)"), Inst("s_barrier")]
        au = addr_upd()
        pre[16] = au + pre[16]
        rd = []
        for cb in range(4): rd += a_rd(0, cb)
        for tb in range(4): rd.append(b_rd(0, tb))
        rd = rd[0:2] + rd[8:12] + rd[2:8]
        for i, x in enumerate(rd): mem[16 + i].append(x)
        gaps[16] += dpre[:3]; gaps[17] += dpre[3:]
        for gp, d in zip([19, 22, 25, 28], groups[:4]):
            gaps[gp - 1] += d[:-1]; mem[gp] += d[-1:]
        out = []
        for s in range(2):
            for cb in range(4):
                if cb % 2 == 0:
                    regs = [AF3(s, cb), AF3(s, cb + 1)]
                    if cb == 0: regs += [BF3(s, t) for t in range(4)]
                    pre[16 * s + 4 * cb].append(Hint(*regs))
                for tb in range(4):
                    k = 16 * s + 4 * cb + tb
                    d = ACC(accset, cb, tb)
                    out += pre[k]
                    out.append(Inst(f"v_mfma_f32_16x16x32_bf16 {d}, {AF3(s,cb)}, {BF3(s,tb)}, {d}"))
                    out += mem[k]; out += gaps[k]
        return out
    pr = Prog()
    pr(f"""
    s_cmp_ge_u32 s2, 256
    s_cbranch_scc1 K3_end
    """)
    stamp(pr, opts, 0)
    pr(f"""
    s_load_dwordx2 s[24:25], s[0:1], 32
    s_load_dwordx2 s[26:27], s[0:1], 64
    s_load_dwordx2 s[28:29], s[0:1], 88
    s_load_dwordx2 s[30:31], s[0:1], 0
    s_load_dwordx4 s[32:35], s[0:1], 72
    v_and_b32 v1, 63, v0
    v_lshrrev_b32 v2, 6, v0
    s_nop 0
    v_readfirstlane_b32 s3, v2
    s_and_b32 s4, s2, 3
    s_bfe_u32 s5, s2, 0x10002
    s_lshl_b32 s5, s5, 3
    s_bfe_u32 s6, s2, 0x30003
    s_add_u32 s5, s5, s6
    s_lshr_b32 s6, s2, 6
    s_mul_i32 {S_GP}, s4, 23
    s_waitcnt lgkmcnt(0)
    s_and_b32 s25, s25, 0xffff
    s_sub_u32 s26, s26, {64*65536}
    s_subb_u32 s27, s27, 0
    s_and_b32 s27, s27, 0xffff
    s_mov_b32 s8, s24
    s_mov_b32 s9, s25
    s_mov_b32 s10, {92*65536}
    s_mov_b32 s11, 0x20000
    s_mov_b32 s12, s28
    s_and_b32 s13, s29, 0xffff
    s_mov_b32 s14, 0x10000000
    s_mov_b32 s15, 0x20000
    s_mov_b32 {S_RD3}, 0
    s_mov_b32 {S_DMA3}, 0
    s_mov_b32 {S_REM}, 23
    s_mul_i32 {S_OA}, s5, 92
    s_add_u32 {S_OA}, {S_OA}, {S_GP}
    s_lshl_b32 {S_OA}, {S_OA}, 14
    s_add_u32 {S_OA}, {S_OA}, {WS_ACT}
    s_lshl_b32 {S_OW}, {S_GP}, 16
    s_lshl_b32 s7, s6, 8
    s_add_u32 {S_OW}, {S_OW}, s7
    s_lshl_b32 {S_MW}, s3, 12
    s_add_u32 {S_MA}, {S_MW}, 16384
    """)
    pr(f"""
    v_lshrrev_b32 v2, 4, v1
    v_and_b32 v3, 15, v1
    s_lshl_b32 s7, s3, 4
    """)
    for ii in range(4):
        pr(f"""
        v_add_u32 v4, {4*(ii&1)}, v2
        v_lshlrev_b32 v4, 1, v4
        v_xor_b32 v4, v4, v3
        v_lshlrev_b32 v4, 4, v4
        v_add_u32 v5, s7, v2
        v_add_u32 v5, {4*ii}, v5
        v_lshl_add_u32 v4, v5, 10, v4
        v_subrev_u32 {VOW(ii)}, {1024*ii}, v4
        """)
    pr(f"""
    v_lshlrev_b32 {VOA}, 4, v1
    v_add_u32 {VOA}, {S_MW}, {VOA}
    """)
    for c in range(4):
        dpre, groups, adv = dma()
        pr.extend(dpre)
        for d in (groups if c < 3 else groups[:4]):
            pr.extend(d[:-1])
            if len(d) > 1: pr("s_nop 0")
            pr.extend(d[-1:])
        if c < 3: pr.extend(adv)
    pr(f"""
    v_bfe_u32 v2, v1, 2, 2
    v_and_b32 v3, 3, v1
    v_lshrrev_b32 v4, 4, v1
    v_lshl_add_u32 v6, v4, 2, v2
    v_and_b32 v8, 7, v6
    v_lshlrev_b32 v8, 1, v8
    v_lshlrev_b32 v6, 8, v6
    v_and_b32 v7, 1, v3
    v_lshl_add_u32 v6, v7, 3, v6
    v_lshrrev_b32 v7, 1, v3
    s_and_b32 s7, s3, 1
    s_lshl_b32 s7, s7, 3
    v_add_u32 v7, s7, v7
    """)
    for cb in range(4):
        pr(f"""
        v_add_u32 v9, {2*cb}, v7
        v_xor_b32 v9, v9, v8
        v_lshl_add_u32 {VAb(cb)}, v9, 4, v6
        """)
    pr(f"""
    v_and_b32 v5, 15, v1
    v_bfe_u32 v6, v1, 1, 3
    v_xor_b32 v6, v6, v4
    v_lshlrev_b32 v6, 4, v6
    v_lshl_add_u32 v6, v5, 7, v6
    s_lshr_b32 s7, s3, 1
    s_lshl_b32 s7, s7, 13
    v_add_u32 {VBb(0)}, s7, v6
    v_xor_b32 {VBb(1)}, 64, {VBb(0)}
    """)
    pr.extend(addr_upd())
    for i in range(128): pr(f"v_accvgpr_write_b32 a{i}, 0")
    pr(f"""
    s_mov_b32 s36, 23
    s_mov_b32 s37, 0
    s_cmp_eq_u32 s4, 2
    s_cselect_b32 s36, 18, s36
    s_cselect_b32 s37, 5, s37
    s_cmp_eq_u32 s4, 3
    s_cselect_b32 s36, 0, s36
    s_cselect_b32 s37, 23, s37
    s_waitcnt vmcnt(20)
    s_barrier
    """)
    stamp(pr, opts, 1)
    for cb in range(4): pr.extend(a_rd(0, cb))
    for tb in range(4): pr.add(b_rd(0, tb))
    pr("s_waitcnt lgkmcnt(0)")
    pr("s_cmp_eq_u32 s36, 0\ns_cbranch_scc1 K3_l1pre")
    seg_a = pr.insts
    body0 = period(0) + [Inst("s_sub_u32 s36, s36, 1"), Inst("s_cmp_lg_u32 s36, 0"), Inst("s_cbranch_scc1 K3_loop0")]
    mid = [Inst("K3_l1pre:"), Inst("s_cmp_eq_u32 s37, 0"), Inst("s_cbranch_scc1 K3_post")]
    body1 = period(1) + [Inst("s_sub_u32 s37, s37, 1"), Inst("s_cmp_lg_u32 s37, 0"), Inst("s_cbranch_scc1 K3_loop1")]
    post = Prog()
    post("K3_post:")
    post("s_nop 15")
    stamp(post, opts, 2)
    post(f"""
    s_lshl_b32 s7, s5, 2
    s_add_u32 s7, s7, s6
    s_mul_i32 s40, s7, 5
    s_lshl_b32 s40, s40, 16
    s_add_u32 s40, s40, {WS_SLAB}
    s_lshl_b32 s41, s3, 14
    s_add_u32 s41, s41, s40
    s_lshl_b32 s42, s4, 16
    s_add_u32 s42, s42, s41
    v_lshlrev_b32 v2, 4, v1
    s_cmp_eq_u32 s4, 3
    s_cbranch_scc1 K3_st1
    """)
    for rg in range(16):
        if rg % 4 == 0 and rg: post("s_add_u32 s42, s42, 4096")
        post(f"buffer_store_dwordx4 a[{rg*4}:{rg*4+3}], v2, {SRD_WS3}, s42 offen offset:{(rg%4)*1024} sc0 sc1")
    post(f"""
    K3_st1:
    s_cmp_lt_u32 s4, 2
    s_cbranch_scc1 K3_sync
    s_add_u32 s42, s4, 1
    s_lshl_b32 s42, s42, 16
    s_add_u32 s42, s42, s41
    """)
    for rg in range(16):
        if rg % 4 == 0 and rg: post("s_add_u32 s42, s42, 4096")
        post(f"buffer_store_dwordx4 a[{64+rg*4}:{64+rg*4+3}], v2, {SRD_WS3}, s42 offen offset:{(rg%4)*1024} sc0 sc1")
    post(f"""
    K3_sync:
    s_waitcnt vmcnt(0)
    s_barrier
    s_cmp_lg_u32 s3, 0
    s_cbranch_scc1 K3_wait
    s_load_dwordx2 s[44:45], s[0:1], 80
    s_lshl_b32 s43, s7, 2
    v_mov_b32 v3, s43
    v_mov_b32 v4, 1
    s_waitcnt lgkmcnt(0)
    s_mov_b64 s[46:47], exec
    s_mov_b64 exec, 1
    global_atomic_add v3, v4, s[44:45] sc1
    K3_spin:
    global_load_dword v5, v3, s[44:45] sc0 sc1
    s_waitcnt vmcnt(0)
    v_readfirstlane_b32 s48, v5
    s_cmp_ge_u32 s48, 4
    s_cbranch_scc1 K3_got
    s_sleep 1
    s_branch K3_spin
    K3_got:
    s_mov_b64 exec, s[46:47]
    K3_wait:
    s_barrier
    """)
    stamp(post, opts, 3)
    post(f"""
    s_lshl_b32 s41, s4, 14
    s_add_u32 s41, s41, s40
    s_lshl_b32 s42, s3, 12
    s_add_u32 s41, s41, s42
    """)
    for sl in range(5):
        post(f"s_add_u32 s42, s41, {sl*65536}")
        for tb in range(4):
            b = 16 + (sl * 4 + tb) * 4
            post(f"buffer_load_dwordx4 v[{b}:{b+3}], v2, {SRD_WS3}, s42 offen offset:{tb*1024} sc0 sc1")
    post(f"""
    s_mov_b32 s8, s30
    s_and_b32 s9, s31, 0xffff
    s_mov_b32 s10, {2048*1024}
    s_mov_b32 s11, 0x20000
    s_mov_b32 s48, s32
    s_and_b32 s49, s33, 0xffff
    s_mov_b32 s50, {2048*1024}
    s_mov_b32 s51, 0x20000
    s_lshl_b32 s42, s5, 7
    s_lshr_b32 s43, s4, 1
    s_lshl_b32 s43, s43, 6
    s_add_u32 s42, s42, s43
    s_lshl_b32 s42, s42, 10
    s_lshl_b32 s43, s6, 8
    s_add_u32 s42, s42, s43
    s_and_b32 s43, s4, 1
    s_lshl_b32 s43, s43, 7
    s_add_u32 s42, s42, s43
    s_lshl_b32 s43, s3, 5
    s_add_u32 s42, s42, s43
    v_and_b32 v3, 15, v1
    v_lshrrev_b32 v4, 4, v1
    v_lshlrev_b32 v3, 10, v3
    v_lshl_add_u32 v3, v4, 3, v3
    """)
    for tb in range(4):
        post(f"v_add_u32 v{4+tb}, {tb*16384}, v3")
        post(f"buffer_load_dwordx2 v[{100+2*tb}:{101+2*tb}], v{4+tb}, s[8:11], s42 offen")
    post(f"s_mov_b32 s43, {f32hex(-LOG2E)}")
    for tb in range(4):
        s0 = 16 + tb * 4; s1 = 16 + (4 + tb) * 4; s2 = 16 + (8 + tb) * 4; y0 = 16 + (12 + tb) * 4; y1 = 16 + (16 + tb) * 4
        for r in range(4):
            post(f"v_add_f32 v{s0+r}, v{s0+r}, v{s1+r}")
            post(f"v_add_f32 v{y0+r}, v{y0+r}, v{y1+r}")
        for r in range(4):
            post(f"v_add_f32 v{s0+r}, v{s0+r}, v{s2+r}")
            post(f"v_mul_f32 v{s1+r}, s43, v{y0+r}")
        for r in range(4): post(f"v_exp_f32 v{s1+r}, v{s1+r}")
        post("s_nop 0")
        for r in range(4): post(f"v_add_f32 v{s1+r}, 1.0, v{s1+r}")
        for r in range(4): post(f"v_rcp_f32 v{s1+r}, v{s1+r}")
        post("s_nop 0")
        for r in range(4): post(f"v_mul_f32 v{y0+r}, v{y0+r}, v{s1+r}")
        xb = 100 + 2 * tb
        post(f"v_lshlrev_b32 v{s2}, 16, v{xb}\nv_and_b32 v{s2+1}, 0xffff0000, v{xb}\nv_lshlrev_b32 v{s2+2}, 16, v{xb+1}\nv_and_b32 v{s2+3}, 0xffff0000, v{xb+1}")
        for r in range(4): post(f"v_fma_f32 v{s0+r}, v{s0+r}, v{y0+r}, v{s2+r}")
        post(f"v_cvt_pk_bf16_f32 v{y1}, v{s0}, v{s0+1}\nv_cvt_pk_bf16_f32 v{y1+1}, v{s0+2}, v{s0+3}")
        post(f"buffer_store_dwordx2 v[{y1}:{y1+1}], v{4+tb}, s[48:51], s42 offen")
    if opts.get("time"):
        post("s_waitcnt vmcnt(0)")
        stamp(post, opts, 4)
        post(f"""
        s_waitcnt lgkmcnt(0)
        s_lshl_b32 s6, s2, 2
        s_add_u32 s6, s6, s3
        s_lshl_b32 s6, s6, 5
        s_add_u32 s6, s6, {WS_TIME + 65536}
        v_mov_b32 v3, s6
        """)
        for i in range(5):
            post(f"v_mov_b32 v2, s{60+2*i}\nbuffer_store_dword v2, v3, {SRD_WS3}, 0 offen offset:{4*i}")
    post("K3_end:\ns_endpgm")

    a2, st = auto_wait_linear(seg_a)
    a2 = check_hazards(merge_adjacent_waits(a2), fix=True)
    b0, st0 = auto_wait_loop(body0, st)
    b0 = merge_adjacent_waits(b0)
    b1, st1 = auto_wait_loop(body1, st0)
    b1 = merge_adjacent_waits(b1)
    stp = WaitState(); stp.lg = list(st1.lg); stp.vm = list(st1.vm)
    po, _ = auto_wait_linear([Inst("s_waitcnt lgkmcnt(0)")] + post.insts, stp)
    po = check_hazards(merge_adjacent_waits(po), fix=True)
    for nm, seq in (("l0", a2[-40:] + b0 + b0 + b1 + b1 + po[:30]),):
        for p_ in check_hazards(seq): print("HAZARD K3", nm, p_, file=sys.stderr)
    lab = [i for i in po if i.kind == "label" and i.text == "K3_post:"]
    po = lab + [i for i in po if not (i.kind == "label" and i.text == "K3_post:")]
    return a2 + [Inst("K3_loop0:")] + b0 + mid + [Inst("K3_loop1:")] + b1 + po

def gen(opts):
    hdr = f"""; @launch kernel=ln_kernel grid=(256,1,1) block=(256,1,1) lds=0
; @launch kernel=attn_kernel grid=(256,1,1) block=(256,1,1) lds=131072
; @launch kernel=oproj_kernel grid=(256,1,1) block=(256,1,1) lds=163840
.amdgcn_target "amdgcn-amd-amdhsa--gfx950"
.text
"""
    s = hdr
    s += kernel_text("ln_kernel", gen_k1(opts), 64, 64)
    s += kernel_text("attn_kernel", gen_k2(opts), 512, 256)
    s += kernel_text("oproj_kernel", gen_k3(opts), 256, 128)
    return s

if __name__ == "__main__":
    opts = {}
    for a in sys.argv[2:]:
        k, _, v = a.partition("=")
        opts[k] = int(v) if v else 1
    open(sys.argv[1], "w").write(gen(opts))
```

```python
import sys, math
sys.path.insert(0, "dev")
from asmdsl import *

NAME = "recurrent_scan__mha_block_cached__swiglu_ffn__prompt"
WS_XN = 0
WS_ACT = 4 << 20
WS_SLAB = 32 << 20
WS_TIME = 60 << 20
LOG2E = 1.4426950408889634
QSCALE = (128 ** -0.5) * LOG2E

def f32hex(x):
    import struct
    return "0x%08x" % struct.unpack("<I", struct.pack("<f", x))[0]

def kernel_text(label, insts, vgpr, accum, sgpr=102):
    p = Prog(); p.extend(insts)
    return f""".globl {label}
.p2align 8
.type {label},@function
{label}:
{p.text()}
.section .rodata,"a"
.p2align 6
.amdhsa_kernel {label}
  .amdhsa_next_free_vgpr {vgpr}
  .amdhsa_next_free_sgpr {sgpr}
  .amdhsa_accum_offset {accum}
  .amdhsa_group_segment_fixed_size 0
  .amdhsa_kernarg_size 96
  .amdhsa_user_sgpr_count 2
  .amdhsa_user_sgpr_kernarg_segment_ptr 1
  .amdhsa_system_sgpr_workgroup_id_x 1
  .amdhsa_float_denorm_mode_32 3
.end_amdhsa_kernel
.text
"""

def finish(insts):
    a, st = auto_wait_linear(insts)
    a = merge_adjacent_waits(a)
    return check_hazards(a, fix=True)

def reduce64(pr, v, tmp, op="v_add_f32"):
    pr(f"""
    s_nop 1
    {op}_dpp {v}, {v}, {v} quad_perm:[1,0,3,2] row_mask:0xf bank_mask:0xf
    s_nop 1
    {op}_dpp {v}, {v}, {v} quad_perm:[2,3,0,1] row_mask:0xf bank_mask:0xf
    s_nop 1
    {op}_dpp {v}, {v}, {v} row_half_mirror row_mask:0xf bank_mask:0xf
    s_nop 1
    {op}_dpp {v}, {v}, {v} row_mirror row_mask:0xf bank_mask:0xf
    v_mov_b32 {tmp}, {v}
    s_nop 1
    v_permlane16_swap_b32 {tmp}, {v}
    {op} {v}, {v}, {tmp}
    v_mov_b32 {tmp}, {v}
    s_nop 1
    v_permlane32_swap_b32 {tmp}, {v}
    {op} {v}, {v}, {tmp}
    """)

def rbf16(pr, v):
    pr(f"v_cvt_pk_bf16_f32 {v}, {v}, {v}\nv_and_b32 {v}, 0xffff0000, {v}")

def gen_k1(opts):
    pr = Prog()
    pr(f"""
    s_cmp_ge_u32 s2, 256
    s_cbranch_scc1 K1_end
    s_memrealtime s[60:61]
    s_load_dwordx2 s[4:5], s[0:1], 0
    s_load_dwordx2 s[6:7], s[0:1], 88
    v_and_b32 v1, 63, v0
    v_lshrrev_b32 v2, 6, v0
    s_nop 0
    v_readfirstlane_b32 s3, v2
    s_lshl_b32 s16, s2, 3
    s_lshl_b32 s17, s3, 1
    s_add_u32 s16, s16, s17
    s_lshl_b32 s17, s16, 10
    v_lshlrev_b32 v2, 4, v1
    s_waitcnt lgkmcnt(0)
    s_mov_b32 s8, s4
    s_and_b32 s9, s5, 0xffff
    s_mov_b32 s10, {2048*1024}
    s_mov_b32 s11, 0x20000
    s_mov_b32 s12, s6
    s_and_b32 s13, s7, 0xffff
    s_mov_b32 s14, 0x10000000
    s_mov_b32 s15, 0x20000
    buffer_load_dwordx4 v[4:7], v2, s[8:11], s17 offen
    buffer_load_dwordx4 v[8:11], v2, s[8:11], s17 offen offset:1024
    """)
    pr(f"""
    v_lshrrev_b32 v3, 2, v1
    v_lshlrev_b32 v3, 14, v3
    v_and_b32 v12, 3, v1
    s_lshr_b32 s18, s16, 8
    s_lshl_b32 s18, s18, 18
    s_and_b32 s19, s16, 255
    s_lshl_b32 s20, s19, 6
    s_add_u32 s18, s18, s20
    s_add_u32 s18, s18, {WS_XN}
    s_lshr_b32 s20, s19, 2
    s_and_b32 s20, s20, 3
    s_and_b32 s21, s20, 1
    s_lshl_b32 s21, s21, 1
    s_lshr_b32 s22, s20, 1
    s_mul_i32 s22, s22, 3
    s_xor_b32 s21, s21, s22
    v_xor_b32 v12, s21, v12
    v_lshl_add_u32 v3, v12, 4, v3
    """)
    for k, base in enumerate((4, 8)):
        u = 16 + k * 16
        for i in range(4):
            pr(f"v_lshlrev_b32 v{u+2*i}, 16, v{base+i}")
            pr(f"v_and_b32 v{u+2*i+1}, 0xffff0000, v{base+i}")
        sm = f"v{u+8}"; tmp = f"v{u+9}"; var = f"v{u+10}"; d = f"v{u+11}"
        pr(f"v_add_f32 {sm}, v{u}, v{u+1}")
        for i in range(2, 8): pr(f"v_add_f32 {sm}, {sm}, v{u+i}")
        reduce64(pr, sm, tmp)
        pr(f"v_mul_f32 {sm}, {f32hex(1/512)}, {sm}")
        pr(f"v_sub_f32 {d}, v{u}, {sm}\nv_mul_f32 {var}, {d}, {d}")
        for i in range(1, 8):
            pr(f"v_sub_f32 {d}, v{u+i}, {sm}\nv_fmac_f32 {var}, {d}, {d}")
        reduce64(pr, var, tmp)
        pr(f"v_mul_f32 {var}, {f32hex(1/512)}, {var}")
        rbf16(pr, var)
        pr(f"v_add_f32 {var}, {f32hex(1e-5)}, {var}")
        rbf16(pr, var)
        pr(f"v_sqrt_f32 {var}, {var}")
        pr("s_nop 0")
        rbf16(pr, var)
        pr(f"v_rcp_f32 {var}, {var}")
        rbf16(pr, sm)
        for i in range(8):
            pr(f"v_sub_f32 v{u+i}, v{u+i}, {sm}")
        for i in range(4):
            pr(f"v_cvt_pk_bf16_f32 v{base+i}, v{u+2*i}, v{u+2*i+1}")
        for i in range(4):
            pr(f"v_lshlrev_b32 v{u+2*i}, 16, v{base+i}")
            pr(f"v_and_b32 v{u+2*i+1}, 0xffff0000, v{base+i}")
        for i in range(8):
            pr(f"v_mul_f32 v{u+i}, v{u+i}, {var}")
        for i in range(4):
            pr(f"v_cvt_pk_bf16_f32 v{base+i}, v{u+2*i}, v{u+2*i+1}")
        pr(f"buffer_store_dwordx4 v[{base}:{base+3}], v3, s[12:15], s18 offen offset:{64*k}")
    if opts.get("time"):
        pr(f"""
        s_waitcnt vmcnt(0)
        s_memrealtime s[62:63]
        s_waitcnt lgkmcnt(0)
        s_lshl_b32 s6, s2, 2
        s_add_u32 s6, s6, s3
        s_lshl_b32 s6, s6, 5
        s_add_u32 s6, s6, {WS_TIME + 131072}
        v_mov_b32 v3, s6
        v_mov_b32 v2, s60
        buffer_store_dword v2, v3, s[12:15], 0 offen
        v_mov_b32 v2, s62
        buffer_store_dword v2, v3, s[12:15], 0 offen offset:4
        """)
    pr("K1_end:\ns_endpgm")
    return finish(pr.insts)

def S(sb, kb, qb, r=None):
    b = 16 + sb * 32 + (kb * 4 + qb) * 4
    return f"v[{b}:{b+3}]" if r is None else f"v{b+r}"
def P(pb, qb, i=None):
    b = 80 + pb * 16 + qb * 4
    return f"v[{b}:{b+3}]" if i is None else f"v{b+i}"
def NEGM(qb, r=None):
    b = 112 + qb * 4
    return f"v[{b}:{b+3}]" if r is None else f"v{b+r}"
def Qb(qb, ds): return 144 + (qb * 4 + ds) * 4
def Q(qb, ds):
    b = Qb(qb, ds)
    return f"v[{b}:{b+3}]"
VKA = lambda ds: f"v{208+ds}"
VVA = lambda db: f"v{212+db}"
VOFFK = lambda ii: f"v{220+ii}"
VOFFV = lambda par: f"v{224+par}"
L = lambda qb: f"v{226+qb}"
def O(db, qb, r=None):
    b = (db * 4 + qb) * 4
    return f"a[{b}:{b+3}]" if r is None else f"a{b+r}"
def KF(f):
    b = 128 + f * 4
    return f"a[{b}:{b+3}]"
def VF(db, u=None):
    b = 160 + db * 4
    if u is None: return f"a[{b}:{b+3}]"
    return f"a[{b+2*u}:{b+2*u+1}]"

SRD_K = "s[8:11]"; SRD_V = "s[12:15]"; SRD_K0 = "s[16:19]"; SRD_WS = "s[20:23]"
S_OFF = "s24"; S_WB = "s25"; S_CNT = "s26"
SRD_WQ = "s[36:39]"; SRD_G = "s[40:43]"; SRD_U = "s[44:47]"
S_RD = "s48"; S_DMA = "s49"; S_OX = "s50"; S_OWQ = "s51"; S_OGU = "s52"
S_MX = "s54"; S_MWQ = "s55"; S_MG = "s56"; S_MU = "s57"
H = 64

def k_read(half, f):
    tile = half >> 1; hb = half & 1
    slot = (tile + 3) & 3
    kb, ds = f >> 2, f & 3
    return Inst(f"ds_read_b128 {KF(f)}, {VKA(ds)} offset:{slot*16384 + (32*hb+16*kb)*256}")
def v_reads(half, db):
    tile = half >> 1; hb = half & 1
    slot = tile & 3
    return [Inst(f"ds_read_b64_tr_b16 {VF(db,u)}, {VVA(db)} offset:{slot*16384 + (32*hb+16*u)*256}") for u in range(2)]

def dma_k(slot, srd, soff):
    r = [[Inst(f"s_add_u32 m0, {S_WB}, {slot*16384}"), Inst(f"buffer_load_dwordx4 {VOFFK(0)}, {srd}, {soff} offen lds")]]
    for ii in range(1, 4):
        r.append([Inst(f"buffer_load_dwordx4 {VOFFK(ii)}, {srd}, {soff} offen offset:{ii*1024} lds")])
    return r
def dma_v(slot, soff):
    r = [[Inst(f"s_add_u32 m0, {S_WB}, {65536+slot*16384}"), Inst(f"buffer_load_dwordx4 {VOFFV(0)}, {SRD_V}, {soff} offen lds")]]
    for ii in range(1, 4):
        r.append([Inst(f"buffer_load_dwordx4 {VOFFV(ii&1)}, {SRD_V}, {soff} offen offset:{ii*1024} lds")])
    return r
def dma_list(T):
    return dma_k(T & 3, SRD_K, S_OFF) + dma_v(T & 3, S_OFF)

def emit_phase(p, opts, carry):
    do_qk = (p + 1) < H
    do_pv = (p - 1) >= 0
    do_sm = 0 <= p < H
    NG = 64
    gaps = [[] for _ in range(NG + 2)]
    pre = [[] for _ in range(NG + 2)]
    mem = [[] for _ in range(NG + 2)]
    sb = p & 1
    if do_sm:
        for e in range(32):
            kb, qb, r = e >> 4, (e >> 2) & 3, e & 3
            gaps[2 * e].append(Inst(f"v_exp_f32 {S(sb,kb,qb,r)}, {S(sb,kb,qb,r)}"))
            gaps[2 * e + 1].append(Inst(f"v_add_f32 {L(qb)}, {L(qb)}, {S(sb,kb,qb,r)}"))
            if e & 1:
                gaps[2 * e + 3].append(Inst(f"v_cvt_pk_bf16_f32 {P(sb,qb,kb*2+(r>>1))}, {S(sb,kb,qb,r-1)}, {S(sb,kb,qb,r)}"))
    for i, c in enumerate(carry): gaps[1].append(c)
    newcarry = gaps[NG] + gaps[NG + 1]
    for u in range(8):
        pp, uu = (p, u + 4) if u < 4 else (p + 1, u - 4)
        if 0 <= pp - 1 < H:
            vr = v_reads(pp - 1, uu)
            mem[8 * u + 3].append(vr[0]); mem[8 * u + 7].append(vr[1])
    kpos = [1, 5, 13, 21]
    for j in range(4):
        if 0 <= p + 1 < H: mem[kpos[j]].append(k_read(p + 1, 4 + j))
        if 0 <= p + 2 < H: mem[32 + kpos[j]].append(k_read(p + 2, j))
    if p % 2 == 0 and p >= 0:
        T = p // 2
        if T < 32:
            nvm = 8 if T + 1 < 32 else 0
            if T + 1 == 31: nvm = 4
            nvm += opts.get("vmadj", {}).get(T, 0)
            if opts.get("kvtouch") and 1 <= T <= 28: nvm += 1
            if opts.get("kvtouch") and p <= 56:
                mem[34].append(Inst(f"buffer_load_dword v{248 + (T & 3)}, v243, s[56:59], {S_OFF} offen"))
            pre[32].append(Inst(f"s_waitcnt vmcnt({nvm})"))
            pre[32].append(Inst("s_barrier"))
    for gp, lst in opts.get("extra", {}).get(p, []):
        for ins in lst:
            (mem if ins.kind in ("vmem", "dma", "lds") else gaps)[gp].append(ins)
    if p % 2 == 0:
        T = p // 2; slots = [(38, 0), (46, 1), (54, 2)]
    else:
        T = (p - 1) // 2; slots = [(6, 3), (14, 4), (22, 5), (30, 6), (38, 7)]
    if p >= 0 and T + 2 <= 31:
        dl = dma_list(T + 2)
        for gp, idx in slots:
            if T + 2 == 31 and idx < 4: continue
            d = dl[idx]
            gaps[gp - 1] = gaps[gp - 1] + d[:-1]
            mem[gp] += d[-1:]
        if p % 2 == 1:
            gaps[47].append(Inst(f"s_add_u32 {S_OFF}, {S_OFF}, 16384"))
    out = []
    for u in range(8):
        mf = []
        kb, qb = u >> 2, u & 3
        for ds in range(4):
            if do_qk:
                c = NEGM(qb) if ds == 0 else S(sb ^ 1, kb, qb)
                if p == -1 and ds == 0: c = "0"
                mf.append(Inst(f"v_mfma_f32_16x16x32_bf16 {S(sb^1,kb,qb)}, {KF(kb*4+ds)}, {Q(qb,ds)}, {c}"))
            else: mf.append(None)
        for q2 in range(4):
            if do_pv:
                mf.append(Inst(f"v_mfma_f32_16x16x32_bf16 {O(u,q2)}, {VF(u)}, {P(sb^1,q2)}, {O(u,q2)}"))
            else: mf.append(None)
        if u % 4 == 0 and do_qk:
            pre[8 * u].insert(0, Hint(*[KF(kb * 4 + ds) for ds in range(4)]))
        if u % 2 == 0 and do_pv:
            pre[8 * u + (0 if u % 4 == 0 else 4)].insert(0, Hint(VF(u), VF(u + 1)))
        for j in range(8):
            k = 8 * u + j
            out += pre[k]
            if mf[j] is not None: out.append(mf[j])
            out += mem[k]
            out += gaps[k]
    return out, newcarry

def QACC(cb, tb, r=None):
    b = 16 + (cb * 4 + tb) * 4
    return f"v[{b}:{b+3}]" if r is None else f"v{b+r}"
def GACC(cb, tb, r=None):
    b = (cb * 4 + tb) * 4
    return f"a[{b}:{b+3}]" if r is None else f"a{b+r}"
def UACC(cb, tb, r=None):
    b = 64 + (cb * 4 + tb) * 4
    return f"a[{b}:{b+3}]" if r is None else f"a{b+r}"
def AF(cb, u=None):
    b = 128 + cb * 4
    if u is None: return f"a[{b}:{b+3}]"
    return f"a[{b+2*u}:{b+2*u+1}]"
def BF(par, tb):
    b = 144 + par * 16 + tb * 4
    return f"v[{b}:{b+3}]"
VA_Q = lambda ds: f"v{176+ds}"
VA_G = lambda cb: f"v{180+cb}"
VA_B = "v184"
VB_Q = lambda ds: f"v{186+ds}"
VB_G = lambda cb: f"v{190+cb}"
VB_B = "v194"
VO_X = "v196"; VO_WQ = lambda ii: f"v{197+ii}"; VO_G = "v199"

def a_reads(cb):
    if cb < 8:
        ds, h = cb >> 1, cb & 1
        return [Inst(f"ds_read_b64_tr_b16 {AF(cb,u)}, {VA_Q(ds)} offset:{16384 + 8*h + 1024*u}") for u in range(2)]
    else:
        mat, c2 = (cb - 8) >> 2, (cb - 8) & 3
        return [Inst(f"ds_read_b64_tr_b16 {AF(cb,u)}, {VA_G(c2)} offset:{24576 + 4096*mat + 512*u}") for u in range(2)]
def b_read(par, tb):
    return Inst(f"ds_read_b128 {BF(par,tb)}, {VA_B} offset:{tb*1024}")
def addr_update():
    r = []
    for ds in range(4): r.append(Inst(f"v_add_u32 {VA_Q(ds)}, {S_RD}, {VB_Q(ds)}"))
    for cb in range(4): r.append(Inst(f"v_add_u32 {VA_G(cb)}, {S_RD}, {VB_G(cb)}"))
    r.append(Inst(f"v_add_u32 {VA_B}, {S_RD}, {VB_B}"))
    return r
def gemm_dma():
    r = []
    r.append([Inst(f"s_add_u32 m0, {S_DMA}, {S_MX}"), Inst(f"buffer_load_dwordx4 {VO_X}, {SRD_WS}, {S_OX} offen lds")])
    for ii in range(1, 4):
        r.append([Inst(f"buffer_load_dwordx4 {VO_X}, {SRD_WS}, {S_OX} offen offset:{ii*1024} lds")])
    r.append([Inst(f"s_add_u32 m0, {S_DMA}, {S_MWQ}"), Inst(f"buffer_load_dwordx4 {VO_WQ(0)}, {SRD_WQ}, {S_OWQ} offen lds")])
    r.append([Inst(f"buffer_load_dwordx4 {VO_WQ(1)}, {SRD_WQ}, {S_OWQ} offen offset:1024 lds")])
    r.append([Inst(f"s_add_u32 m0, {S_DMA}, {S_MG}"), Inst(f"buffer_load_dwordx4 {VO_G}, {SRD_G}, {S_OGU} offen lds")])
    r.append([Inst(f"s_add_u32 m0, {S_DMA}, {S_MU}"), Inst(f"buffer_load_dwordx4 {VO_G}, {SRD_U}, {S_OGU} offen lds")])
    adv = [Inst(f"s_add_u32 {S_OX}, {S_OX}, 16384"), Inst(f"s_add_u32 {S_OWQ}, {S_OWQ}, {32*8192}"),
           Inst(f"s_add_u32 {S_OGU}, {S_OGU}, {32*3584}"),
           Inst(f"s_add_u32 {S_DMA}, {S_DMA}, 32768"), Inst(f"s_and_b32 {S_DMA}, {S_DMA}, 0x1ffff")]
    return r, adv

def gemm_period(par, dma, nvm, read_next=True, extra=()):
    NG = 64
    pre = [[] for _ in range(NG + 1)]; mem = [[] for _ in range(NG + 1)]; gaps = [[] for _ in range(NG + 1)]
    if nvm is not None: pre[0].append(Inst(f"s_waitcnt vmcnt({nvm})"))
    pre[0].append(Inst("s_barrier"))
    if read_next:
        gaps[0] += [Inst(f"s_add_u32 {S_RD}, {S_RD}, 32768"), Inst(f"s_and_b32 {S_RD}, {S_RD}, 0x1ffff")]
        au = addr_update()
        gaps[1] += au[:3]; gaps[2] += au[3:6]; gaps[3] += au[6:]
        for cb in range(16):
            rd = a_reads(cb)
            if cb < 15:
                mem[4 * cb + 4].append(rd[0]); mem[4 * cb + 5].append(rd[1])
            else:
                mem[63].append(rd[0]); mem[63].append(rd[1])
        for tb in range(4):
            mem[6 + 4 * tb].append(b_read(par ^ 1, tb))
    groups, adv = dma
    pos = [7, 11, 15, 19, 23, 27, 31, 35]
    for gp, d in zip(pos, groups):
        gaps[gp - 1] += d[:-1]
        mem[gp] += d[-1:]
    for i, a in enumerate(adv): gaps[37 + i].append(a)
    for gp, lst in extra:
        for ins in lst:
            (mem if ins.kind in ("vmem", "dma", "lds") else gaps)[gp].append(ins)
    out = []
    for cb in range(16):
        if cb % 4 == 0:
            regs = [AF(c) for c in range(cb, cb + 4)]
            if cb == 0: regs += [BF(par, t) for t in range(4)]
            pre[4 * cb].insert(0, Hint(*regs))
        for tb in range(4):
            k = 4 * cb + tb
            if cb < 8: d = QACC(cb, tb)
            elif cb < 12: d = GACC(cb - 8, tb)
            else: d = UACC(cb - 12, tb)
            out += pre[k]
            out.append(Inst(f"v_mfma_f32_16x16x32_bf16 {d}, {AF(cb)}, {BF(par,tb)}, {d}"))
            out += mem[k]; out += gaps[k]
    return out

def stamp(pr, opts, idx):
    if opts.get("time"):
        pr(f"s_memrealtime s[{60+2*idx}:{61+2*idx}]")

def gen_k2(opts):
    pr = Prog()
    pr(f"""
    s_cmp_ge_u32 s2, 256
    s_cbranch_scc1 K2_end
    """)
    stamp(pr, opts, 0)
    pr(f"""
    s_load_dwordx4 s[28:31], s[0:1], 8
    s_load_dwordx2 s[32:33], s[0:1], 24
    s_load_dwordx4 s[40:43], s[0:1], 48
    s_load_dwordx2 s[34:35], s[0:1], 88
    v_and_b32 v1, 63, v0
    v_lshrrev_b32 v2, 6, v0
    s_nop 0
    v_readfirstlane_b32 s3, v2
    s_and_b32 s4, s2, 7
    s_lshl_b32 s4, s4, 2
    s_lshr_b32 s5, s2, 3
    s_and_b32 s6, s5, 3
    s_add_u32 s4, s4, s6
    s_lshr_b32 s5, s2, 5
    s_lshl_b32 {S_WB}, s3, 12
    s_waitcnt lgkmcnt(0)
    s_lshl_b32 s6, s4, 19
    s_add_u32 s16, s28, s6
    s_addc_u32 s17, s29, 0
    s_and_b32 s17, s17, 0xffff
    s_mov_b32 s18, 524288
    s_mov_b32 s19, 0x20000
    s_add_u32 s8, s16, 16384
    s_addc_u32 s9, s17, 0
    s_mov_b32 s10, {524288-16384}
    s_mov_b32 s11, 0x20000
    s_add_u32 s12, s30, s6
    s_addc_u32 s13, s31, 0
    s_and_b32 s13, s13, 0xffff
    s_mov_b32 s14, 524288
    s_mov_b32 s15, 0x20000
    s_mov_b32 s20, s34
    s_and_b32 s21, s35, 0xffff
    s_mov_b32 s22, 0x10000000
    s_mov_b32 s23, 0x20000
    s_mov_b32 s36, s32
    s_and_b32 s37, s33, 0xffff
    s_mov_b32 s38, {512*8192}
    s_mov_b32 s39, 0x20000
    s_mov_b32 s44, s42
    s_and_b32 s45, s43, 0xffff
    s_and_b32 s41, s41, 0xffff
    s_cmp_lt_u32 s4, 28
    s_cselect_b32 s42, {512*3584}, 0
    s_mov_b32 s46, s42
    s_mov_b32 s43, 0x20000
    s_mov_b32 s47, 0x20000
    s_mov_b32 {S_DMA}, 0
    s_mov_b32 {S_RD}, 0
    s_lshl_b32 {S_OX}, s5, 18
    s_add_u32 {S_OX}, {S_OX}, {WS_XN}
    s_lshl_b32 {S_OWQ}, s4, 8
    s_lshl_b32 {S_OGU}, s4, 7
    s_mov_b32 {S_MX}, {S_WB}
    s_lshl_b32 s6, s3, 11
    s_add_u32 {S_MWQ}, s6, 16384
    s_lshl_b32 s6, s3, 10
    s_add_u32 {S_MG}, s6, 24576
    s_add_u32 {S_MU}, s6, 28672
    """)
    pr(f"""
    v_lshlrev_b32 {VO_X}, 4, v1
    v_add_u32 {VO_X}, {S_WB}, {VO_X}
    v_lshrrev_b32 v2, 4, v1
    v_and_b32 v3, 15, v1
    v_lshlrev_b32 v4, 2, v2
    v_xor_b32 v4, v4, v3
    v_lshlrev_b32 v4, 4, v4
    s_lshl_b32 s6, s3, 3
    v_add_u32 v5, s6, v2
    v_lshlrev_b32 v5, 13, v5
    v_add_u32 {VO_WQ(0)}, v5, v4
    v_add_u32 {VO_WQ(1)}, {4*8192-1024}, {VO_WQ(0)}
    v_lshrrev_b32 v2, 3, v1
    v_and_b32 v3, 7, v1
    v_bfe_u32 v4, v1, 4, 1
    s_and_b32 s7, s3, 1
    s_lshl_b32 s7, s7, 1
    v_or_b32 v4, s7, v4
    v_lshlrev_b32 v4, 1, v4
    v_xor_b32 v4, v4, v3
    v_add_u32 v5, s6, v2
    s_movk_i32 s7, 3584
    v_mul_lo_u32 v5, v5, s7
    v_lshl_add_u32 {VO_G}, v4, 4, v5
    """)
    for c in range(3):
        groups, adv = gemm_dma()
        for d in groups:
            pr.extend(d[:-1])
            if len(d) > 1: pr("s_nop 0")
            pr.extend(d[-1:])
        pr.extend(adv)
    pr(f"""
    v_bfe_u32 v2, v1, 2, 2
    v_and_b32 v3, 3, v1
    v_lshrrev_b32 v4, 4, v1
    v_lshl_add_u32 v5, v4, 3, v2
    v_lshlrev_b32 v6, 8, v5
    v_lshlrev_b32 v7, 2, v2
    """)
    for ds in range(4):
        pr(f"""
        v_add_u32 v8, {4*ds}, v3
        v_xor_b32 v8, v8, v7
        v_lshl_add_u32 {VB_Q(ds)}, v8, 4, v6
        """)
    pr(f"""
    v_lshlrev_b32 v6, 7, v5
    v_and_b32 v7, 1, v3
    v_lshl_add_u32 v6, v7, 3, v6
    v_bfe_u32 v7, v1, 3, 1
    v_and_b32 v8, 1, v4
    v_lshl_or_b32 v7, v8, 1, v7
    v_lshlrev_b32 v7, 1, v7
    v_lshrrev_b32 v9, 1, v3
    """)
    for cb in range(4):
        pr(f"""
        v_add_u32 v8, {2*cb}, v9
        v_xor_b32 v8, v8, v7
        v_lshl_add_u32 {VB_G(cb)}, v8, 4, v6
        """)
    pr(f"""
    v_and_b32 v5, 15, v1
    v_lshlrev_b32 v6, 6, v5
    v_add_u32 v6, {S_WB}, v6
    v_and_b32 v7, 1, v2
    v_lshlrev_b32 v7, 1, v7
    v_lshrrev_b32 v8, 1, v2
    v_mul_u32_u24 v8, 3, v8
    v_xor_b32 v7, v7, v8
    v_xor_b32 v7, v7, v4
    v_lshl_add_u32 {VB_B}, v7, 4, v6
    """)
    pr.extend(addr_update())
    pr(f"""
    v_lshrrev_b32 v2, 4, v1
    v_and_b32 v3, 15, v1
    v_lshlrev_b32 v4, 8, v2
    v_add_u32 v4, {S_WB}, v4
    """)
    for ii in range(4):
        pr(f"""
        v_add_u32 v5, {4*ii}, v2
        v_xor_b32 v5, v5, v3
        v_lshl_add_u32 {VOFFK(ii)}, v5, 4, v4
        """)
    for par in range(2):
        pr(f"""
        v_add_u32 v5, {4*par}, v2
        v_lshlrev_b32 v5, 1, v5
        v_xor_b32 v5, v5, v3
        v_lshl_add_u32 {VOFFV(par)}, v5, 4, v4
        """)
    pr(f"""
    v_and_b32 v2, 15, v1
    v_lshrrev_b32 v3, 4, v1
    v_lshlrev_b32 v5, 8, v2
    """)
    for ds in range(4):
        pr(f"""
        v_add_u32 v6, {4*ds}, v3
        v_xor_b32 v6, v6, v2
        v_lshl_add_u32 {VKA(ds)}, v6, 4, v5
        """)
    pr(f"""
    v_bfe_u32 v2, v1, 2, 2
    v_and_b32 v3, 3, v1
    v_lshrrev_b32 v4, 4, v1
    v_lshl_add_u32 v6, v4, 2, v2
    v_and_b32 v8, 7, v6
    v_lshlrev_b32 v8, 1, v8
    v_lshlrev_b32 v6, 8, v6
    v_add_u32 v6, 65536, v6
    v_and_b32 v7, 1, v3
    v_lshl_add_u32 v6, v7, 3, v6
    v_lshrrev_b32 v7, 1, v3
    """)
    for db in range(8):
        pr(f"""
        v_add_u32 v9, {2*db}, v7
        v_xor_b32 v9, v9, v8
        v_lshl_add_u32 {VVA(db)}, v9, 4, v6
        """)
    for i in range(128): pr(f"v_mov_b32 v{16+i}, 0")
    for i in range(128): pr(f"v_accvgpr_write_b32 a{i}, 0")
    pr("s_waitcnt vmcnt(16)\ns_barrier")
    stamp(pr, opts, 1)
    for cb in range(16): pr.extend(a_reads(cb))
    for tb in range(4): pr.add(b_read(0, tb))
    pr(f"s_mov_b32 {S_CNT}, 6")
    seg_a = pr.insts
    body = gemm_period(0, gemm_dma(), 8) + gemm_period(1, gemm_dma(), 8)
    body += [Inst(f"s_sub_u32 {S_CNT}, {S_CNT}, 1"), Inst(f"s_cmp_lg_u32 {S_CNT}, 0"), Inst("s_cbranch_scc1 K2_gloop")]
    p2 = Prog()
    p2.extend(gemm_period(0, gemm_dma(), 8))
    p2(f"s_mov_b32 s6, 0\ns_mov_b32 s7, 16384")
    p2.extend(gemm_period(1, (dma_k(0, SRD_K, "s6") + dma_k(1, SRD_K, "s7"), []), 8))
    p2.extend(gemm_period(0, (dma_k(3, SRD_K0, "0"), []), 8))
    p2.extend(gemm_period(1, (dma_v(0, "s6") + dma_v(1, "s7"), []), None, read_next=False))
    stamp(p2, opts, 2)
    p2(f"s_mov_b32 s6, {f32hex(QSCALE)}")
    for tb in range(4):
        for ds in range(4):
            for h in range(2):
                cb = 2 * ds + h
                for i in range(2):
                    a, b = QACC(cb, tb, 2 * i), QACC(cb, tb, 2 * i + 1)
                    p2(f"v_mul_f32 {a}, s6, {a}\nv_mul_f32 {b}, s6, {b}")
            for h in range(2):
                cb = 2 * ds + h
                for i in range(2):
                    p2(f"v_cvt_pk_bf16_f32 v{Qb(tb,ds)+2*h+i}, {QACC(cb,tb,2*i)}, {QACC(cb,tb,2*i+1)}")
    p2("s_cmp_ge_u32 s4, 28\ns_cbranch_scc1 K2_noh")
    p2(f"""
    s_lshl_b32 s6, s5, 1
    s_lshr_b32 s7, s3, 1
    s_add_u32 s6, s6, s7
    s_mul_i32 s6, s6, 92
    s_add_u32 s6, s6, s4
    s_add_u32 s6, s6, 64
    s_lshl_b32 s6, s6, 14
    s_and_b32 s7, s3, 1
    s_lshl_b32 s7, s7, 13
    s_add_u32 s6, s6, s7
    s_add_u32 s6, s6, {WS_ACT}
    s_add_u32 s7, s6, 4096
    v_and_b32 v2, 15, v1
    v_lshrrev_b32 v3, 4, v1
    v_bfe_u32 v4, v1, 1, 3
    v_xor_b32 v4, v4, v3
    v_lshlrev_b32 v4, 4, v4
    v_lshl_add_u32 v2, v2, 7, v4
    v_xor_b32 v3, 64, v2
    s_mov_b32 s27, {f32hex(-LOG2E)}
    """)
    for tb in range(4):
        for e in range(2):
            t0 = 16 + (e) * 32
            for hh in range(2):
                cb = 2 * e + hh
                for r in range(4):
                    j = hh * 4 + r
                    p2(f"v_accvgpr_read_b32 v{t0+j}, {GACC(cb,tb,r)}")
                    p2(f"v_accvgpr_read_b32 v{t0+8+j}, {UACC(cb,tb,r)}")
            for j in range(8): p2(f"v_mul_f32 v{t0+16+j}, s27, v{t0+j}")
            for j in range(8): p2(f"v_exp_f32 v{t0+16+j}, v{t0+16+j}")
            for j in range(8): p2(f"v_mul_f32 v{t0+j}, v{t0+j}, v{t0+8+j}")
            for j in range(8): p2(f"v_add_f32 v{t0+16+j}, 1.0, v{t0+16+j}")
            for j in range(8): p2(f"v_rcp_f32 v{t0+16+j}, v{t0+16+j}")
            p2("s_nop 0")
            for j in range(8): p2(f"v_mul_f32 v{t0+j}, v{t0+j}, v{t0+16+j}")
            for i in range(4): p2(f"v_cvt_pk_bf16_f32 v{t0+24+i}, v{t0+2*i}, v{t0+2*i+1}")
            p2(f"buffer_store_dwordx4 v[{t0+24}:{t0+27}], v{2+e}, {SRD_WS}, s{6+(tb>>1)} offen offset:{(tb&1)*2048}")
    p2("K2_noh:")
    for i in range(128): p2(f"v_accvgpr_write_b32 a{i}, 0")
    for qb in range(4): p2(f"v_mov_b32 {L(qb)}, 0")
    p2(f"s_mov_b32 {S_OFF}, 32768")
    p2("s_waitcnt vmcnt(0)\ns_barrier")
    stamp(p2, opts, 3)
    for f in range(4): p2.add(k_read(0, f))
    ph, carry = emit_phase(-1, opts, [])
    p2.extend(ph)
    for qb in range(4):
        m = f"v{232+qb}"
        p2(f"v_max3_f32 {m}, {S(0,0,qb,0)}, {S(0,0,qb,1)}, {S(0,0,qb,2)}")
        p2(f"v_max3_f32 {m}, {m}, {S(0,0,qb,3)}, {S(0,1,qb,0)}")
        p2(f"v_max3_f32 {m}, {m}, {S(0,1,qb,1)}, {S(0,1,qb,2)}")
        p2(f"v_max_f32 {m}, {m}, {S(0,1,qb,3)}")
        p2(f"v_mov_b32 v236, {m}")
        p2(f"v_permlane32_swap_b32 v236, {m}")
        p2(f"v_max_f32 {m}, {m}, v236")
        p2(f"v_mov_b32 v236, {m}")
        p2(f"v_permlane16_swap_b32 v236, {m}")
        p2(f"v_max_f32 {m}, {m}, v236")
        for r in range(4): p2(f"v_sub_f32 {NEGM(qb,r)}, 0, {m}")
        for kb in range(2):
            for r in range(4): p2(f"v_sub_f32 {S(0,kb,qb,r)}, {S(0,kb,qb,r)}, {m}")
    ph, carry = emit_phase(0, opts, carry)
    p2.extend(ph)
    p2(f"s_mov_b32 {S_CNT}, 7")
    abody = []
    c2 = carry
    for p in range(1, 9):
        ph, c2 = emit_phase(p, opts, c2)
        abody += ph
    abody += [Inst(f"s_sub_u32 {S_CNT}, {S_CNT}, 1"), Inst(f"s_cmp_lg_u32 {S_CNT}, 0"), Inst("s_cbranch_scc1 K2_aloop")]
    tail = []
    c3 = c2
    for p in range(57, 65):
        ph, c3 = emit_phase(p, opts, c3)
        tail += ph
    tail += c3
    post = Prog()
    stamp(post, opts, 4)
    for qb in range(4):
        post(f"""
        v_mov_b32 v236, {L(qb)}
        v_permlane32_swap_b32 v236, {L(qb)}
        v_add_f32 {L(qb)}, {L(qb)}, v236
        v_mov_b32 v236, {L(qb)}
        v_permlane16_swap_b32 v236, {L(qb)}
        v_add_f32 {L(qb)}, {L(qb)}, v236
        v_rcp_f32 {L(qb)}, {L(qb)}
        """)
    post(f"""
    s_lshl_b32 s6, s5, 1
    s_lshr_b32 s7, s3, 1
    s_add_u32 s6, s6, s7
    s_mul_i32 s6, s6, 92
    s_lshl_b32 s7, s4, 1
    s_add_u32 s6, s6, s7
    s_lshl_b32 s6, s6, 14
    s_and_b32 s7, s3, 1
    s_lshl_b32 s7, s7, 13
    s_add_u32 s6, s6, s7
    s_add_u32 s28, s6, {WS_ACT}
    s_add_u32 s29, s28, 4096
    s_add_u32 s30, s28, 16384
    s_add_u32 s31, s28, {16384+4096}
    v_and_b32 v2, 15, v1
    v_lshrrev_b32 v3, 4, v1
    v_bfe_u32 v4, v1, 1, 3
    v_xor_b32 v4, v4, v3
    v_lshlrev_b32 v4, 4, v4
    v_lshl_add_u32 v2, v2, 7, v4
    v_xor_b32 v3, 64, v2
    """)
    for qb in range(4):
        for e in range(4):
            t0 = 16 + (e & 1) * 16
            for hh in range(2):
                for r in range(4):
                    post(f"v_accvgpr_read_b32 v{t0+hh*4+r}, {O(2*e+hh,qb,r)}")
            for j in range(8): post(f"v_mul_f32 v{t0+j}, v{t0+j}, {L(qb)}")
            for i in range(4): post(f"v_cvt_pk_bf16_f32 v{t0+8+i}, v{t0+2*i}, v{t0+2*i+1}")
            post(f"buffer_store_dwordx4 v[{t0+8}:{t0+11}], v{2+(e&1)}, {SRD_WS}, s{28+(qb>>1)+2*(e>>1)} offen offset:{(qb&1)*2048}")
    if opts.get("time"):
        post("s_waitcnt vmcnt(0)")
        stamp(post, opts, 5)
        post(f"""
        s_waitcnt lgkmcnt(0)
        s_lshl_b32 s6, s2, 2
        s_add_u32 s6, s6, s3
        s_lshl_b32 s6, s6, 5
        s_add_u32 s6, s6, {WS_TIME}
        v_mov_b32 v3, s6
        """)
        for i in range(6):
            post(f"v_mov_b32 v2, s{60+2*i}\nbuffer_store_dword v2, v3, {SRD_WS}, 0 offen offset:{4*i}")
    post("K2_end:\ns_endpgm")

    a2, st = auto_wait_linear(seg_a)
    a2 = check_hazards(merge_adjacent_waits(a2), fix=True)
    b2, st = auto_wait_loop(body, st)
    b2 = merge_adjacent_waits(b2)
    q2, st = auto_wait_linear(p2.insts, st)
    q2 = check_hazards(b2[-40:] + merge_adjacent_waits(q2), fix=True)[40:]
    ab2, st = auto_wait_loop(abody, st)
    ab2 = merge_adjacent_waits(ab2)
    t2, st = auto_wait_linear(tail, st)
    t2 = check_hazards(merge_adjacent_waits(t2), fix=True)
    po2, _ = auto_wait_linear(post.insts, st)
    po2 = check_hazards([Inst("s_nop 15")] + merge_adjacent_waits(po2), fix=True)
    for nm, seq in (("gloop", a2[-60:] + b2 + b2 + q2[:80]), ("aloop", q2[-60:] + ab2 + ab2 + t2 + po2[:40])):
        for p_ in check_hazards(seq): print("HAZARD", nm, p_, file=sys.stderr)
    full = a2 + [Inst("K2_gloop:")] + b2 + q2 + [Inst("K2_aloop:")] + ab2 + t2 + po2
    return full

def gen_k3(opts):
    NST = 5
    RING = NST * 32768
    ACC = lambda st_, cb, tb, r=None: (f"a[{st_*64+(cb*4+tb)*4}:{st_*64+(cb*4+tb)*4+3}]" if r is None else f"a{st_*64+(cb*4+tb)*4+r}")
    def AF3(s, cb, u=None):
        b = 16 + (s * 4 + cb) * 4
        return f"v[{b}:{b+3}]" if u is None else f"v[{b+2*u}:{b+2*u+1}]"
    def BF3(s, tb):
        b = 48 + (s * 4 + tb) * 4
        return f"v[{b}:{b+3}]"
    VA = lambda cb: f"v{80+cb}"; VBs = lambda s: f"v{84+s}"
    VAb = lambda cb: f"v{86+cb}"; VBb = lambda s: f"v{90+s}"
    VOW = lambda ii: f"v{92+ii}"; VOA = "v96"
    SRD_W = "s[8:11]"; SRD_WS3 = "s[12:15]"
    S_RD3 = "s16"; S_DMA3 = "s17"; S_GP = "s18"; S_OA = "s19"; S_OW = "s20"; S_MW = "s21"; S_MA = "s22"; S_REM = "s23"
    S_OA2 = "s38"; S_OW2 = "s39"
    def a_rd(s, cb):
        return [Inst(f"ds_read_b64_tr_b16 {AF3(s,cb,u)}, {VA(cb)} offset:{(32*s+16*u)*256}") for u in range(2)]
    def b_rd(s, tb):
        return Inst(f"ds_read_b128 {BF3(s,tb)}, {VBs(s)} offset:{16384 + tb*2048}")
    def addr_upd():
        return [Inst(f"v_add_u32 {VA(cb)}, {S_RD3}, {VAb(cb)}") for cb in range(4)] + [Inst(f"v_add_u32 {VBs(s)}, {S_RD3}, {VBb(s)}") for s in range(2)]
    def ring_adv(s):
        return [Inst(f"s_add_u32 {s}, {s}, 32768"), Inst(f"s_cmp_eq_u32 {s}, {RING}"), Inst(f"s_cselect_b32 {s}, 0, {s}")]
    def dma():
        pre = [Inst(f"s_cmp_lt_u32 {S_GP}, 64"), Inst("s_cselect_b32 s8, s24, s26"), Inst("s_cselect_b32 s9, s25, s27"),
               Inst(f"s_cmp_gt_i32 {S_REM}, 0"), Inst(f"s_cselect_b32 {S_OA2}, {S_OA if not opts.get('k3noa') else '0xf0000000'}, 0xf0000000" if not opts.get('k3noa') else f"s_mov_b32 {S_OA2}, 0xf0000000"),
               Inst(f"s_cselect_b32 {S_OW2}, {S_OW}, 0xf0000000" if not opts.get('k3now') else f"s_mov_b32 {S_OW2}, 0xf0000000")]
        r = []
        r.append([Inst(f"s_add_u32 m0, {S_DMA3}, {S_MW}"), Inst(f"buffer_load_dwordx4 {VOW(0)}, {SRD_W}, {S_OW2} offen lds")])
        for ii in range(1, 4):
            r.append([Inst(f"buffer_load_dwordx4 {VOW(ii)}, {SRD_W}, {S_OW2} offen offset:{ii*1024} lds")])
        r.append([Inst(f"s_add_u32 m0, {S_DMA3}, {S_MA}"), Inst(f"buffer_load_dwordx4 {VOA}, {SRD_WS3}, {S_OA2} offen lds")])
        for ii in range(1, 4):
            r.append([Inst(f"buffer_load_dwordx4 {VOA}, {SRD_WS3}, {S_OA2} offen offset:{ii*1024} lds")])
        adv = [Inst(f"s_add_u32 {S_GP}, {S_GP}, 1"), Inst(f"s_add_u32 {S_OA}, {S_OA}, 16384"), Inst(f"s_add_u32 {S_OW}, {S_OW}, 65536"),
               Inst(f"s_sub_u32 {S_REM}, {S_REM}, 1")] + ring_adv(S_DMA3)
        return pre, r, adv
    def period(accset):
        NG = 32
        pre = [[] for _ in range(NG + 1)]; mem = [[] for _ in range(NG + 1)]; gaps = [[] for _ in range(NG + 1)]
        dpre, groups, adv = dma()
        rd = []
        for cb in range(4): rd += a_rd(1, cb)
        for tb in range(4): rd.append(b_rd(1, tb))
        rd = rd[0:2] + rd[8:12] + rd[2:8]
        for i, x in enumerate(rd): mem[i].append(x)
        for gp, d in zip([3, 6, 9, 12], groups[4:]):
            gaps[gp - 1] += d[:-1]; mem[gp] += d[-1:]
        gaps[12] += adv[:2]; gaps[13] += adv[2:4]; gaps[14] += adv[4:]
        gaps[15] += ring_adv(S_RD3)
        pre[16] += [Inst("s_waitcnt vmcnt(16)"), Inst("s_barrier")]
        au = addr_upd()
        pre[16] = au + pre[16]
        rd = []
        for cb in range(4): rd += a_rd(0, cb)
        for tb in range(4): rd.append(b_rd(0, tb))
        rd = rd[0:2] + rd[8:12] + rd[2:8]
        for i, x in enumerate(rd): mem[16 + i].append(x)
        gaps[16] += dpre[:3]; gaps[17] += dpre[3:]
        for gp, d in zip([19, 22, 25, 28], groups[:4]):
            gaps[gp - 1] += d[:-1]; mem[gp] += d[-1:]
        out = []
        for s in range(2):
            for cb in range(4):
                if cb % 2 == 0:
                    regs = [AF3(s, cb), AF3(s, cb + 1)]
                    if cb == 0: regs += [BF3(s, t) for t in range(4)]
                    pre[16 * s + 4 * cb].append(Hint(*regs))
                for tb in range(4):
                    k = 16 * s + 4 * cb + tb
                    d = ACC(accset, cb, tb)
                    out += pre[k]
                    out.append(Inst(f"v_mfma_f32_16x16x32_bf16 {d}, {AF3(s,cb)}, {BF3(s,tb)}, {d}"))
                    out += mem[k]; out += gaps[k]
        return out
    pr = Prog()
    pr(f"""
    s_cmp_ge_u32 s2, 256
    s_cbranch_scc1 K3_end
    """)
    stamp(pr, opts, 0)
    pr(f"""
    s_load_dwordx2 s[24:25], s[0:1], 32
    s_load_dwordx2 s[26:27], s[0:1], 64
    s_load_dwordx2 s[28:29], s[0:1], 88
    s_load_dwordx2 s[30:31], s[0:1], 0
    s_load_dwordx4 s[32:35], s[0:1], 72
    v_and_b32 v1, 63, v0
    v_lshrrev_b32 v2, 6, v0
    s_nop 0
    v_readfirstlane_b32 s3, v2
    s_and_b32 s4, s2, 3
    s_bfe_u32 s5, s2, 0x10002
    s_lshl_b32 s5, s5, 3
    s_bfe_u32 s6, s2, 0x30003
    s_add_u32 s5, s5, s6
    s_lshr_b32 s6, s2, 6
    s_mul_i32 {S_GP}, s4, 23
    s_waitcnt lgkmcnt(0)
    s_and_b32 s25, s25, 0xffff
    s_sub_u32 s26, s26, {64*65536}
    s_subb_u32 s27, s27, 0
    s_and_b32 s27, s27, 0xffff
    s_mov_b32 s8, s24
    s_mov_b32 s9, s25
    s_mov_b32 s10, {92*65536}
    s_mov_b32 s11, 0x20000
    s_mov_b32 s12, s28
    s_and_b32 s13, s29, 0xffff
    s_mov_b32 s14, 0x10000000
    s_mov_b32 s15, 0x20000
    s_mov_b32 {S_RD3}, 0
    s_mov_b32 {S_DMA3}, 0
    s_mov_b32 {S_REM}, 23
    s_mul_i32 {S_OA}, s5, 92
    s_add_u32 {S_OA}, {S_OA}, {S_GP}
    s_lshl_b32 {S_OA}, {S_OA}, 14
    s_add_u32 {S_OA}, {S_OA}, {WS_ACT}
    s_lshl_b32 {S_OW}, {S_GP}, 16
    s_lshl_b32 s7, s6, 8
    s_add_u32 {S_OW}, {S_OW}, s7
    s_lshl_b32 {S_MW}, s3, 12
    s_add_u32 {S_MA}, {S_MW}, 16384
    """)
    pr(f"""
    v_lshrrev_b32 v2, 4, v1
    v_and_b32 v3, 15, v1
    s_lshl_b32 s7, s3, 4
    """)
    for ii in range(4):
        pr(f"""
        v_add_u32 v4, {4*(ii&1)}, v2
        v_lshlrev_b32 v4, 1, v4
        v_xor_b32 v4, v4, v3
        v_lshlrev_b32 v4, 4, v4
        v_add_u32 v5, s7, v2
        v_add_u32 v5, {4*ii}, v5
        v_lshl_add_u32 v4, v5, 10, v4
        v_subrev_u32 {VOW(ii)}, {1024*ii}, v4
        """)
    pr(f"""
    v_lshlrev_b32 {VOA}, 4, v1
    v_add_u32 {VOA}, {S_MW}, {VOA}
    """)
    for c in range(4):
        dpre, groups, adv = dma()
        pr.extend(dpre)
        for d in (groups if c < 3 else groups[:4]):
            pr.extend(d[:-1])
            if len(d) > 1: pr("s_nop 0")
            pr.extend(d[-1:])
        if c < 3: pr.extend(adv)
    NPF = 0
    if opts.get("k3pf"):
        NPF = 5
        pr(f"""
        v_lshlrev_b32 v4, 7, v1
        s_lshl_b32 s7, s6, 14
        s_add_u32 s40, {S_OA}, s7
        s_sub_u32 s40, s40, {3*16384}
        """)
        for j in range(3):
            pr(f"""
            s_mul_i32 s41, s3, 3
            s_add_u32 s41, s41, {j}
            s_lshr_b32 s42, s41, 1
            s_lshl_b32 s42, s42, 16
            s_and_b32 s41, s41, 1
            s_lshl_b32 s41, s41, 13
            s_add_u32 s41, s41, s42
            s_add_u32 s41, s41, s40
            buffer_load_dword v{100+j}, v4, {SRD_WS3}, s41 offen
            """)
        pr(f"""
        v_lshrrev_b32 v4, 1, v1
        v_lshlrev_b32 v4, 10, v4
        v_and_b32 v5, 1, v1
        v_lshl_add_u32 v4, v5, 7, v4
        v_add_u32 v5, 32768, v4
        s_and_b32 s7, s5, 7
        s_lshl_b32 s41, s3, 3
        s_add_u32 s7, s7, s41
        s_add_u32 s41, {S_GP}, s7
        s_sub_u32 s41, s41, 3
        s_lshl_b32 s40, s41, 16
        s_lshl_b32 s42, s6, 8
        s_add_u32 s40, s40, s42
        s_cmp_lt_u32 s7, 23
        s_cselect_b32 s40, s40, 0xf0000000
        s_mov_b32 s44, s24
        s_mov_b32 s45, s25
        s_cmp_lt_u32 s41, 64
        s_cselect_b32 s44, s24, s26
        s_cselect_b32 s45, s25, s27
        s_mov_b32 s46, s10
        s_mov_b32 s47, 0x20000
        buffer_load_dword v103, v4, s[44:47], s40 offen
        buffer_load_dword v104, v5, s[44:47], s40 offen
        """)
    pr(f"""
    v_bfe_u32 v2, v1, 2, 2
    v_and_b32 v3, 3, v1
    v_lshrrev_b32 v4, 4, v1
    v_lshl_add_u32 v6, v4, 2, v2
    v_and_b32 v8, 7, v6
    v_lshlrev_b32 v8, 1, v8
    v_lshlrev_b32 v6, 8, v6
    v_and_b32 v7, 1, v3
    v_lshl_add_u32 v6, v7, 3, v6
    v_lshrrev_b32 v7, 1, v3
    s_and_b32 s7, s3, 1
    s_lshl_b32 s7, s7, 3
    v_add_u32 v7, s7, v7
    """)
    for cb in range(4):
        pr(f"""
        v_add_u32 v9, {2*cb}, v7
        v_xor_b32 v9, v9, v8
        v_lshl_add_u32 {VAb(cb)}, v9, 4, v6
        """)
    pr(f"""
    v_and_b32 v5, 15, v1
    v_bfe_u32 v6, v1, 1, 3
    v_xor_b32 v6, v6, v4
    v_lshlrev_b32 v6, 4, v6
    v_lshl_add_u32 v6, v5, 7, v6
    s_lshr_b32 s7, s3, 1
    s_lshl_b32 s7, s7, 13
    v_add_u32 {VBb(0)}, s7, v6
    v_xor_b32 {VBb(1)}, 64, {VBb(0)}
    """)
    pr.extend(addr_upd())
    for i in range(128): pr(f"v_accvgpr_write_b32 a{i}, 0")
    pr(f"""
    s_mov_b32 s36, 23
    s_mov_b32 s37, 0
    s_cmp_eq_u32 s4, 2
    s_cselect_b32 s36, 18, s36
    s_cselect_b32 s37, 5, s37
    s_cmp_eq_u32 s4, 3
    s_cselect_b32 s36, 0, s36
    s_cselect_b32 s37, 23, s37
    s_waitcnt vmcnt({20+NPF})
    s_barrier
    """)
    stamp(pr, opts, 1)
    for cb in range(4): pr.extend(a_rd(0, cb))
    for tb in range(4): pr.add(b_rd(0, tb))
    pr("s_waitcnt lgkmcnt(0)")
    pr("s_cmp_eq_u32 s36, 0\ns_cbranch_scc1 K3_l1pre")
    seg_a = pr.insts
    body0 = period(0) + [Inst("s_sub_u32 s36, s36, 1"), Inst("s_cmp_lg_u32 s36, 0"), Inst("s_cbranch_scc1 K3_loop0")]
    mid = [Inst("K3_l1pre:"), Inst("s_cmp_eq_u32 s37, 0"), Inst("s_cbranch_scc1 K3_post")]
    body1 = period(1) + [Inst("s_sub_u32 s37, s37, 1"), Inst("s_cmp_lg_u32 s37, 0"), Inst("s_cbranch_scc1 K3_loop1")]
    post = Prog()
    post("K3_post:")
    post("s_nop 15")
    stamp(post, opts, 2)
    post(f"""
    s_lshl_b32 s7, s5, 2
    s_add_u32 s7, s7, s6
    s_mul_i32 s40, s7, 5
    s_lshl_b32 s40, s40, 16
    s_add_u32 s40, s40, {WS_SLAB}
    s_lshl_b32 s41, s3, 14
    s_add_u32 s41, s41, s40
    s_lshl_b32 s42, s4, 16
    s_add_u32 s42, s42, s41
    v_lshlrev_b32 v2, 4, v1
    s_cmp_eq_u32 s4, 3
    s_cbranch_scc1 K3_st1
    """)
    for rg in range(16):
        if rg % 4 == 0 and rg: post("s_add_u32 s42, s42, 4096")
        post(f"buffer_store_dwordx4 a[{rg*4}:{rg*4+3}], v2, {SRD_WS3}, s42 offen offset:{(rg%4)*1024} sc0 sc1")
    post(f"""
    K3_st1:
    s_cmp_lt_u32 s4, 2
    s_cbranch_scc1 K3_sync
    s_add_u32 s42, s4, 1
    s_lshl_b32 s42, s42, 16
    s_add_u32 s42, s42, s41
    """)
    for rg in range(16):
        if rg % 4 == 0 and rg: post("s_add_u32 s42, s42, 4096")
        post(f"buffer_store_dwordx4 a[{64+rg*4}:{64+rg*4+3}], v2, {SRD_WS3}, s42 offen offset:{(rg%4)*1024} sc0 sc1")
    post(f"""
    K3_sync:
    s_waitcnt vmcnt(0)
    s_barrier
    s_cmp_lg_u32 s3, 0
    s_cbranch_scc1 K3_wait
    s_load_dwordx2 s[44:45], s[0:1], 80
    s_lshl_b32 s43, s7, 2
    v_mov_b32 v3, s43
    v_mov_b32 v4, 1
    s_waitcnt lgkmcnt(0)
    s_mov_b64 s[46:47], exec
    s_mov_b64 exec, 1
    global_atomic_add v3, v4, s[44:45] sc1
    K3_spin:
    global_load_dword v5, v3, s[44:45] sc0 sc1
    s_waitcnt vmcnt(0)
    v_readfirstlane_b32 s48, v5
    s_cmp_ge_u32 s48, 4
    s_cbranch_scc1 K3_got
    s_sleep 1
    s_branch K3_spin
    K3_got:
    s_mov_b64 exec, s[46:47]
    K3_wait:
    s_barrier
    """)
    stamp(post, opts, 3)
    post(f"""
    s_lshl_b32 s41, s4, 14
    s_add_u32 s41, s41, s40
    s_lshl_b32 s42, s3, 12
    s_add_u32 s41, s41, s42
    """)
    for sl in range(5):
        post(f"s_add_u32 s42, s41, {sl*65536}")
        for tb in range(4):
            b = 16 + (sl * 4 + tb) * 4
            post(f"buffer_load_dwordx4 v[{b}:{b+3}], v2, {SRD_WS3}, s42 offen offset:{tb*1024} sc0 sc1")
    post(f"""
    s_mov_b32 s8, s30
    s_and_b32 s9, s31, 0xffff
    s_mov_b32 s10, {2048*1024}
    s_mov_b32 s11, 0x20000
    s_mov_b32 s48, s32
    s_and_b32 s49, s33, 0xffff
    s_mov_b32 s50, {2048*1024}
    s_mov_b32 s51, 0x20000
    s_lshl_b32 s42, s5, 7
    s_lshr_b32 s43, s4, 1
    s_lshl_b32 s43, s43, 6
    s_add_u32 s42, s42, s43
    s_lshl_b32 s42, s42, 10
    s_lshl_b32 s43, s6, 8
    s_add_u32 s42, s42, s43
    s_and_b32 s43, s4, 1
    s_lshl_b32 s43, s43, 7
    s_add_u32 s42, s42, s43
    s_lshl_b32 s43, s3, 5
    s_add_u32 s42, s42, s43
    v_and_b32 v3, 15, v1
    v_lshrrev_b32 v4, 4, v1
    v_lshlrev_b32 v3, 10, v3
    v_lshl_add_u32 v3, v4, 3, v3
    """)
    for tb in range(4):
        post(f"v_add_u32 v{4+tb}, {tb*16384}, v3")
        post(f"buffer_load_dwordx2 v[{100+2*tb}:{101+2*tb}], v{4+tb}, s[8:11], s42 offen")
    post(f"s_mov_b32 s43, {f32hex(-LOG2E)}")
    for tb in range(4):
        s0 = 16 + tb * 4; s1 = 16 + (4 + tb) * 4; s2 = 16 + (8 + tb) * 4; y0 = 16 + (12 + tb) * 4; y1 = 16 + (16 + tb) * 4
        for r in range(4):
            post(f"v_add_f32 v{s0+r}, v{s0+r}, v{s1+r}")
            post(f"v_add_f32 v{y0+r}, v{y0+r}, v{y1+r}")
        for r in range(4):
            post(f"v_add_f32 v{s0+r}, v{s0+r}, v{s2+r}")
            post(f"v_mul_f32 v{s1+r}, s43, v{y0+r}")
        for r in range(4): post(f"v_exp_f32 v{s1+r}, v{s1+r}")
        post("s_nop 0")
        for r in range(4): post(f"v_add_f32 v{s1+r}, 1.0, v{s1+r}")
        for r in range(4): post(f"v_rcp_f32 v{s1+r}, v{s1+r}")
        post("s_nop 0")
        for r in range(4): post(f"v_mul_f32 v{y0+r}, v{y0+r}, v{s1+r}")
        xb = 100 + 2 * tb
        post(f"v_lshlrev_b32 v{s2}, 16, v{xb}\nv_and_b32 v{s2+1}, 0xffff0000, v{xb}\nv_lshlrev_b32 v{s2+2}, 16, v{xb+1}\nv_and_b32 v{s2+3}, 0xffff0000, v{xb+1}")
        for r in range(4): post(f"v_fma_f32 v{s0+r}, v{s0+r}, v{y0+r}, v{s2+r}")
        post(f"v_cvt_pk_bf16_f32 v{y1}, v{s0}, v{s0+1}\nv_cvt_pk_bf16_f32 v{y1+1}, v{s0+2}, v{s0+3}")
        post(f"buffer_store_dwordx2 v[{y1}:{y1+1}], v{4+tb}, s[48:51], s42 offen")
    if opts.get("time"):
        post("s_waitcnt vmcnt(0)")
        stamp(post, opts, 4)
        post(f"""
        s_waitcnt lgkmcnt(0)
        s_lshl_b32 s6, s2, 2
        s_add_u32 s6, s6, s3
        s_lshl_b32 s6, s6, 5
        s_add_u32 s6, s6, {WS_TIME + 65536}
        v_mov_b32 v3, s6
        """)
        for i in range(5):
            post(f"v_mov_b32 v2, s{60+2*i}\nbuffer_store_dword v2, v3, {SRD_WS3}, 0 offen offset:{4*i}")
    post("K3_end:\ns_endpgm")

    a2, st = auto_wait_linear(seg_a)
    a2 = check_hazards(merge_adjacent_waits(a2), fix=True)
    b0, st0 = auto_wait_loop(body0, st)
    b0 = merge_adjacent_waits(b0)
    b1, st1 = auto_wait_loop(body1, st0)
    b1 = merge_adjacent_waits(b1)
    stp = WaitState(); stp.lg = list(st1.lg); stp.vm = list(st1.vm)
    po, _ = auto_wait_linear([Inst("s_waitcnt lgkmcnt(0)")] + post.insts, stp)
    po = check_hazards(merge_adjacent_waits(po), fix=True)
    for nm, seq in (("l0", a2[-40:] + b0 + b0 + b1 + b1 + po[:30]),):
        for p_ in check_hazards(seq): print("HAZARD K3", nm, p_, file=sys.stderr)
    lab = [i for i in po if i.kind == "label" and i.text == "K3_post:"]
    po = lab + [i for i in po if not (i.kind == "label" and i.text == "K3_post:")]
    return a2 + [Inst("K3_loop0:")] + b0 + mid + [Inst("K3_loop1:")] + b1 + po

def gen(opts):
    hdr = f"""; @launch kernel=ln_kernel grid=(256,1,1) block=(256,1,1) lds=0
; @launch kernel=attn_kernel grid=(256,1,1) block=(256,1,1) lds=131072
; @launch kernel=oproj_kernel grid=(256,1,1) block=(256,1,1) lds=163840
.amdgcn_target "amdgcn-amd-amdhsa--gfx950"
.text
"""
    s = hdr
    s += kernel_text("ln_kernel", gen_k1(opts), 64, 64)
    s += kernel_text("attn_kernel", gen_k2(opts), 512, 256)
    s += kernel_text("oproj_kernel", gen_k3(opts), 256, 128)
    return s

if __name__ == "__main__":
    opts = {}
    for a in sys.argv[2:]:
        k, _, v = a.partition("=")
        opts[k] = int(v) if v else 1
    open(sys.argv[1], "w").write(gen(opts))
```

```python
import sys, math
sys.path.insert(0, "dev")
from asmdsl import *
from gen import *
import gen as G1

KNAME = NAME + "_kernel"
CNT_XN = 0; CNT_O = 64; CNT_SL = 128
SRD_DBG = "s[72:73]"

SLEEP = 4
def poll(pr, label, addr_v, thresh_expr, shift=None):
    pr(f"""
    {label}:
    global_load_dword v5, {addr_v}, {SRD_DBG} sc1
    s_waitcnt vmcnt(0)
    v_readfirstlane_b32 s75, v5
    """)
    if shift is not None:
        pr(f"s_lshr_b32 s75, s75, {shift}\ns_and_b32 s75, s75, 0xff")
    pr(f"""
    s_cmp_ge_u32 s75, {thresh_expr}
    s_cbranch_scc1 {label}_ok
    s_sleep {SLEEP}
    s_branch {label}
    {label}_ok:
    """)

def ln_rows(pr, opts):
    for k, base in enumerate((4, 8)):
        u = 16 + k * 16
        for i in range(4):
            pr(f"v_lshlrev_b32 v{u+2*i}, 16, v{base+i}")
            pr(f"v_and_b32 v{u+2*i+1}, 0xffff0000, v{base+i}")
    R = [(4, 16), (8, 32)]
    def both(fn):
        for base, u in R: fn(base, u)
    sm = lambda u: f"v{u+8}"; tmp = lambda u: f"v{u+9}"; var = lambda u: f"v{u+10}"; d = lambda u: f"v{u+11}"
    both(lambda b, u: pr(f"v_add_f32 {sm(u)}, v{u}, v{u+1}"))
    for i in range(2, 8): both(lambda b, u: pr(f"v_add_f32 {sm(u)}, {sm(u)}, v{u+i}"))
    def red(reg):
        for mod in ("quad_perm:[1,0,3,2]", "quad_perm:[2,3,0,1]", "row_half_mirror", "row_mirror"):
            both(lambda b, u: pr(f"v_add_f32_dpp {reg(u)}, {reg(u)}, {reg(u)} {mod} row_mask:0xf bank_mask:0xf"))
        for sw in ("v_permlane16_swap_b32", "v_permlane32_swap_b32"):
            both(lambda b, u: pr(f"v_mov_b32 {tmp(u)}, {reg(u)}"))
            both(lambda b, u: pr(f"{sw} {tmp(u)}, {reg(u)}"))
            both(lambda b, u: pr(f"v_add_f32 {reg(u)}, {reg(u)}, {tmp(u)}"))
    red(sm)
    both(lambda b, u: pr(f"v_mul_f32 {sm(u)}, {f32hex(1/512)}, {sm(u)}"))
    both(lambda b, u: pr(f"v_sub_f32 {d(u)}, v{u}, {sm(u)}\nv_mul_f32 {var(u)}, {d(u)}, {d(u)}"))
    for i in range(1, 8):
        both(lambda b, u: pr(f"v_sub_f32 {d(u)}, v{u+i}, {sm(u)}\nv_fmac_f32 {var(u)}, {d(u)}, {d(u)}"))
    red(var)
    both(lambda b, u: pr(f"v_mul_f32 {var(u)}, {f32hex(1/512)}, {var(u)}"))
    both(lambda b, u: rbf16(pr, var(u)))
    both(lambda b, u: pr(f"v_add_f32 {var(u)}, {f32hex(1e-5)}, {var(u)}"))
    both(lambda b, u: rbf16(pr, var(u)))
    both(lambda b, u: pr(f"v_sqrt_f32 {var(u)}, {var(u)}"))
    both(lambda b, u: rbf16(pr, sm(u)))
    both(lambda b, u: rbf16(pr, var(u)))
    both(lambda b, u: pr(f"v_rcp_f32 {var(u)}, {var(u)}"))
    for i in range(8): both(lambda b, u: pr(f"v_sub_f32 v{u+i}, v{u+i}, {sm(u)}"))
    for i in range(4): both(lambda b, u: pr(f"v_cvt_pk_bf16_f32 v{b+i}, v{u+2*i}, v{u+2*i+1}"))
    for i in range(4):
        both(lambda b, u: pr(f"v_lshlrev_b32 v{u+2*i}, 16, v{b+i}\nv_and_b32 v{u+2*i+1}, 0xffff0000, v{b+i}"))
    for i in range(8): both(lambda b, u: pr(f"v_mul_f32 v{u+i}, v{u+i}, {var(u)}"))
    for i in range(4): both(lambda b, u: pr(f"v_cvt_pk_bf16_f32 v{b+i}, v{u+2*i}, v{u+2*i+1}"))
    for i in range(4): pr(f"v_permlane32_swap_b32 v{4+i}, v{8+i}")
    pr(f"buffer_store_dwordx4 v[4:7], v3, {SRD_WS}, s18 offen sc1")
    pr(f"s_add_u32 s18, s18, {8*16384}")
    pr(f"buffer_store_dwordx4 v[8:11], v3, {SRD_WS}, s18 offen sc1")

def gemm_dma_split():
    groups, adv = gemm_dma()
    return groups[4:], groups[:4], adv

def gen_fused(opts):
    T = lambda pr, idx: stamp(pr, opts, idx)
    pr = Prog()
    pr(f"""
    s_cmp_ge_u32 s2, 256
    s_cbranch_scc1 K_end
    """)
    T(pr, 0)
    pr(f"""
    s_load_dwordx2 s[76:77], s[0:1], 0
    s_load_dwordx2 s[34:35], s[0:1], 88
    s_load_dwordx4 s[28:31], s[0:1], 8
    s_load_dwordx2 s[32:33], s[0:1], 24
    s_load_dwordx4 s[40:43], s[0:1], 48
    s_load_dwordx2 s[72:73], s[0:1], 80
    v_and_b32 v1, 63, v0
    v_lshrrev_b32 v2, 6, v0
    s_nop 0
    v_readfirstlane_b32 s3, v2
    s_and_b32 s4, s2, 7
    s_lshl_b32 s4, s4, 2
    s_lshr_b32 s5, s2, 3
    s_and_b32 s6, s5, 3
    s_add_u32 s4, s4, s6
    s_lshr_b32 s5, s2, 5
    s_lshl_b32 {S_WB}, s3, 12
    s_lshl_b32 s16, s5, 8
    s_lshl_b32 s17, s4, 3
    s_add_u32 s16, s16, s17
    s_lshl_b32 s17, s3, 1
    s_add_u32 s16, s16, s17
    s_lshl_b32 s17, s16, 10
    v_lshlrev_b32 v2, 4, v1
    s_waitcnt lgkmcnt(0)
    s_mov_b32 s8, s76
    s_and_b32 s9, s77, 0xffff
    s_mov_b32 s10, {2048*1024}
    s_mov_b32 s11, 0x20000
    buffer_load_dwordx4 v[4:7], v2, s[8:11], s17 offen
    buffer_load_dwordx4 v[8:11], v2, s[8:11], s17 offen offset:1024
    s_mov_b32 s20, s34
    s_and_b32 s21, s35, 0xffff
    s_mov_b32 s22, 0x10000000
    s_mov_b32 s23, 0x20000
    s_mov_b32 s36, s32
    s_and_b32 s37, s33, 0xffff
    s_mov_b32 s38, {512*8192}
    s_mov_b32 s39, 0x20000
    s_mov_b32 s44, s42
    s_and_b32 s45, s43, 0xffff
    s_and_b32 s41, s41, 0xffff
    s_cmp_lt_u32 s4, 28
    s_cselect_b32 s42, {512*3584}, 0
    s_mov_b32 s46, s42
    s_mov_b32 s43, 0x20000
    s_mov_b32 s47, 0x20000
    s_mov_b32 {S_DMA}, 0
    s_mov_b32 {S_RD}, 0
    s_lshl_b32 {S_OX}, s5, 18
    s_add_u32 {S_OX}, {S_OX}, {WS_XN}
    s_lshl_b32 {S_OWQ}, s4, 8
    s_lshl_b32 {S_OGU}, s4, 7
    s_mov_b32 {S_MX}, {S_WB}
    s_lshl_b32 s6, s3, 11
    s_add_u32 {S_MWQ}, s6, 16384
    s_lshl_b32 s6, s3, 10
    s_add_u32 {S_MG}, s6, 24576
    s_add_u32 {S_MU}, s6, 28672
    """)
    pr(f"""
    v_lshlrev_b32 {VO_X}, 4, v1
    v_add_u32 {VO_X}, {S_WB}, {VO_X}
    v_lshrrev_b32 v12, 4, v1
    v_and_b32 v13, 15, v1
    v_lshlrev_b32 v14, 2, v12
    v_xor_b32 v14, v14, v13
    v_lshlrev_b32 v14, 4, v14
    s_lshl_b32 s6, s3, 3
    v_add_u32 v15, s6, v12
    v_lshlrev_b32 v15, 13, v15
    v_add_u32 {VO_WQ(0)}, v15, v14
    v_add_u32 {VO_WQ(1)}, {4*8192-1024}, {VO_WQ(0)}
    v_lshrrev_b32 v12, 3, v1
    v_and_b32 v13, 7, v1
    v_bfe_u32 v14, v1, 4, 1
    s_and_b32 s7, s3, 1
    s_lshl_b32 s7, s7, 1
    v_or_b32 v14, s7, v14
    v_lshlrev_b32 v14, 1, v14
    v_xor_b32 v14, v14, v13
    v_add_u32 v15, s6, v12
    s_movk_i32 s7, 3584
    v_mul_lo_u32 v15, v15, s7
    v_lshl_add_u32 {VO_G}, v14, 4, v15
    """)
    pr(f"s_mov_b32 s78, {S_OX}")
    for c in range(3):
        wg_, xg_, adv = gemm_dma_split()
        for d in wg_:
            pr.extend(d[:-1])
            if len(d) > 1: pr("s_nop 0")
            pr.extend(d[-1:])
        pr.extend(adv)
    pr(f"s_mov_b32 {S_OX}, s78")
    pr(f"""
    v_bfe_u32 v3, v1, 2, 3
    v_lshlrev_b32 v3, 14, v3
    v_lshrrev_b32 v12, 5, v1
    v_lshl_add_u32 v3, v12, 6, v3
    v_and_b32 v12, 3, v1
    s_lshr_b32 s18, s16, 8
    s_lshl_b32 s18, s18, 18
    s_and_b32 s19, s16, 255
    s_lshl_b32 s6, s19, 6
    s_add_u32 s18, s18, s6
    s_add_u32 s18, s18, {WS_XN}
    s_lshr_b32 s6, s19, 2
    s_and_b32 s6, s6, 3
    s_and_b32 s7, s6, 1
    s_lshl_b32 s7, s7, 1
    s_lshr_b32 s6, s6, 1
    s_mul_i32 s6, s6, 3
    s_xor_b32 s7, s7, s6
    v_xor_b32 v12, s7, v12
    v_lshl_add_u32 v3, v12, 4, v3
    """)
    ln_rows(pr, opts)
    pr(f"""
    s_lshl_b32 s6, s4, 19
    s_add_u32 s16, s28, s6
    s_addc_u32 s17, s29, 0
    s_and_b32 s17, s17, 0xffff
    s_mov_b32 s18, 524288
    s_mov_b32 s19, 0x20000
    s_add_u32 s8, s16, 16384
    s_addc_u32 s9, s17, 0
    s_mov_b32 s10, {524288-16384}
    s_mov_b32 s11, 0x20000
    s_add_u32 s12, s30, s6
    s_addc_u32 s13, s31, 0
    s_and_b32 s13, s13, 0xffff
    s_mov_b32 s14, 524288
    s_mov_b32 s15, 0x20000
    """)
    pr("s_waitcnt vmcnt(0)\ns_barrier")
    T(pr, 6)
    pr(f"""
    s_cmp_lg_u32 s3, 0
    s_cbranch_scc1 K_xn_skip
    s_and_b32 s6, s5, 3
    s_lshl_b32 s6, s6, 6
    s_lshr_b32 s7, s5, 2
    s_lshl_b32 s7, s7, 2
    s_add_u32 s6, s6, s7
    v_mov_b32 v2, s6
    v_mov_b32 v4, 1
    s_mov_b64 exec, 1
    global_atomic_add v2, v4, {SRD_DBG} sc1
    s_mov_b64 exec, -1
    K_xn_skip:
    """)
    pr(f"""
    v_bfe_u32 v2, v1, 2, 2
    v_and_b32 v3, 3, v1
    v_lshrrev_b32 v4, 4, v1
    v_lshl_add_u32 v5, v4, 3, v2
    v_lshlrev_b32 v6, 8, v5
    v_lshlrev_b32 v7, 2, v2
    """)
    for ds in range(4):
        pr(f"""
        v_add_u32 v8, {4*ds}, v3
        v_xor_b32 v8, v8, v7
        v_lshl_add_u32 {VB_Q(ds)}, v8, 4, v6
        """)
    pr(f"""
    v_lshlrev_b32 v6, 7, v5
    v_and_b32 v7, 1, v3
    v_lshl_add_u32 v6, v7, 3, v6
    v_bfe_u32 v7, v1, 3, 1
    v_and_b32 v8, 1, v4
    v_lshl_or_b32 v7, v8, 1, v7
    v_lshlrev_b32 v7, 1, v7
    v_lshrrev_b32 v9, 1, v3
    """)
    for cb in range(4):
        pr(f"""
        v_add_u32 v8, {2*cb}, v9
        v_xor_b32 v8, v8, v7
        v_lshl_add_u32 {VB_G(cb)}, v8, 4, v6
        """)
    pr(f"""
    v_and_b32 v5, 15, v1
    v_lshlrev_b32 v6, 6, v5
    v_add_u32 v6, {S_WB}, v6
    v_and_b32 v7, 1, v2
    v_lshlrev_b32 v7, 1, v7
    v_lshrrev_b32 v8, 1, v2
    v_mul_u32_u24 v8, 3, v8
    v_xor_b32 v7, v7, v8
    v_xor_b32 v7, v7, v4
    v_lshl_add_u32 {VB_B}, v7, 4, v6
    """)
    pr(f"s_mov_b32 {S_RD}, 0")
    pr.extend(addr_update())
    pr(f"""
    v_lshrrev_b32 v2, 4, v1
    v_and_b32 v3, 15, v1
    v_lshlrev_b32 v4, 8, v2
    v_add_u32 v4, {S_WB}, v4
    """)
    for ii in range(4):
        pr(f"""
        v_add_u32 v5, {4*ii}, v2
        v_xor_b32 v5, v5, v3
        v_lshl_add_u32 {VOFFK(ii)}, v5, 4, v4
        """)
    for par in range(2):
        pr(f"""
        v_add_u32 v5, {4*par}, v2
        v_lshlrev_b32 v5, 1, v5
        v_xor_b32 v5, v5, v3
        v_lshl_add_u32 {VOFFV(par)}, v5, 4, v4
        """)
    pr(f"""
    v_and_b32 v2, 15, v1
    v_lshrrev_b32 v3, 4, v1
    v_lshlrev_b32 v5, 8, v2
    """)
    for ds in range(4):
        pr(f"""
        v_add_u32 v6, {4*ds}, v3
        v_xor_b32 v6, v6, v2
        v_lshl_add_u32 {VKA(ds)}, v6, 4, v5
        """)
    pr(f"""
    v_bfe_u32 v2, v1, 2, 2
    v_and_b32 v3, 3, v1
    v_lshrrev_b32 v4, 4, v1
    v_lshl_add_u32 v6, v4, 2, v2
    v_and_b32 v8, 7, v6
    v_lshlrev_b32 v8, 1, v8
    v_lshlrev_b32 v6, 8, v6
    v_add_u32 v6, 65536, v6
    v_and_b32 v7, 1, v3
    v_lshl_add_u32 v6, v7, 3, v6
    v_lshrrev_b32 v7, 1, v3
    """)
    for db in range(8):
        pr(f"""
        v_add_u32 v9, {2*db}, v7
        v_xor_b32 v9, v9, v8
        v_lshl_add_u32 {VVA(db)}, v9, 4, v6
        """)
    for i in range(128): pr(f"v_mov_b32 v{16+i}, 0")
    for i in range(128): pr(f"v_accvgpr_write_b32 a{i}, 0")
    pr(f"""
    s_cmp_lg_u32 s3, 0
    s_cbranch_scc1 K_xn_wait
    s_and_b32 s6, s5, 3
    s_lshl_b32 s6, s6, 6
    s_lshr_b32 s7, s5, 2
    s_lshl_b32 s7, s7, 2
    s_add_u32 s6, s6, s7
    v_mov_b32 v2, s6
    s_mov_b64 exec, 1
    """)
    poll(pr, "K_xn_poll", "v2", 32)
    pr(f"""
    s_mov_b64 exec, -1
    K_xn_wait:
    s_barrier
    """)
    T(pr, 7)
    for c in range(3):
        pr(f"s_add_u32 m0, {S_MX}, {c*32768}\ns_nop 0")
        for ii in range(4):
            pr(f"buffer_load_dwordx4 {VO_X}, {SRD_WS}, {S_OX} offen offset:{ii*1024} lds sc1" if opts.get("xsc1") else
               f"buffer_load_dwordx4 {VO_X}, {SRD_WS}, {S_OX} offen offset:{ii*1024} lds")
        pr(f"s_add_u32 {S_OX}, {S_OX}, 16384")
    pr("s_waitcnt vmcnt(4)\ns_barrier")
    T(pr, 1)
    for cb in range(16): pr.extend(a_reads(cb))
    for tb in range(4): pr.add(b_read(0, tb))
    pr(f"s_mov_b32 {S_CNT}, 6")
    seg_a = pr.insts
    body = gemm_period(0, gemm_dma(), 8) + gemm_period(1, gemm_dma(), 8)
    body += [Inst(f"s_sub_u32 {S_CNT}, {S_CNT}, 1"), Inst(f"s_cmp_lg_u32 {S_CNT}, 0"), Inst("s_cbranch_scc1 K_gloop")]
    def mk_touch():
        tp = Prog()
        tp(f"""
    s_load_dwordx2 s[40:41], s[0:1], 32
    s_load_dwordx2 s[42:43], s[0:1], 64
    s_and_b32 s51, s2, 3
    s_bfe_u32 s58, s2, 0x30003
    s_lshl_b32 s58, s58, 2
    s_lshr_b32 s59, s2, 6
    s_add_u32 s58, s58, s59
    s_lshl_b32 s58, s58, 2
    s_add_u32 s58, s58, s3
    s_lshl_b32 s58, s58, 4
    s_mul_i32 s59, s51, {23*64}
    s_add_u32 s59, s59, s58
    v_lshlrev_b32 v242, 7, v1
    v_add_u32 v243, 8192, v242
    """)
        tp2 = Prog()
        tp2(f"""
    s_waitcnt lgkmcnt(0)
    s_and_b32 s41, s41, 0xffff
    s_sub_u32 s42, s42, {64*65536}
    s_subb_u32 s43, s43, 0
    s_and_b32 s43, s43, 0xffff
    s_cmp_lt_u32 s59, 4096
    s_cselect_b32 s44, s40, s42
    s_cselect_b32 s45, s41, s43
    s_mov_b32 s46, {92*65536}
    s_mov_b32 s47, 0x20000
    s_lshl_b32 s59, s59, 10
    s_cmp_lt_u32 s58, {23*64}
    s_cselect_b32 s59, s59, 0xf0000000
    """)
        tp3 = [Inst("buffer_load_dword v240, v242, s[44:47], s59 offen"), Inst("buffer_load_dword v241, v243, s[44:47], s59 offen")]
        return tp.insts, tp2.insts, tp3
    p2 = Prog()
    p2.extend(gemm_period(0, gemm_dma(), 8))
    p2(f"s_mov_b32 s6, 0\ns_mov_b32 s7, 16384")
    ta, tb_, tc = mk_touch()
    p2.extend(gemm_period(1, (dma_k(0, SRD_K, "s6") + dma_k(1, SRD_K, "s7"), []), 8, extra=[(40, ta)] if opts.get("early") else []))
    p2.extend(gemm_period(0, (dma_k(3, SRD_K0, "0"), []), 8, extra=[(30, tb_), (40, tc[:1]), (44, tc[1:])] if opts.get("early") else []))
    p2.extend(gemm_period(1, (dma_v(0, "s6") + dma_v(1, "s7"), []), None, read_next=False))
    T(p2, 2)
    p2(f"s_mov_b32 s6, {f32hex(QSCALE)}\ns_mov_b32 s7, {f32hex(QSCALE)}\ns_nop 7")
    for tb in range(4):
        for ds in range(4):
            for h in range(2):
                b = 16 + ((2 * ds + h) * 4 + tb) * 4
                p2(f"v_pk_mul_f32 v[{b}:{b+1}], v[{b}:{b+1}], s[6:7]\nv_pk_mul_f32 v[{b+2}:{b+3}], v[{b+2}:{b+3}], s[6:7]")
            for h in range(2):
                cb = 2 * ds + h
                for i in range(2):
                    p2(f"v_cvt_pk_bf16_f32 v{Qb(tb,ds)+2*h+i}, {QACC(cb,tb,2*i)}, {QACC(cb,tb,2*i+1)}")
    p2("s_cmp_ge_u32 s4, 28\ns_cbranch_scc1 K_noh")
    p2(f"""
    s_lshl_b32 s6, s5, 1
    s_lshr_b32 s7, s3, 1
    s_add_u32 s6, s6, s7
    s_mul_i32 s6, s6, 92
    s_add_u32 s6, s6, s4
    s_add_u32 s6, s6, 64
    s_lshl_b32 s6, s6, 14
    s_and_b32 s7, s3, 1
    s_lshl_b32 s7, s7, 12
    s_add_u32 s6, s6, s7
    s_add_u32 s6, s6, {WS_ACT}
    v_and_b32 v2, 15, v1
    v_lshrrev_b32 v3, 4, v1
    v_bfe_u32 v4, v1, 2, 1
    v_lshlrev_b32 v4, 1, v4
    v_bfe_u32 v5, v1, 3, 1
    v_mul_u32_u24 v5, 3, v5
    v_xor_b32 v4, v4, v5
    v_xor_b32 v4, v4, v3
    v_lshlrev_b32 v4, 4, v4
    v_lshl_add_u32 v2, v2, 6, v4
    v_add_u32 v3, 8192, v2
    s_mov_b32 s26, {f32hex(-LOG2E)}
    s_mov_b32 s27, {f32hex(-LOG2E)}
    s_mov_b32 s78, 1.0
    s_mov_b32 s79, 1.0
    """)
    for tb in range(4):
        for e in range(2):
            t0 = 16 + e * 32
            for hh in range(2):
                cb = 2 * e + hh
                for r in range(4):
                    j = hh * 4 + r
                    p2(f"v_accvgpr_read_b32 v{t0+j}, {GACC(cb,tb,r)}")
                    p2(f"v_accvgpr_read_b32 v{t0+8+j}, {UACC(cb,tb,r)}")
            pk = lambda op, d, a, b: p2(f"{op} v[{d}:{d+1}], v[{a}:{a+1}], {b}")
            for j in range(0, 8, 2): pk("v_pk_mul_f32", t0 + 16 + j, t0 + j, "s[26:27]")
            for j in range(8): p2(f"v_exp_f32 v{t0+16+j}, v{t0+16+j}")
            for j in range(0, 8, 2): pk("v_pk_mul_f32", t0 + j, t0 + j, f"v[{t0+8+j}:{t0+9+j}]")
            for j in range(0, 8, 2): pk("v_pk_add_f32", t0 + 16 + j, t0 + 16 + j, "s[78:79]")
            for j in range(8): p2(f"v_rcp_f32 v{t0+16+j}, v{t0+16+j}")
            for j in range(0, 8, 2): pk("v_pk_mul_f32", t0 + j, t0 + j, f"v[{t0+16+j}:{t0+17+j}]")
            for i in range(4): p2(f"v_cvt_pk_bf16_f32 v{t0+24+i}, v{t0+2*i}, v{t0+2*i+1}")
            p2(f"buffer_store_dwordx4 v[{t0+24}:{t0+27}], v{2+e}, {SRD_WS}, s6 offen offset:{tb*1024} sc1")
    p2("K_noh:")
    for i in range(128): p2(f"v_accvgpr_write_b32 a{i}, 0")
    for qb in range(4): p2(f"v_mov_b32 {L(qb)}, 0")
    p2(f"s_mov_b32 {S_OFF}, 32768")
    p2("s_waitcnt vmcnt(0)\ns_barrier")
    T(p2, 3)
    for f in range(4): p2.add(k_read(0, f))
    ph, carry = emit_phase(-1, opts, [])
    p2.extend(ph)
    for qb in range(4):
        m = f"v{232+qb}"
        p2(f"v_max3_f32 {m}, {S(0,0,qb,0)}, {S(0,0,qb,1)}, {S(0,0,qb,2)}")
        p2(f"v_max3_f32 {m}, {m}, {S(0,0,qb,3)}, {S(0,1,qb,0)}")
        p2(f"v_max3_f32 {m}, {m}, {S(0,1,qb,1)}, {S(0,1,qb,2)}")
        p2(f"v_max_f32 {m}, {m}, {S(0,1,qb,3)}")
        p2(f"v_mov_b32 v236, {m}")
        p2(f"v_permlane32_swap_b32 v236, {m}")
        p2(f"v_max_f32 {m}, {m}, v236")
        p2(f"v_mov_b32 v236, {m}")
        p2(f"v_permlane16_swap_b32 v236, {m}")
        p2(f"v_max_f32 {m}, {m}, v236")
        for r in range(4): p2(f"v_sub_f32 {NEGM(qb,r)}, 0, {m}")
        for kb in range(2):
            for r in range(4): p2(f"v_sub_f32 {S(0,kb,qb,r)}, {S(0,kb,qb,r)}, {m}")
    ph, carry = emit_phase(0, opts, carry)
    p2.extend(ph)
    p2(f"s_mov_b32 {S_CNT}, 7")
    abody = []
    c2 = carry
    for p in range(1, 9):
        ph, c2 = emit_phase(p, opts, c2)
        abody += ph
    abody += [Inst(f"s_sub_u32 {S_CNT}, {S_CNT}, 1"), Inst(f"s_cmp_lg_u32 {S_CNT}, 0"), Inst("s_cbranch_scc1 K_aloop")]
    if opts.get("wtouch", 1):
        opts = dict(opts)
        ta, tb_, tc = mk_touch()
        opts["extra"] = {59: [(50, tc[:1]), (54, tc[1:])]}
        if not opts.get("early"): opts["extra"] = {58: [(3, ta)], 59: [(41, tb_), (50, tc[:1]), (54, tc[1:])]}
        opts["vmadj"] = {30: 2, 31: 2}
    tail = []
    c3 = c2
    for p in range(57, 65):
        ph, c3 = emit_phase(p, opts, c3)
        tail += ph
    tail += c3

    NST = 5; RING = NST * 32768
    ACC = lambda st_, cb, tb, r=None: (f"a[{st_*64+(cb*4+tb)*4}:{st_*64+(cb*4+tb)*4+3}]" if r is None else f"a{st_*64+(cb*4+tb)*4+r}")
    def AF3(s, cb, u=None):
        b = 48 + (s * 4 + cb) * 4
        return f"v[{b}:{b+3}]" if u is None else f"v[{b+2*u}:{b+2*u+1}]"
    def BF3(s, tb):
        b = 80 + (s * 4 + tb) * 4
        return f"v[{b}:{b+3}]"
    VA = lambda cb: f"v{112+cb}"; VBs = lambda s: f"v{116+s}"
    VAb = lambda cb: f"v{118+cb}"; VBb = lambda s: f"v{122+s}"
    VOW = lambda ii: f"v{124+ii}"; VOA = "v128"
    SRD_W = "s[8:11]"
    S_RD3 = "s16"; S_DW = "s17"; S_DA = "s18"; S_GP = "s19"; S_OA = "s24"; S_OW = "s26"; S_REMW = "s27"; S_REMA = "s36"; S_MW = "s25"; S_MA = "s37"
    S_OA2 = "s38"; S_OW2 = "s39"
    PART = "s48"; TM = "s49"; TN = "s50"
    def a_rd(s, cb):
        return [Inst(f"ds_read_b64_tr_b16 {AF3(s,cb,u)}, {VA(cb)} offset:{(32*s+16*u)*256}") for u in range(2)]
    def b_rd(s, tb):
        return Inst(f"ds_read_b128 {BF3(s,tb)}, {VBs(0)} offset:{16384 + s*8192 + tb*1024}")
    def addr_upd():
        return [Inst(f"v_add_u32 {VA(cb)}, {S_RD3}, {VAb(cb)}") for cb in range(4)] + [Inst(f"v_add_u32 {VBs(0)}, {S_RD3}, {VBb(0)}")]
    def ring_adv(s):
        return [Inst(f"s_add_u32 {s}, {s}, 32768"), Inst(f"s_cmp_eq_u32 {s}, {RING}"), Inst(f"s_cselect_b32 {s}, 0, {s}")]
    def dma_w():
        pre = [Inst(f"s_cmp_lt_u32 {S_GP}, 64"), Inst("s_cselect_b32 s8, s40, s42"), Inst("s_cselect_b32 s9, s41, s43"),
               Inst(f"s_cmp_gt_i32 {S_REMW}, 0"), Inst(f"s_cselect_b32 {S_OW2}, {S_OW}, 0xf0000000")]
        r = [[Inst(f"s_add_u32 m0, {S_DW}, {S_MW}"), Inst(f"buffer_load_dwordx4 {VOW(0)}, {SRD_W}, {S_OW2} offen lds")]]
        for ii in range(1, 4):
            r.append([Inst(f"buffer_load_dwordx4 {VOW(ii)}, {SRD_W}, {S_OW2} offen offset:{ii*1024} lds")])
        adv = [Inst(f"s_add_u32 {S_GP}, {S_GP}, 1"), Inst(f"s_add_u32 {S_OW}, {S_OW}, 65536"), Inst(f"s_sub_u32 {S_REMW}, {S_REMW}, 1")] + ring_adv(S_DW)
        return pre, r, adv
    def dma_a():
        pre = [Inst(f"s_cmp_gt_i32 {S_REMA}, 0"), Inst(f"s_cselect_b32 {S_OA2}, {S_OA}, 0xf0000000")]
        r = [[Inst(f"s_add_u32 m0, {S_DA}, {S_MA}"), Inst(f"buffer_load_dwordx4 {VOA}, {SRD_WS}, {S_OA2} offen lds")]]
        for ii in range(1, 4):
            r.append([Inst(f"buffer_load_dwordx4 {VOA}, {SRD_WS}, {S_OA2} offen offset:{ii*1024} lds")])
        adv = [Inst(f"s_add_u32 {S_OA}, {S_OA}, 16384"), Inst(f"s_sub_u32 {S_REMA}, {S_REMA}, 1")] + ring_adv(S_DA)
        return pre, r, adv
    def period(accset):
        NG = 32
        pre = [[] for _ in range(NG + 1)]; mem = [[] for _ in range(NG + 1)]; gaps = [[] for _ in range(NG + 1)]
        apre, ag, aadv = dma_a()
        wpre, wg_, wadv = dma_w()
        rd = []
        for cb in range(4): rd += a_rd(1, cb)
        for tb in range(4): rd.append(b_rd(1, tb))
        rd = rd[0:2] + rd[8:12] + rd[2:8]
        for i, x in enumerate(rd): mem[i].append(x)
        gaps[0] += apre
        for gp, d in zip([3, 6, 9, 12], ag):
            gaps[gp - 1] += d[:-1]; mem[gp] += d[-1:]
        gaps[12] += aadv[:2]; gaps[13] += aadv[2:]
        gaps[14] += ring_adv(S_RD3)
        pre[16] += addr_upd() + [Inst("s_waitcnt vmcnt(16)"), Inst("s_barrier")]
        rd = []
        for cb in range(4): rd += a_rd(0, cb)
        for tb in range(4): rd.append(b_rd(0, tb))
        rd = rd[0:2] + rd[8:12] + rd[2:8]
        for i, x in enumerate(rd): mem[16 + i].append(x)
        gaps[16] += wpre[:3]; gaps[17] += wpre[3:]
        for gp, d in zip([19, 22, 25, 28], wg_):
            gaps[gp - 1] += d[:-1]; mem[gp] += d[-1:]
        gaps[28] += wadv[:3]; gaps[29] += wadv[3:]
        out = []
        for s in range(2):
            for cb in range(4):
                if cb % 2 == 0:
                    regs = [AF3(s, cb), AF3(s, cb + 1)]
                    if cb == 0: regs += [BF3(s, t) for t in range(4)]
                    pre[16 * s + 4 * cb].append(Hint(*regs))
                for tb in range(4):
                    k = 16 * s + 4 * cb + tb
                    d = ACC(accset, cb, tb)
                    out += pre[k]
                    out.append(Inst(f"v_mfma_f32_16x16x32_bf16 {d}, {AF3(s,cb)}, {BF3(s,tb)}, {d}"))
                    out += mem[k]; out += gaps[k]
        return out

    post = Prog()
    T(post, 4)
    post(f"""
    s_barrier
    s_load_dwordx2 s[30:31], s[0:1], 0
    s_load_dwordx2 s[32:33], s[0:1], 72
    s_and_b32 {PART}, s2, 3
    s_bfe_u32 {TM}, s2, 0x10002
    s_lshl_b32 {TM}, {TM}, 3
    s_bfe_u32 s6, s2, 0x30003
    s_add_u32 {TM}, {TM}, s6
    s_lshr_b32 {TN}, s2, 6
    s_mul_i32 {S_GP}, {PART}, 23
    s_mov_b32 {S_RD3}, 0
    s_mov_b32 {S_DW}, 0
    s_mov_b32 {S_DA}, 0
    s_mov_b32 {S_REMW}, 23
    s_mov_b32 {S_REMA}, 23
    s_mul_i32 {S_OA}, {TM}, 92
    s_add_u32 {S_OA}, {S_OA}, {S_GP}
    s_lshl_b32 {S_OA}, {S_OA}, 14
    s_add_u32 {S_OA}, {S_OA}, {WS_ACT}
    s_lshl_b32 {S_OW}, {S_GP}, 16
    s_lshl_b32 s7, {TN}, 8
    s_add_u32 {S_OW}, {S_OW}, s7
    s_lshl_b32 {S_MW}, s3, 12
    s_add_u32 {S_MA}, {S_MW}, 16384
    v_lshrrev_b32 v2, 4, v1
    v_and_b32 v3, 15, v1
    s_lshl_b32 s7, s3, 4
    """)
    for ii in range(4):
        post(f"""
        v_add_u32 v4, {4*(ii&1)}, v2
        v_lshlrev_b32 v4, 1, v4
        v_xor_b32 v4, v4, v3
        v_lshlrev_b32 v4, 4, v4
        v_add_u32 v5, s7, v2
        v_add_u32 v5, {4*ii}, v5
        v_lshl_add_u32 v4, v5, 10, v4
        v_subrev_u32 {VOW(ii)}, {1024*ii}, v4
        """)
    post(f"""
    v_lshlrev_b32 {VOA}, 4, v1
    v_add_u32 {VOA}, {S_MW}, {VOA}
    s_mov_b32 s10, {92*65536}
    s_mov_b32 s11, 0x20000
    """)
    def w_initial():
        for c in range(4):
            wpre, wg_, wadv = dma_w()
            post.extend(wpre)
            for d in wg_:
                post.extend(d[:-1])
                if len(d) > 1: post("s_nop 0")
                post.extend(d[-1:])
            post.extend(wadv)
    if not opts.get("wlate"): w_initial()
    for qb in range(4):
        post(f"""
        v_mov_b32 v236, {L(qb)}
        v_permlane32_swap_b32 v236, {L(qb)}
        v_add_f32 {L(qb)}, {L(qb)}, v236
        v_mov_b32 v236, {L(qb)}
        v_permlane16_swap_b32 v236, {L(qb)}
        v_add_f32 {L(qb)}, {L(qb)}, v236
        v_rcp_f32 {L(qb)}, {L(qb)}
        """)
    post(f"""
    s_lshl_b32 s6, s5, 1
    s_lshr_b32 s7, s3, 1
    s_add_u32 s6, s6, s7
    s_mul_i32 s6, s6, 92
    s_lshl_b32 s7, s4, 1
    s_add_u32 s6, s6, s7
    s_lshl_b32 s6, s6, 14
    s_and_b32 s7, s3, 1
    s_lshl_b32 s7, s7, 12
    s_add_u32 s6, s6, s7
    s_add_u32 s52, s6, {WS_ACT}
    s_add_u32 s53, s52, 16384
    v_and_b32 v2, 15, v1
    v_lshrrev_b32 v3, 4, v1
    v_bfe_u32 v4, v1, 2, 1
    v_lshlrev_b32 v4, 1, v4
    v_bfe_u32 v5, v1, 3, 1
    v_mul_u32_u24 v5, 3, v5
    v_xor_b32 v4, v4, v5
    v_xor_b32 v4, v4, v3
    v_lshlrev_b32 v4, 4, v4
    v_lshl_add_u32 v2, v2, 6, v4
    v_add_u32 v3, 8192, v2
    """)
    for qb in range(4):
        lp = 226 + (qb & ~1)
        osel = "op_sel:[0,0] op_sel_hi:[1,0]" if qb % 2 == 0 else "op_sel:[0,1] op_sel_hi:[1,1]"
        for e in range(4):
            t0 = 16 + (e & 1) * 16
            for hh in range(2):
                for r in range(4):
                    post(f"v_accvgpr_read_b32 v{t0+hh*4+r}, {O(2*e+hh,qb,r)}")
            for j in range(0, 8, 2): post(f"v_pk_mul_f32 v[{t0+j}:{t0+j+1}], v[{t0+j}:{t0+j+1}], v[{lp}:{lp+1}] {osel}")
            for i in range(4): post(f"v_cvt_pk_bf16_f32 v{t0+8+i}, v{t0+2*i}, v{t0+2*i+1}")
            post(f"buffer_store_dwordx4 v[{t0+8}:{t0+11}], v{2+(e&1)}, {SRD_WS}, s{52+(e>>1)} offen offset:{qb*1024}" + ("" if opts.get("owb") else " sc1"))
    post(f"""
    v_bfe_u32 v2, v1, 2, 2
    v_and_b32 v3, 3, v1
    v_lshrrev_b32 v4, 4, v1
    v_lshl_add_u32 v6, v4, 2, v2
    v_and_b32 v8, 7, v6
    v_lshlrev_b32 v8, 1, v8
    v_lshlrev_b32 v6, 8, v6
    v_and_b32 v7, 1, v3
    v_lshl_add_u32 v6, v7, 3, v6
    v_lshrrev_b32 v7, 1, v3
    s_and_b32 s7, s3, 1
    s_lshl_b32 s7, s7, 3
    v_add_u32 v7, s7, v7
    """)
    for cb in range(4):
        post(f"""
        v_add_u32 v9, {2*cb}, v7
        v_xor_b32 v9, v9, v8
        v_lshl_add_u32 {VAb(cb)}, v9, 4, v6
        """)
    post(f"""
    v_and_b32 v5, 15, v1
    v_bfe_u32 v6, v1, 2, 1
    v_lshlrev_b32 v6, 1, v6
    v_bfe_u32 v7, v1, 3, 1
    v_mul_u32_u24 v7, 3, v7
    v_xor_b32 v6, v6, v7
    v_xor_b32 v6, v6, v4
    v_lshlrev_b32 v6, 4, v6
    v_lshl_add_u32 v6, v5, 6, v6
    s_lshr_b32 s7, s3, 1
    s_lshl_b32 s7, s7, 12
    v_add_u32 {VBb(0)}, s7, v6
    """)
    post.extend(addr_upd())
    for i in range(128): post(f"v_accvgpr_write_b32 a{i}, 0")
    post(f"""
    s_mov_b32 s56, 23
    s_mov_b32 s57, 0
    s_cmp_eq_u32 {PART}, 2
    s_cselect_b32 s56, 18, s56
    s_cselect_b32 s57, 5, s57
    s_cmp_eq_u32 {PART}, 3
    s_cselect_b32 s56, 0, s56
    s_cselect_b32 s57, 23, s57
    s_waitcnt vmcnt(0)
    s_barrier
    """)
    T(post, 5)
    if opts.get("wlate"): w_initial()
    if opts.get("time"):
        post("s_cmp_eq_u32 s3, 0\ns_cbranch_scc1 K_w0\ns_waitcnt vmcnt(0)")
        T(post, 13)
        post("K_w0:")
    post(f"""
    s_cmp_lg_u32 s3, 0
    s_cbranch_scc1 K_o_wait
    {"buffer_wbl2 sc1" if opts.get("owb") else ""}
    {"s_waitcnt vmcnt(0)" if opts.get("owb") else ""}
    s_and_b32 s6, s5, 3
    s_lshl_b32 s6, s6, 6
    s_lshr_b32 s7, s5, 2
    s_lshl_b32 s7, s7, 2
    s_add_u32 s6, s6, s7
    v_mov_b32 v2, s6
    v_mov_b32 v4, 1
    s_mov_b64 exec, 1
    global_atomic_add v2, v4, {SRD_DBG} offset:8 sc1
    s_lshr_b32 s74, {TM}, 1
    s_and_b32 s6, s74, 3
    s_lshl_b32 s6, s6, 6
    s_lshr_b32 s7, s74, 2
    s_lshl_b32 s7, s7, 2
    s_add_u32 s6, s6, s7
    s_add_u32 s6, s6, 8
    v_mov_b32 v2, s6
    """)
    poll(post, "K_o_poll", "v2", 32)
    post(f"""
    s_mov_b64 exec, -1
    K_o_wait:
    s_barrier
    """)
    T(post, 8)
    for c in range(3):
        apre, ag, aadv = dma_a()
        post.extend(apre)
        for d in ag:
            post.extend(d[:-1])
            if len(d) > 1: post("s_nop 0")
            post.extend(d[-1:])
        post.extend(aadv)
    post("s_waitcnt vmcnt(0)\ns_barrier")
    T(post, 9)
    for cb in range(4): post.extend(a_rd(0, cb))
    for tb in range(4): post.add(b_rd(0, tb))
    post("s_waitcnt lgkmcnt(0)")
    post("s_cmp_eq_u32 s56, 0\ns_cbranch_scc1 K3_l1pre")
    body0 = period(0) + [Inst("s_sub_u32 s56, s56, 1"), Inst("s_cmp_lg_u32 s56, 0"), Inst("s_cbranch_scc1 K3_loop0")]
    mid = [Inst("K3_l1pre:"), Inst("s_cmp_eq_u32 s57, 0"), Inst("s_cbranch_scc1 K3_post")]
    body1 = period(1) + [Inst("s_sub_u32 s57, s57, 1"), Inst("s_cmp_lg_u32 s57, 0"), Inst("s_cbranch_scc1 K3_loop1")]
    fin = Prog()
    fin("K3_post:")
    fin("s_waitcnt lgkmcnt(0)\ns_nop 15")
    T(fin, 10)
    fin(f"""
    s_lshl_b32 s7, {TM}, 2
    s_add_u32 s7, s7, {TN}
    s_mul_i32 s58, s7, 5
    s_lshl_b32 s58, s58, 15
    s_add_u32 s58, s58, {WS_SLAB}
    s_lshl_b32 s59, s3, 13
    s_add_u32 s59, s59, s58
    s_lshl_b32 s6, {PART}, 15
    s_add_u32 s6, s6, s59
    v_lshlrev_b32 v2, 4, v1
    s_cmp_eq_u32 {PART}, 3
    s_cbranch_scc1 K3_st1
    """)
    def slab_store(base):
        for j in range(8):
            t0 = 16 + (j & 1) * 16
            for r in range(8): fin(f"v_accvgpr_read_b32 v{t0+r}, a{base+j*8+r}")
            for i in range(4): fin(f"v_cvt_pk_bf16_f32 v{t0+8+i}, v{t0+2*i}, v{t0+2*i+1}")
            if j == 4: fin("s_add_u32 s6, s6, 4096")
            fin(f"buffer_store_dwordx4 v[{t0+8}:{t0+11}], v2, {SRD_WS}, s6 offen offset:{(j%4)*1024} sc1")
    slab_store(0)
    fin(f"""
    K3_st1:
    s_cmp_lt_u32 {PART}, 2
    s_cbranch_scc1 K3_sync
    s_add_u32 s6, {PART}, 1
    s_lshl_b32 s6, s6, 15
    s_add_u32 s6, s6, s59
    """)
    slab_store(64)
    fin(f"""
    K3_sync:
    s_waitcnt vmcnt(0)
    s_barrier
    s_cmp_lg_u32 s3, 0
    s_cbranch_scc1 K3_wait
    s_and_b32 s6, s7, 3
    s_lshl_b32 s6, s6, 6
    s_lshr_b32 s74, s7, 4
    s_lshl_b32 s74, s74, 2
    s_add_u32 s6, s6, s74
    s_add_u32 s6, s6, 16
    s_bfe_u32 s74, s7, 0x20002
    s_lshl_b32 s74, s74, 3
    s_lshl_b32 s75, 1, s74
    v_mov_b32 v3, s6
    v_mov_b32 v4, s75
    s_mov_b64 exec, 1
    global_atomic_add v3, v4, {SRD_DBG} sc1
    """)
    poll(fin, "K3_spin", "v3", 4, shift="s74")
    fin(f"""
    s_mov_b64 exec, -1
    K3_wait:
    s_barrier
    """)
    T(fin, 11)
    fin(f"""
    s_lshl_b32 s59, {PART}, 13
    s_add_u32 s59, s59, s58
    s_lshl_b32 s6, s3, 11
    s_add_u32 s59, s59, s6
    """)
    for sl in range(5):
        fin(f"s_add_u32 s6, s59, {sl*32768}")
        for jj in range(2):
            b = 16 + (sl * 2 + jj) * 4
            fin(f"buffer_load_dwordx4 v[{b}:{b+3}], v2, {SRD_WS}, s6 offen offset:{jj*1024} sc1")
    fin(f"""
    s_mov_b32 s8, s30
    s_and_b32 s9, s31, 0xffff
    s_mov_b32 s10, {2048*1024}
    s_mov_b32 s11, 0x20000
    s_mov_b32 s12, s32
    s_and_b32 s13, s33, 0xffff
    s_mov_b32 s14, {2048*1024}
    s_mov_b32 s15, 0x20000
    s_lshl_b32 s6, {TM}, 7
    s_lshr_b32 s7, {PART}, 1
    s_lshl_b32 s7, s7, 6
    s_add_u32 s6, s6, s7
    s_lshl_b32 s6, s6, 10
    s_lshl_b32 s7, {TN}, 8
    s_add_u32 s6, s6, s7
    s_and_b32 s7, {PART}, 1
    s_lshl_b32 s7, s7, 7
    s_add_u32 s6, s6, s7
    s_lshl_b32 s7, s3, 5
    s_add_u32 s6, s6, s7
    v_and_b32 v3, 15, v1
    v_lshrrev_b32 v4, 4, v1
    v_lshlrev_b32 v3, 10, v3
    v_lshl_add_u32 v3, v4, 3, v3
    """)
    for tb in range(4):
        fin(f"v_add_u32 v{4+tb}, {tb*16384}, v3")
        fin(f"buffer_load_dwordx2 v[{100+2*tb}:{101+2*tb}], v{4+tb}, s[8:11], s6 offen")
    fin(f"s_mov_b32 s7, {f32hex(-LOG2E)}")
    for tb in range(4):
        src = lambda sl, i: f"v{16+(sl*2+(tb>>1))*4+(tb&1)*2+i}"
        sv = [f"v{60+r}" for r in range(4)]; yv = [f"v{64+r}" for r in range(4)]; tv = [f"v{68+r}" for r in range(4)]
        def unp(dst, sl):
            fin(f"v_lshlrev_b32 {dst[0]}, 16, {src(sl,0)}\nv_and_b32 {dst[1]}, 0xffff0000, {src(sl,0)}")
            fin(f"v_lshlrev_b32 {dst[2]}, 16, {src(sl,1)}\nv_and_b32 {dst[3]}, 0xffff0000, {src(sl,1)}")
        unp(sv, 0); unp(tv, 1)
        for r in range(4): fin(f"v_add_f32 {sv[r]}, {sv[r]}, {tv[r]}")
        unp(tv, 2)
        for r in range(4): fin(f"v_add_f32 {sv[r]}, {sv[r]}, {tv[r]}")
        unp(yv, 3); unp(tv, 4)
        for r in range(4): fin(f"v_add_f32 {yv[r]}, {yv[r]}, {tv[r]}")
        for r in range(4): fin(f"v_mul_f32 {tv[r]}, s7, {yv[r]}")
        for r in range(4): fin(f"v_exp_f32 {tv[r]}, {tv[r]}")
        for r in range(4): fin(f"v_add_f32 {tv[r]}, 1.0, {tv[r]}")
        for r in range(4): fin(f"v_rcp_f32 {tv[r]}, {tv[r]}")
        for r in range(4): fin(f"v_mul_f32 {yv[r]}, {yv[r]}, {tv[r]}")
        xb = 100 + 2 * tb
        fin(f"v_lshlrev_b32 {tv[0]}, 16, v{xb}\nv_and_b32 {tv[1]}, 0xffff0000, v{xb}\nv_lshlrev_b32 {tv[2]}, 16, v{xb+1}\nv_and_b32 {tv[3]}, 0xffff0000, v{xb+1}")
        for r in range(4): fin(f"v_fma_f32 {sv[r]}, {sv[r]}, {yv[r]}, {tv[r]}")
        fin(f"v_cvt_pk_bf16_f32 v{72+2*(tb&1)}, {sv[0]}, {sv[1]}\nv_cvt_pk_bf16_f32 v{73+2*(tb&1)}, {sv[2]}, {sv[3]}")
        fin(f"buffer_store_dwordx2 v[{72+2*(tb&1)}:{73+2*(tb&1)}], v{4+tb}, s[12:15], s6 offen")
    if opts.get("time"):
        fin("s_waitcnt vmcnt(0)")
        T(fin, 12)
        fin(f"""
        s_waitcnt lgkmcnt(0)
        s_lshl_b32 s6, s2, 2
        s_add_u32 s6, s6, s3
        s_lshl_b32 s6, s6, 6
        s_add_u32 s6, s6, {WS_TIME}
        v_mov_b32 v3, s6
        """)
        for i in range(14):
            fin(f"v_mov_b32 v2, s{SB(i)}\nbuffer_store_dword v2, v3, {SRD_WS}, 0 offen offset:{4*i}")
    fin("K_end:\ns_endpgm")

    def lin(insts, st, prev):
        a, st = auto_wait_linear(insts, st)
        a = merge_adjacent_waits(a)
        n = len(prev)
        return check_hazards(prev + a, fix=True)[n:], st
    a2, st = lin(seg_a, None, [])
    b2, st = auto_wait_loop(body, st); b2 = merge_adjacent_waits(b2)
    q2, st = lin(p2.insts, st, b2[-40:])
    ab2, st = auto_wait_loop(abody, st); ab2 = merge_adjacent_waits(ab2)
    t2, st = lin(tail, st, ab2[-40:])
    po2, st = lin(post.insts, st, t2[-40:])
    b0, st = auto_wait_loop(body0, st); b0 = merge_adjacent_waits(b0)
    b1, st = auto_wait_loop(body1, st); b1 = merge_adjacent_waits(b1)
    f2, st = lin(fin.insts, st, b1[-40:])
    for nm, seq in (("gloop", a2[-60:] + b2 + b2 + q2[:80]), ("aloop", q2[-60:] + ab2 + ab2 + t2 + po2[:40]), ("l3", po2[-40:] + b0 + b0 + b1 + b1 + f2[:30])):
        for p_ in check_hazards(seq): print("HAZARD", nm, p_, file=sys.stderr)
    full = a2 + [Inst("K_gloop:")] + b2 + q2 + [Inst("K_aloop:")] + ab2 + t2 + po2 + [Inst("K3_loop0:")] + b0 + mid + [Inst("K3_loop1:")] + b1 + f2
    return full

SB = lambda i: 80 + (i % 11) * 2 if i < 11 else 60 + (i - 11) * 2
def stamp(pr, opts, idx):
    if opts.get("time"):
        b = SB(idx)
        pr(f"s_memrealtime s[{b}:{b+1}]")

def gen(opts):
    hdr = f"""; @launch grid=(256,1,1) block=(256,1,1) lds=163840
.amdgcn_target "amdgcn-amd-amdhsa--gfx950"
.text
"""
    return hdr + kernel_text(KNAME, gen_fused(opts), 512, 256)

if __name__ == "__main__":
    opts = {}
    for a in sys.argv[2:]:
        k, _, v = a.partition("=")
        opts[k] = int(v) if v else 1
    open(sys.argv[1], "w").write(gen(opts))
```

```python
import sys, math
sys.path.insert(0, "dev")
from asmdsl import *
from gen import (NAME, WS_XN, WS_ACT, WS_SLAB, WS_TIME, LOG2E, QSCALE, f32hex, kernel_text, finish, rbf16,
                 S, P, NEGM, Qb, Q, VKA, VVA, VOFFK, VOFFV, L, O, KF, VF, SRD_K, SRD_V, SRD_K0, SRD_WS, S_OFF, S_WB, S_CNT,
                 SRD_WQ, SRD_G, SRD_U, k_read, v_reads, dma_k, dma_v, emit_phase)
from gen2 import ln_rows

SRD_DBG = "s[72:73]"
SB = lambda i: 80 + (i % 11) * 2 if i < 11 else 60 + (i - 11) * 2
CY = {1: 64, 2: 66, 3: 68, 4: 70, 9: 64, 10: 66}
def stamp(pr, opts, idx):
    if opts.get("time"):
        b = SB(idx)
        pr(f"s_memrealtime s[{b}:{b+1}]")
        if idx in CY: pr(f"s_memtime s[{CY[idx]}:{CY[idx]+1}]")

def poll(pr, label, addr_v, thresh, shift=None, sleep=2, cache="sc1"):
    pr(f"""
    {label}:
    global_load_dword v5, {addr_v}, {SRD_DBG} {cache}
    s_waitcnt vmcnt(0)
    v_readfirstlane_b32 s75, v5
    """)
    if shift is not None:
        pr(f"s_lshr_b32 s75, s75, {shift}\ns_and_b32 s75, s75, 0xff")
    pr(f"""
    s_cmp_ge_u32 s75, {thresh}
    s_cbranch_scc1 {label}_ok
    s_sleep {sleep}
    s_branch {label}
    {label}_ok:
    """)

def lin(insts, st, prev):
    a, st = auto_wait_linear(insts, st)
    a = merge_adjacent_waits(a)
    n = len(prev)
    return check_hazards(prev + a, fix=True)[n:], st

def issue_groups(pr, groups):
    for d in groups:
        pr.extend(d[:-1])
        if len(d) > 1: pr("s_nop 0")
        pr.extend(d[-1:])

def QACC(cb, tb, r=None):
    b = 16 + (cb * 4 + tb) * 4
    return f"v[{b}:{b+3}]" if r is None else f"v{b+r}"
def GACC(cb, tb, r=None):
    b = (cb * 4 + tb) * 4
    return f"a[{b}:{b+3}]" if r is None else f"a{b+r}"
def UACC(cb, tb, r=None):
    b = 64 + (cb * 4 + tb) * 4
    return f"a[{b}:{b+3}]" if r is None else f"a{b+r}"
def AF(cb, u=None):
    b = 128 + cb * 4
    if u is None: return f"a[{b}:{b+3}]"
    return f"a[{b+2*u}:{b+2*u+1}]"
def BF(st, tb):
    b = 144 + st * 16 + tb * 4
    return f"v[{b}:{b+3}]"
VA_Q = lambda ds: f"v{230+ds}"
VA_G = lambda cb: f"v{234+cb}"
VO_X = "v238"; VO_WQ = lambda ii: f"v{239+ii}"; VO_G = "v241"
S_OX = "s50"; S_OWQ = "s51"; S_OGU = "s52"
S_MWQ = "s55"; S_MG = "s56"; S_MU = "s57"
GW = 65536

def a_reads(cb, stage):
    if cb < 8:
        ds, h = cb >> 1, cb & 1
        return [Inst(f"ds_read_b64_tr_b16 {AF(cb,u)}, {VA_Q(ds)} offset:{stage*16384 + 8*h + 1024*u}") for u in range(2)]
    mat, c2 = (cb - 8) >> 2, (cb - 8) & 3
    return [Inst(f"ds_read_b64_tr_b16 {AF(cb,u)}, {VA_G(c2)} offset:{stage*16384 + 8192 + 4096*mat + 512*u}") for u in range(2)]
def w_dma(stage):
    r = []
    r.append([Inst(f"s_add_u32 m0, {S_MWQ}, {stage*16384}"), Inst(f"buffer_load_dwordx4 {VO_WQ(0)}, {SRD_WQ}, {S_OWQ} offen lds")])
    r.append([Inst(f"buffer_load_dwordx4 {VO_WQ(1)}, {SRD_WQ}, {S_OWQ} offen offset:1024 lds")])
    r.append([Inst(f"s_add_u32 m0, {S_MG}, {stage*16384}"), Inst(f"buffer_load_dwordx4 {VO_G}, {SRD_G}, {S_OGU} offen lds")])
    r.append([Inst(f"s_add_u32 m0, {S_MU}, {stage*16384}"), Inst(f"buffer_load_dwordx4 {VO_G}, {SRD_U}, {S_OGU} offen lds")])
    adv = [Inst(f"s_add_u32 {S_OWQ}, {S_OWQ}, {32*8192}"), Inst(f"s_add_u32 {S_OGU}, {S_OGU}, {32*3584}")]
    return r, adv
def x_loads(st):
    r = [[Inst(f"buffer_load_dwordx4 {BF(st,tb)}, {VO_X}, {SRD_WS}, {S_OX} offen offset:{tb*1024} sc1")] for tb in range(4)]
    return r, [Inst(f"s_add_u32 {S_OX}, {S_OX}, 16384")]

def gemm_period(c, groups, adv, read_next=True, extra=(), nvm=8):
    st = c & 3
    NG = 64
    pre = [[] for _ in range(NG + 1)]; mem = [[] for _ in range(NG + 1)]; gaps = [[] for _ in range(NG + 1)]
    pre[0].append(Hint(*[BF(st, t) for t in range(4)]))
    if nvm is not None: pre[0].append(Inst(f"s_waitcnt vmcnt({nvm})"))
    pre[0].append(Inst("s_barrier"))
    if read_next:
        for cb in range(16):
            rd = a_reads(cb, (c + 1) & 3)
            if cb < 15:
                mem[4 * cb + 4].append(rd[0]); mem[4 * cb + 5].append(rd[1])
            else:
                mem[63].append(rd[0]); mem[63].append(rd[1])
    pos = [2, 6, 10, 14, 18, 22, 26, 30, 34, 38, 42, 46]
    for gp, d in zip(pos, groups):
        gaps[gp - 1] += d[:-1]
        mem[gp] += d[-1:]
    for i, a in enumerate(adv): gaps[48 + i].append(a)
    for gp, lst in extra:
        for ins in lst:
            (mem if ins.kind in ("vmem", "dma", "lds") else gaps)[gp].append(ins)
    out = []
    for cb in range(16):
        if cb % 4 == 0:
            pre[4 * cb].insert(0, Hint(*[AF(c_) for c_ in range(cb, cb + 4)]))
        for tb in range(4):
            k = 4 * cb + tb
            d = QACC(cb, tb) if cb < 8 else GACC(cb - 8, tb) if cb < 12 else UACC(cb - 12, tb)
            out += pre[k]
            out.append(Inst(f"v_mfma_f32_16x16x32_bf16 {d}, {AF(cb)}, {BF(st,tb)}, {d}"))
            out += mem[k]; out += gaps[k]
    return out

def act_lane_offset(pr, dst0, dst1=None):
    pr(f"""
    v_and_b32 v2, 15, v1
    v_lshrrev_b32 v3, 4, v1
    v_bfe_u32 v4, v1, 2, 1
    v_lshlrev_b32 v4, 1, v4
    v_bfe_u32 v5, v1, 3, 1
    v_mul_u32_u24 v5, 3, v5
    v_xor_b32 v4, v4, v5
    v_xor_b32 v4, v4, v3
    v_lshlrev_b32 v4, 4, v4
    v_lshl_add_u32 {dst0}, v2, 6, v4
    """)
    if dst1: pr(f"v_add_u32 {dst1}, 8192, {dst0}")

def gen_ka(opts):
    T = lambda pr, idx: stamp(pr, opts, idx)
    pr = Prog()
    pr("s_cmp_ge_u32 s2, 256\ns_cbranch_scc1 KA_end")
    T(pr, 0)
    pr(f"""
    s_load_dwordx2 s[76:77], s[0:1], 0
    s_load_dwordx2 s[34:35], s[0:1], 88
    s_load_dwordx4 s[28:31], s[0:1], 8
    s_load_dwordx2 s[32:33], s[0:1], 24
    s_load_dwordx4 s[40:43], s[0:1], 48
    s_load_dwordx2 s[72:73], s[0:1], 80
    v_and_b32 v1, 63, v0
    v_lshrrev_b32 v2, 6, v0
    s_nop 0
    v_readfirstlane_b32 s3, v2
    s_and_b32 s4, s2, 7
    s_lshl_b32 s4, s4, 2
    s_lshr_b32 s5, s2, 3
    s_and_b32 s6, s5, 3
    s_add_u32 s4, s4, s6
    s_lshr_b32 s5, s2, 5
    s_lshl_b32 {S_WB}, s3, 12
    s_lshl_b32 s16, s5, 8
    s_lshl_b32 s17, s4, 3
    s_add_u32 s16, s16, s17
    s_lshl_b32 s17, s3, 1
    s_add_u32 s16, s16, s17
    s_lshl_b32 s17, s16, 10
    v_lshlrev_b32 v2, 4, v1
    s_waitcnt lgkmcnt(0)
    s_mov_b32 s8, s76
    s_and_b32 s9, s77, 0xffff
    s_mov_b32 s10, {2048*1024}
    s_mov_b32 s11, 0x20000
    buffer_load_dwordx4 v[4:7], v2, s[8:11], s17 offen
    buffer_load_dwordx4 v[8:11], v2, s[8:11], s17 offen offset:1024
    s_mov_b32 s20, s34
    s_and_b32 s21, s35, 0xffff
    s_mov_b32 s22, 0x10000000
    s_mov_b32 s23, 0x20000
    s_mov_b32 s36, s32
    s_and_b32 s37, s33, 0xffff
    s_mov_b32 s38, {0 if opts.get("kanow") else 512*8192}
    s_mov_b32 s39, 0x20000
    s_mov_b32 s44, s42
    s_and_b32 s45, s43, 0xffff
    s_and_b32 s41, s41, 0xffff
    s_cmp_lt_u32 s4, 28
    s_cselect_b32 s42, {0 if opts.get("kanow") else 512*3584}, 0
    s_mov_b32 s46, s42
    s_mov_b32 s43, 0x20000
    s_mov_b32 s47, 0x20000
    s_lshl_b32 {S_OX}, s5, 18
    s_add_u32 {S_OX}, {S_OX}, {WS_XN}
    s_add_u32 {S_OX}, {S_OX}, {S_WB}
    {"s_mov_b32 s50, 0xf0000000" if opts.get("kanox") else ""}
    s_lshl_b32 {S_OWQ}, s4, 8
    s_lshl_b32 {S_OGU}, s4, 7
    s_lshl_b32 s6, s3, 11
    s_add_u32 {S_MWQ}, s6, {GW}
    s_lshl_b32 s6, s3, 10
    s_add_u32 {S_MG}, s6, {GW + 8192}
    s_add_u32 {S_MU}, s6, {GW + 12288}
    v_lshrrev_b32 v12, 4, v1
    v_and_b32 v13, 15, v1
    v_lshlrev_b32 v14, 2, v12
    v_xor_b32 v14, v14, v13
    v_lshlrev_b32 v14, 4, v14
    s_lshl_b32 s6, s3, 3
    v_add_u32 v15, s6, v12
    v_lshlrev_b32 v15, 13, v15
    v_add_u32 {VO_WQ(0)}, v15, v14
    v_add_u32 {VO_WQ(1)}, {4*8192-1024}, {VO_WQ(0)}
    v_lshrrev_b32 v12, 3, v1
    v_and_b32 v13, 7, v1
    v_bfe_u32 v14, v1, 4, 1
    s_and_b32 s7, s3, 1
    s_lshl_b32 s7, s7, 1
    v_or_b32 v14, s7, v14
    v_lshlrev_b32 v14, 1, v14
    v_xor_b32 v14, v14, v13
    v_add_u32 v15, s6, v12
    s_movk_i32 s7, 3584
    v_mul_lo_u32 v15, v15, s7
    v_lshl_add_u32 {VO_G}, v14, 4, v15
    """)
    for c in range(3):
        gr, adv = w_dma(c)
        issue_groups(pr, gr); pr.extend(adv)
    pr(f"""
    v_bfe_u32 v3, v1, 2, 3
    v_lshlrev_b32 v3, 14, v3
    v_lshrrev_b32 v12, 5, v1
    v_lshl_add_u32 v3, v12, 6, v3
    v_and_b32 v12, 3, v1
    s_lshr_b32 s18, s16, 8
    s_lshl_b32 s18, s18, 18
    s_and_b32 s19, s16, 255
    s_lshl_b32 s6, s19, 6
    s_add_u32 s18, s18, s6
    s_add_u32 s18, s18, {WS_XN}
    s_lshr_b32 s6, s19, 2
    s_and_b32 s6, s6, 3
    s_and_b32 s7, s6, 1
    s_lshl_b32 s7, s7, 1
    s_lshr_b32 s6, s6, 1
    s_mul_i32 s6, s6, 3
    s_xor_b32 s7, s7, s6
    v_xor_b32 v12, s7, v12
    v_lshl_add_u32 v3, v12, 4, v3
    """)
    ln_rows(pr, opts)
    pr(f"""
    s_lshl_b32 s6, s4, 19
    s_add_u32 s16, s28, s6
    s_addc_u32 s17, s29, 0
    s_and_b32 s17, s17, 0xffff
    s_mov_b32 s18, 524288
    s_mov_b32 s19, 0x20000
    s_add_u32 s8, s16, 16384
    s_addc_u32 s9, s17, 0
    s_mov_b32 s10, {524288-16384}
    s_mov_b32 s11, 0x20000
    s_add_u32 s12, s30, s6
    s_addc_u32 s13, s31, 0
    s_and_b32 s13, s13, 0xffff
    s_mov_b32 s14, 524288
    s_mov_b32 s15, 0x20000
    """)
    pr("s_waitcnt vmcnt(0)\ns_barrier")
    T(pr, 6)
    pr(f"""
    s_and_b32 s6, s5, 3
    s_lshl_b32 s6, s6, 6
    s_lshr_b32 s7, s5, 2
    s_lshl_b32 s7, s7, 2
    s_add_u32 s74, s6, s7
    s_cmp_lg_u32 s3, 0
    s_cbranch_scc1 K_xn_skip
    v_mov_b32 v2, s74
    v_mov_b32 v4, 1
    s_mov_b64 exec, 1
    global_atomic_add v2, v4, {SRD_DBG} sc1
    s_mov_b64 exec, -1
    K_xn_skip:
    """)
    pr(f"""
    v_bfe_u32 v2, v1, 2, 2
    v_and_b32 v3, 3, v1
    v_lshrrev_b32 v4, 4, v1
    v_lshl_add_u32 v5, v4, 3, v2
    v_lshlrev_b32 v6, 8, v5
    v_add_u32 v6, {GW}, v6
    v_lshlrev_b32 v7, 2, v2
    """)
    for ds in range(4):
        pr(f"""
        v_add_u32 v8, {4*ds}, v3
        v_xor_b32 v8, v8, v7
        v_lshl_add_u32 {VA_Q(ds)}, v8, 4, v6
        """)
    pr(f"""
    v_lshlrev_b32 v6, 7, v5
    v_add_u32 v6, {GW}, v6
    v_and_b32 v7, 1, v3
    v_lshl_add_u32 v6, v7, 3, v6
    v_bfe_u32 v7, v1, 3, 1
    v_and_b32 v8, 1, v4
    v_lshl_or_b32 v7, v8, 1, v7
    v_lshlrev_b32 v7, 1, v7
    v_lshrrev_b32 v9, 1, v3
    """)
    for cb in range(4):
        pr(f"""
        v_add_u32 v8, {2*cb}, v9
        v_xor_b32 v8, v8, v7
        v_lshl_add_u32 {VA_G(cb)}, v8, 4, v6
        """)
    act_lane_offset(pr, VO_X)
    pr(f"""
    v_lshrrev_b32 v2, 4, v1
    v_and_b32 v3, 15, v1
    v_lshlrev_b32 v4, 8, v2
    v_add_u32 v4, {S_WB}, v4
    """)
    for ii in range(4):
        pr(f"""
        v_add_u32 v5, {4*ii}, v2
        v_xor_b32 v5, v5, v3
        v_lshl_add_u32 {VOFFK(ii)}, v5, 4, v4
        """)
    for par in range(2):
        pr(f"""
        v_add_u32 v5, {4*par}, v2
        v_lshlrev_b32 v5, 1, v5
        v_xor_b32 v5, v5, v3
        v_lshl_add_u32 {VOFFV(par)}, v5, 4, v4
        """)
    pr(f"""
    v_and_b32 v2, 15, v1
    v_lshrrev_b32 v3, 4, v1
    v_lshlrev_b32 v5, 8, v2
    """)
    for ds in range(4):
        pr(f"""
        v_add_u32 v6, {4*ds}, v3
        v_xor_b32 v6, v6, v2
        v_lshl_add_u32 {VKA(ds)}, v6, 4, v5
        """)
    pr(f"""
    v_bfe_u32 v2, v1, 2, 2
    v_and_b32 v3, 3, v1
    v_lshrrev_b32 v4, 4, v1
    v_lshl_add_u32 v6, v4, 2, v2
    v_and_b32 v8, 7, v6
    v_lshlrev_b32 v8, 1, v8
    v_lshlrev_b32 v6, 8, v6
    v_add_u32 v6, 65536, v6
    v_and_b32 v7, 1, v3
    v_lshl_add_u32 v6, v7, 3, v6
    v_lshrrev_b32 v7, 1, v3
    """)
    for db in range(8):
        pr(f"""
        v_add_u32 v9, {2*db}, v7
        v_xor_b32 v9, v9, v8
        v_lshl_add_u32 {VVA(db)}, v9, 4, v6
        """)
    for i in range(128): pr(f"v_mov_b32 v{16+i}, 0")
    for i in range(128): pr(f"v_accvgpr_write_b32 a{i}, 0")
    for cb in range(16): pr.extend(a_reads(cb, 0))
    pr(f"""
    s_cmp_lg_u32 s3, 0
    s_cbranch_scc1 K_xn_wait
    v_mov_b32 v2, s74
    s_mov_b64 exec, 1
    """)
    poll(pr, "K_xn_poll", "v2", 32)
    pr(f"""
    s_mov_b64 exec, -1
    K_xn_wait:
    s_barrier
    """)
    T(pr, 7)
    for c in range(3):
        gr, adv = x_loads(c)
        issue_groups(pr, gr); pr.extend(adv)
    T(pr, 1)
    pr(f"s_mov_b32 {S_CNT}, 3")
    seg_a = pr.insts
    def full(c):
        xg, xa = x_loads((c + 3) & 3); wg_, wa = w_dma((c + 3) & 3)
        return gemm_period(c, xg + wg_, xa + wa)
    body = []
    for c in range(4): body += full(c)
    body += [Inst(f"s_sub_u32 {S_CNT}, {S_CNT}, 1"), Inst(f"s_cmp_lg_u32 {S_CNT}, 0"), Inst("s_cbranch_scc1 K_gloop")]
    def mk_touch():
        tp = Prog()
        tp(f"""
        s_load_dwordx2 s[40:41], s[0:1], 32
        s_load_dwordx2 s[42:43], s[0:1], 64
        s_and_b32 s51, s2, 3
        s_bfe_u32 s58, s2, 0x30003
        s_lshl_b32 s58, s58, 2
        s_lshr_b32 s59, s2, 6
        s_add_u32 s58, s58, s59
        s_lshl_b32 s58, s58, 2
        s_add_u32 s58, s58, s3
        s_lshl_b32 s58, s58, 4
        s_mul_i32 s59, s51, {24*64}
        s_add_u32 s59, s59, s58
        v_lshlrev_b32 v242, 7, v1
        v_add_u32 v243, 8192, v242
        """)
        tp2 = Prog()
        tp2(f"""
        s_waitcnt lgkmcnt(0)
        s_and_b32 s41, s41, 0xffff
        s_sub_u32 s42, s42, {64*65536}
        s_subb_u32 s43, s43, 0
        s_and_b32 s43, s43, 0xffff
        s_cmp_lt_u32 s59, 4096
        s_cselect_b32 s44, s40, s42
        s_cselect_b32 s45, s41, s43
        s_mov_b32 s46, {92*65536}
        s_mov_b32 s47, 0x20000
        s_lshl_b32 s59, s59, 10
        s_cmp_lt_u32 s58, {24*64}
        s_cselect_b32 s59, s59, 0xf0000000
        """)
        tp3 = [Inst("buffer_load_dword v240, v242, s[44:47], s59 offen"), Inst("buffer_load_dword v241, v243, s[44:47], s59 offen")]
        return tp.insts, tp2.insts, tp3
    p2 = Prog()
    p2.extend(full(12))
    p2(f"s_mov_b32 s6, 0\ns_mov_b32 s7, 16384")
    p2.extend(gemm_period(13, dma_k(3, SRD_K0, "0") + dma_v(0, "s6"), []))
    p2.extend(gemm_period(14, dma_k(0, SRD_K, "s6") + dma_v(1, "s7"), []))
    p2.extend(gemm_period(15, dma_k(1, SRD_K, "s7"), [], read_next=False, nvm=None))
    T(p2, 2)
    p2(f"s_mov_b32 s6, {f32hex(QSCALE)}\ns_mov_b32 s7, {f32hex(QSCALE)}\ns_nop 7")
    for tb in range(4):
        for ds in range(4):
            for h in range(2):
                b = 16 + ((2 * ds + h) * 4 + tb) * 4
                p2(f"v_pk_mul_f32 v[{b}:{b+1}], v[{b}:{b+1}], s[6:7]\nv_pk_mul_f32 v[{b+2}:{b+3}], v[{b+2}:{b+3}], s[6:7]")
            for h in range(2):
                cb = 2 * ds + h
                for i in range(2):
                    p2(f"v_cvt_pk_bf16_f32 v{Qb(tb,ds)+2*h+i}, {QACC(cb,tb,2*i)}, {QACC(cb,tb,2*i+1)}")
    p2("s_cmp_ge_u32 s4, 28\ns_cbranch_scc1 K_noh")
    p2(f"""
    s_lshl_b32 s6, s5, 1
    s_lshr_b32 s7, s3, 1
    s_add_u32 s6, s6, s7
    s_mul_i32 s6, s6, 92
    s_add_u32 s6, s6, s4
    s_add_u32 s6, s6, 64
    s_lshl_b32 s6, s6, 14
    s_and_b32 s7, s3, 1
    s_lshl_b32 s7, s7, 12
    s_add_u32 s6, s6, s7
    s_add_u32 s6, s6, {WS_ACT}
    """)
    act_lane_offset(p2, "v2", "v3")
    p2(f"""
    s_mov_b32 s26, {f32hex(-LOG2E)}
    s_mov_b32 s27, {f32hex(-LOG2E)}
    s_mov_b32 s78, 1.0
    s_mov_b32 s79, 1.0
    """)
    for tb in range(4):
        for e in range(2):
            t0 = 16 + e * 32
            for hh in range(2):
                cb = 2 * e + hh
                for r in range(4):
                    j = hh * 4 + r
                    p2(f"v_accvgpr_read_b32 v{t0+j}, {GACC(cb,tb,r)}")
                    p2(f"v_accvgpr_read_b32 v{t0+8+j}, {UACC(cb,tb,r)}")
            pk = lambda op, d, a, b: p2(f"{op} v[{d}:{d+1}], v[{a}:{a+1}], {b}")
            for j in range(0, 8, 2): pk("v_pk_mul_f32", t0 + 16 + j, t0 + j, "s[26:27]")
            for j in range(8): p2(f"v_exp_f32 v{t0+16+j}, v{t0+16+j}")
            for j in range(0, 8, 2): pk("v_pk_mul_f32", t0 + j, t0 + j, f"v[{t0+8+j}:{t0+9+j}]")
            for j in range(0, 8, 2): pk("v_pk_add_f32", t0 + 16 + j, t0 + 16 + j, "s[78:79]")
            for j in range(8): p2(f"v_rcp_f32 v{t0+16+j}, v{t0+16+j}")
            for j in range(0, 8, 2): pk("v_pk_mul_f32", t0 + j, t0 + j, f"v[{t0+16+j}:{t0+17+j}]")
            for i in range(4): p2(f"v_cvt_pk_bf16_f32 v{t0+24+i}, v{t0+2*i}, v{t0+2*i+1}")
            p2(f"buffer_store_dwordx4 v[{t0+24}:{t0+27}], v{2+e}, {SRD_WS}, s6 offen offset:{tb*1024}")
    p2("K_noh:")
    for i in range(128): p2(f"v_accvgpr_write_b32 a{i}, 0")
    for qb in range(4): p2(f"v_mov_b32 {L(qb)}, 0")
    p2(f"s_mov_b32 {S_OFF}, 32768")
    p2("s_waitcnt vmcnt(0)\ns_barrier")
    T(p2, 3)
    for f in range(4): p2.add(k_read(0, f))
    ph, carry = emit_phase(-1, opts, [])
    p2.extend(ph)
    for qb in range(4):
        m = f"v{244+qb}"
        p2(f"v_max3_f32 {m}, {S(0,0,qb,0)}, {S(0,0,qb,1)}, {S(0,0,qb,2)}")
        p2(f"v_max3_f32 {m}, {m}, {S(0,0,qb,3)}, {S(0,1,qb,0)}")
        p2(f"v_max3_f32 {m}, {m}, {S(0,1,qb,1)}, {S(0,1,qb,2)}")
        p2(f"v_max_f32 {m}, {m}, {S(0,1,qb,3)}")
        p2(f"v_mov_b32 v248, {m}")
        p2(f"v_permlane32_swap_b32 v248, {m}")
        p2(f"v_max_f32 {m}, {m}, v248")
        p2(f"v_mov_b32 v248, {m}")
        p2(f"v_permlane16_swap_b32 v248, {m}")
        p2(f"v_max_f32 {m}, {m}, v248")
        for r in range(4): p2(f"v_sub_f32 {NEGM(qb,r)}, 0, {m}")
        for kb in range(2):
            for r in range(4): p2(f"v_sub_f32 {S(0,kb,qb,r)}, {S(0,kb,qb,r)}, {m}")
    ph, carry = emit_phase(0, opts, carry)
    p2.extend(ph)
    p2(f"s_mov_b32 {S_CNT}, 7")
    abody = []
    c2 = carry
    for p in range(1, 9):
        ph, c2 = emit_phase(p, opts, c2)
        abody += ph
    abody += [Inst(f"s_sub_u32 {S_CNT}, {S_CNT}, 1"), Inst(f"s_cmp_lg_u32 {S_CNT}, 0"), Inst("s_cbranch_scc1 K_aloop")]
    if opts.get("wtouch", 1):
        opts = dict(opts)
        ta, tb_, tc = mk_touch()
        opts["extra"] = {58: [(3, ta)], 59: [(41, tb_), (50, tc[:1]), (54, tc[1:])]}
        opts["vmadj"] = {30: 2, 31: 2}
    tail = []
    c3 = c2
    for p in range(57, 65):
        ph, c3 = emit_phase(p, opts, c3)
        tail += ph
    tail += c3
    post = Prog()
    T(post, 4)
    for qb in range(4):
        post(f"""
        v_mov_b32 v248, {L(qb)}
        v_permlane32_swap_b32 v248, {L(qb)}
        v_add_f32 {L(qb)}, {L(qb)}, v248
        v_mov_b32 v248, {L(qb)}
        v_permlane16_swap_b32 v248, {L(qb)}
        v_add_f32 {L(qb)}, {L(qb)}, v248
        v_rcp_f32 {L(qb)}, {L(qb)}
        """)
    post(f"""
    s_lshl_b32 s6, s5, 1
    s_lshr_b32 s7, s3, 1
    s_add_u32 s6, s6, s7
    s_mul_i32 s6, s6, 92
    s_lshl_b32 s7, s4, 1
    s_add_u32 s6, s6, s7
    s_lshl_b32 s6, s6, 14
    s_and_b32 s7, s3, 1
    s_lshl_b32 s7, s7, 12
    s_add_u32 s6, s6, s7
    s_add_u32 s52, s6, {WS_ACT}
    s_add_u32 s53, s52, 16384
    """)
    act_lane_offset(post, "v2", "v3")
    for qb in range(4):
        lp = 226 + (qb & ~1)
        osel = "op_sel:[0,0] op_sel_hi:[1,0]" if qb % 2 == 0 else "op_sel:[0,1] op_sel_hi:[1,1]"
        for e in range(4):
            t0 = 16 + (e & 1) * 16
            for hh in range(2):
                for r in range(4):
                    post(f"v_accvgpr_read_b32 v{t0+hh*4+r}, {O(2*e+hh,qb,r)}")
            for j in range(0, 8, 2): post(f"v_pk_mul_f32 v[{t0+j}:{t0+j+1}], v[{t0+j}:{t0+j+1}], v[{lp}:{lp+1}] {osel}")
            for i in range(4): post(f"v_cvt_pk_bf16_f32 v{t0+8+i}, v{t0+2*i}, v{t0+2*i+1}")
            post(f"buffer_store_dwordx4 v[{t0+8}:{t0+11}], v{2+(e&1)}, {SRD_WS}, s{52+(e>>1)} offen offset:{qb*1024}")
    if opts.get("time"):
        post("s_waitcnt vmcnt(0)")
        T(post, 5)
        post(f"""
        s_waitcnt lgkmcnt(0)
        s_lshl_b32 s6, s2, 2
        s_add_u32 s6, s6, s3
        s_lshl_b32 s6, s6, 6
        s_add_u32 s6, s6, {WS_TIME}
        v_mov_b32 v3, s6
        """)
        for i in range(8):
            post(f"v_mov_b32 v2, s{SB(i)}\nbuffer_store_dword v2, v3, {SRD_WS}, 0 offen offset:{4*i}")
        for i in range(4):
            post(f"v_mov_b32 v2, s{64+2*i}\nbuffer_store_dword v2, v3, {SRD_WS}, 0 offen offset:{32+4*i}")
    post("KA_end:\ns_endpgm")
    a2, st = lin(seg_a, None, [])
    b2, st = auto_wait_loop(body, st); b2 = merge_adjacent_waits(b2)
    q2, st = lin(p2.insts, st, b2[-40:])
    ab2, st = auto_wait_loop(abody, st); ab2 = merge_adjacent_waits(ab2)
    t2, st = lin(tail, st, ab2[-40:])
    po2, st = lin(post.insts, st, t2[-40:])
    for nm, seq in (("gloop", a2[-60:] + b2 + b2 + q2[:80]), ("aloop", q2[-60:] + ab2 + ab2 + t2 + po2[:40])):
        for p_ in check_hazards(seq): print("HAZARD", nm, p_, file=sys.stderr)
    return a2 + [Inst("K_gloop:")] + b2 + q2 + [Inst("K_aloop:")] + ab2 + t2 + po2

def gen_kb(opts):
    T = lambda pr, idx: stamp(pr, opts, idx)
    NCH = 24
    ACC = lambda st_, cb, tb, r=None: (f"a[{st_*64+(cb*2+tb)*4}:{st_*64+(cb*2+tb)*4+3}]" if r is None else f"a{st_*64+(cb*2+tb)*4+r}")
    def AF3(s, cb, u=None):
        b = 16 + (s * 8 + cb) * 4
        return f"v[{b}:{b+3}]" if u is None else f"v[{b+2*u}:{b+2*u+1}]"
    def BF3(st, s, tb):
        b = 80 + st * 16 + (s * 2 + tb) * 4
        return f"v[{b}:{b+3}]"
    VA = lambda cb: f"v{144+cb}"
    VOW = lambda ii: f"v{152+ii}"; VOA = lambda s: f"v{156+s}"
    SRD_W = "s[8:11]"
    S_DW = "s17"; S_GP = "s19"; S_OA = "s24"; S_OW = "s26"; S_REMW = "s27"; S_REMA = "s36"; S_MW = "s25"
    S_OA2 = "s38"; S_OW2 = "s39"; S_HALF = "s16"
    PART = "s48"; TM = "s49"; TN = "s50"
    def a_rd(s, cb, stage):
        return [Inst(f"ds_read_b64_tr_b16 {AF3(s,cb,u)}, {VA(cb)} offset:{stage*16384 + (32*s+16*u)*256}") for u in range(2)]
    def dma_w():
        pre = [Inst(f"s_cmp_lt_u32 {S_GP}, 64"), Inst("s_cselect_b32 s8, s40, s42"), Inst("s_cselect_b32 s9, s41, s43"),
               Inst(f"s_cmp_gt_i32 {S_REMW}, 0"), Inst(f"s_cselect_b32 {S_OW2}, {S_OW}, 0xf0000000")]
        r = [[Inst(f"s_add_u32 m0, {S_DW}, {S_MW}"), Inst(f"buffer_load_dwordx4 {VOW(0)}, {SRD_W}, {S_OW2} offen lds")]]
        for ii in range(1, 4):
            r.append([Inst(f"buffer_load_dwordx4 {VOW(ii)}, {SRD_W}, {S_OW2} offen offset:{ii*1024} lds")])
        adv = [Inst(f"s_add_u32 {S_GP}, {S_GP}, 1"), Inst(f"s_add_u32 {S_OW}, {S_OW}, 65536"), Inst(f"s_sub_u32 {S_REMW}, {S_REMW}, 1"),
               Inst(f"s_add_u32 {S_DW}, {S_DW}, 16384"), Inst(f"s_and_b32 {S_DW}, {S_DW}, 0x1ffff")]
        return pre, r, adv
    def ld_a(st):
        pre = [Inst(f"s_cmp_gt_i32 {S_REMA}, 0"), Inst(f"s_cselect_b32 {S_OA2}, {S_OA}, 0xf0000000")]
        r = [[Inst(f"buffer_load_dwordx4 {BF3(st,s,tb)}, {VOA(s)}, {SRD_WS}, {S_OA2} offen offset:{tb*1024}")] for s in range(2) for tb in range(2)]
        adv = [Inst(f"s_add_u32 {S_OA}, {S_OA}, 16384"), Inst(f"s_sub_u32 {S_REMA}, {S_REMA}, 1")]
        return pre, r, adv
    WD = 6
    def period(c, accset):
        st = c & 3
        NG = 32
        pre = [[] for _ in range(NG + 1)]; mem = [[] for _ in range(NG + 1)]; gaps = [[] for _ in range(NG + 1)]
        pre[0] += [Hint(*[BF3(st, s, t) for s in range(2) for t in range(2)]), Inst("s_barrier")]
        if (c + 1) & 3 == 0:
            for cb in range(8): gaps[0].append(Inst(f"v_xor_b32 {VA(cb)}, 65536, {VA(cb)}"))
        apre, ag, aadv = ld_a((c + 3) & 3)
        wpre, wg_, wadv = dma_w()
        for s in range(2):
            for cb in range(8):
                k = 2 * (s * 8 + cb) + 2
                rd = a_rd(s, cb, (c + 1) & 3)
                if k < 31: mem[k].append(rd[0]); mem[k + 1].append(rd[1])
                else: mem[31].append(rd[0]); mem[31].append(rd[1])
        gaps[1] += apre
        for gp, d in zip([3, 7, 11, 15], ag): mem[gp] += d
        gaps[15] += aadv
        gaps[16] += wpre[:3]; gaps[17] += wpre[3:]
        for gp, d in zip([19, 22, 25, 28], wg_):
            gaps[gp - 1] += d[:-1]; mem[gp] += d[-1:]
        gaps[28] += wadv[:3]; gaps[29] += wadv[3:]
        out = []
        for s in range(2):
            for cb in range(8):
                if cb % 4 == 0: pre[2 * (s * 8 + cb)].insert(0, Hint(*[AF3(s, c_) for c_ in range(cb, cb + 4)]))
                for tb in range(2):
                    k = 2 * (s * 8 + cb) + tb
                    d = ACC(accset, cb, tb)
                    out += pre[k]
                    out.append(Inst(f"v_mfma_f32_16x16x32_bf16 {d}, {AF3(s,cb)}, {BF3(st,s,tb)}, {d}"))
                    out += mem[k]; out += gaps[k]
        return out
    post = Prog()
    post("s_cmp_ge_u32 s2, 256\ns_cbranch_scc1 KB_end")
    T(post, 0)
    post(f"""
    s_load_dwordx2 s[40:41], s[0:1], 32
    s_load_dwordx2 s[42:43], s[0:1], 64
    s_load_dwordx2 s[34:35], s[0:1], 88
    s_load_dwordx2 s[30:31], s[0:1], 0
    s_load_dwordx2 s[32:33], s[0:1], 72
    s_load_dwordx2 s[72:73], s[0:1], 80
    v_and_b32 v1, 63, v0
    v_lshrrev_b32 v2, 6, v0
    s_nop 0
    v_readfirstlane_b32 s3, v2
    s_and_b32 {PART}, s2, 3
    s_bfe_u32 {TM}, s2, 0x10002
    s_lshl_b32 {TM}, {TM}, 3
    s_bfe_u32 s6, s2, 0x30003
    s_add_u32 {TM}, {TM}, s6
    s_lshr_b32 {TN}, s2, 6
    s_mul_i32 {S_GP}, {PART}, {NCH}
    s_mov_b32 {S_DW}, 0
    s_sub_u32 {S_REMW}, 92, {S_GP}
    s_min_u32 {S_REMW}, {S_REMW}, {NCH}
    s_mov_b32 {S_REMA}, {S_REMW}
    s_mul_i32 {S_OA}, {TM}, 92
    s_add_u32 {S_OA}, {S_OA}, {S_GP}
    s_lshl_b32 {S_OA}, {S_OA}, 14
    s_add_u32 {S_OA}, {S_OA}, {WS_ACT}
    s_lshl_b32 s7, s3, 11
    s_add_u32 {S_OA}, {S_OA}, s7
    s_lshl_b32 {S_OW}, {S_GP}, 16
    s_lshl_b32 s7, {TN}, 8
    s_add_u32 {S_OW}, {S_OW}, s7
    s_lshl_b32 {S_MW}, s3, 12
    v_lshrrev_b32 v2, 4, v1
    v_and_b32 v3, 15, v1
    s_lshl_b32 s7, s3, 4
    """)
    for ii in range(4):
        post(f"""
        v_add_u32 v4, {4*(ii&1)}, v2
        v_lshlrev_b32 v4, 1, v4
        v_xor_b32 v4, v4, v3
        v_lshlrev_b32 v4, 4, v4
        v_add_u32 v5, s7, v2
        v_add_u32 v5, {4*ii}, v5
        v_lshl_add_u32 v4, v5, 10, v4
        v_subrev_u32 {VOW(ii)}, {1024*ii}, v4
        """)
    act_lane_offset(post, VOA(0), VOA(1))
    post(f"""
    s_waitcnt lgkmcnt(0)
    s_and_b32 s41, s41, 0xffff
    s_sub_u32 s42, s42, {64*65536}
    s_subb_u32 s43, s43, 0
    s_and_b32 s43, s43, 0xffff
    s_mov_b32 s10, {92*65536}
    s_mov_b32 s11, 0x20000
    s_mov_b32 s20, s34
    s_and_b32 s21, s35, 0xffff
    s_mov_b32 s22, 0x10000000
    s_mov_b32 s23, 0x20000
    """)
    for c in range(WD):
        p_, gr, adv = dma_w(); post.extend(p_); issue_groups(post, gr); post.extend(adv)
        if 1 <= c <= 3:
            p_, gr, adv = ld_a(c - 1); post.extend(p_); issue_groups(post, gr); post.extend(adv)
    post(f"""
    v_bfe_u32 v2, v1, 2, 2
    v_and_b32 v3, 3, v1
    v_lshrrev_b32 v4, 4, v1
    v_lshl_add_u32 v6, v4, 2, v2
    v_and_b32 v8, 7, v6
    v_lshlrev_b32 v8, 1, v8
    v_lshlrev_b32 v6, 8, v6
    v_and_b32 v7, 1, v3
    v_lshl_add_u32 v6, v7, 3, v6
    v_lshrrev_b32 v7, 1, v3
    """)
    for cb in range(8):
        post(f"""
        v_add_u32 v9, {2*cb}, v7
        v_xor_b32 v9, v9, v8
        v_lshl_add_u32 {VA(cb)}, v9, 4, v6
        """)
    for i in range(128): post(f"v_accvgpr_write_b32 a{i}, 0")
    post(f"""
    s_mov_b32 s56, 6
    s_mov_b32 s57, 0
    s_cmp_eq_u32 {PART}, 2
    s_cselect_b32 s56, 4, s56
    s_cselect_b32 s57, 2, s57
    s_cmp_eq_u32 {PART}, 3
    s_cselect_b32 s56, 0, s56
    s_cselect_b32 s57, 5, s57
    s_waitcnt vmcnt({4*(WD-1)+12-4+4})
    s_barrier
    """)
    T(post, 9)
    for s in range(2):
        for cb in range(8): post.extend(a_rd(s, cb, 0))
    post("s_cmp_eq_u32 s56, 0\ns_cbranch_scc1 K3_l1pre")
    body0 = []; body1 = []
    for c in range(4): body0 += period(c, 0); body1 += period(c, 1)
    body0 += [Inst("s_sub_u32 s56, s56, 1"), Inst("s_cmp_lg_u32 s56, 0"), Inst("s_cbranch_scc1 K3_loop0")]
    mid = [Inst("K3_l1pre:"), Inst("s_cmp_eq_u32 s57, 0"), Inst("s_cbranch_scc1 K3_post")]
    body1 += [Inst("s_sub_u32 s57, s57, 1"), Inst("s_cmp_lg_u32 s57, 0"), Inst("s_cbranch_scc1 K3_loop1")]
    fin = Prog()
    fin("K3_post:")
    fin("s_waitcnt lgkmcnt(0)\ns_nop 15")
    T(fin, 10)
    fin(f"""
    s_lshl_b32 s7, {TM}, 2
    s_add_u32 s7, s7, {TN}
    s_mul_i32 s58, s7, 5
    s_lshl_b32 s58, s58, 15
    s_add_u32 s58, s58, {WS_SLAB}
    s_lshl_b32 s59, s3, 13
    s_add_u32 s59, s59, s58
    s_lshl_b32 s6, {PART}, 15
    s_add_u32 s6, s6, s59
    v_lshlrev_b32 v2, 4, v1
    s_cmp_eq_u32 {PART}, 3
    s_cbranch_scc1 K3_st1
    """)
    def slab_store(base):
        for j in range(8):
            t0 = 16 + (j & 1) * 16
            for r in range(8): fin(f"v_accvgpr_read_b32 v{t0+r}, a{base+j*8+r}")
            for i in range(4): fin(f"v_cvt_pk_bf16_f32 v{t0+8+i}, v{t0+2*i}, v{t0+2*i+1}")
            if j == 4: fin("s_add_u32 s6, s6, 4096")
            fin(f"buffer_store_dwordx4 v[{t0+8}:{t0+11}], v2, {SRD_WS}, s6 offen offset:{(j%4)*1024} sc1")
    slab_store(0)
    fin(f"""
    K3_st1:
    s_cmp_lt_u32 {PART}, 2
    s_cbranch_scc1 K3_sync
    s_add_u32 s6, {PART}, 1
    s_lshl_b32 s6, s6, 15
    s_add_u32 s6, s6, s59
    """)
    slab_store(64)
    fin(f"""
    K3_sync:
    s_mov_b32 s8, s30
    s_and_b32 s9, s31, 0xffff
    s_mov_b32 s10, {2048*1024}
    s_mov_b32 s11, 0x20000
    s_mov_b32 s12, s32
    s_and_b32 s13, s33, 0xffff
    s_mov_b32 s14, {2048*1024}
    s_mov_b32 s15, 0x20000
    s_lshl_b32 s6, {TM}, 7
    s_lshl_b32 s74, {PART}, 5
    s_add_u32 s6, s6, s74
    s_lshl_b32 s6, s6, 10
    s_lshl_b32 s74, {TN}, 8
    s_add_u32 s6, s6, s74
    s_lshl_b32 s74, s3, 6
    s_add_u32 s37, s6, s74
    v_and_b32 v3, 15, v1
    v_lshrrev_b32 v4, 4, v1
    v_lshlrev_b32 v3, 10, v3
    v_lshl_add_u32 v3, v4, 3, v3
    v_add_u32 v4, 16384, v3
    """)
    for jj in range(2):
        for tb in range(2):
            b = 100 + (jj * 2 + tb) * 2
            fin(f"buffer_load_dwordx2 v[{b}:{b+1}], v{3+tb}, s[8:11], s37 offen offset:{jj*32}")
    fin(f"""
    s_waitcnt vmcnt(4)
    s_barrier
    s_cmp_lg_u32 s3, 0
    s_cbranch_scc1 K3_wait
    s_and_b32 s6, s7, 3
    s_lshl_b32 s6, s6, 6
    s_lshr_b32 s74, s7, 4
    s_lshl_b32 s74, s74, 2
    s_add_u32 s6, s6, s74
    s_bfe_u32 s74, s7, 0x20002
    s_lshl_b32 s74, s74, 3
    s_lshl_b32 s75, 1, s74
    v_mov_b32 v6, s6
    v_mov_b32 v7, s75
    s_mov_b64 exec, 1
    global_atomic_add v6, v7, {SRD_DBG} sc1
    """)
    poll(fin, "K3_spin", "v6", 4, shift="s74", sleep=1)
    fin(f"""
    s_mov_b64 exec, -1
    K3_wait:
    s_barrier
    """)
    T(fin, 11)
    fin(f"""
    s_lshl_b32 s59, {PART}, 13
    s_add_u32 s59, s59, s58
    s_lshl_b32 s6, s3, 11
    s_add_u32 s59, s59, s6
    """)
    for sl in range(5):
        fin(f"s_add_u32 s6, s59, {sl*32768}")
        for jj in range(2):
            b = 16 + (sl * 2 + jj) * 4
            fin(f"buffer_load_dwordx4 v[{b}:{b+3}], v2, {SRD_WS}, s6 offen offset:{jj*1024} sc1")
    fin(f"s_mov_b32 s7, {f32hex(-LOG2E)}")
    for jj in range(2):
        for tb in range(2):
            src = lambda sl, i: f"v{16+(sl*2+jj)*4+tb*2+i}"
            sv = [f"v{60+r}" for r in range(4)]; yv = [f"v{64+r}" for r in range(4)]; tv = [f"v{68+r}" for r in range(4)]
            def unp(dst, sl):
                fin(f"v_lshlrev_b32 {dst[0]}, 16, {src(sl,0)}\nv_and_b32 {dst[1]}, 0xffff0000, {src(sl,0)}")
                fin(f"v_lshlrev_b32 {dst[2]}, 16, {src(sl,1)}\nv_and_b32 {dst[3]}, 0xffff0000, {src(sl,1)}")
            unp(sv, 0); unp(tv, 1)
            for r in range(4): fin(f"v_add_f32 {sv[r]}, {sv[r]}, {tv[r]}")
            unp(tv, 2)
            for r in range(4): fin(f"v_add_f32 {sv[r]}, {sv[r]}, {tv[r]}")
            unp(yv, 3); unp(tv, 4)
            for r in range(4): fin(f"v_add_f32 {yv[r]}, {yv[r]}, {tv[r]}")
            for r in range(4): fin(f"v_mul_f32 {tv[r]}, s7, {yv[r]}")
            for r in range(4): fin(f"v_exp_f32 {tv[r]}, {tv[r]}")
            for r in range(4): fin(f"v_add_f32 {tv[r]}, 1.0, {tv[r]}")
            for r in range(4): fin(f"v_rcp_f32 {tv[r]}, {tv[r]}")
            for r in range(4): fin(f"v_mul_f32 {yv[r]}, {yv[r]}, {tv[r]}")
            xb = 100 + (jj * 2 + tb) * 2
            fin(f"v_lshlrev_b32 {tv[0]}, 16, v{xb}\nv_and_b32 {tv[1]}, 0xffff0000, v{xb}\nv_lshlrev_b32 {tv[2]}, 16, v{xb+1}\nv_and_b32 {tv[3]}, 0xffff0000, v{xb+1}")
            for r in range(4): fin(f"v_fma_f32 {sv[r]}, {sv[r]}, {yv[r]}, {tv[r]}")
            ob = 72 + 2 * ((jj * 2 + tb) & 1)
            fin(f"v_cvt_pk_bf16_f32 v{ob}, {sv[0]}, {sv[1]}\nv_cvt_pk_bf16_f32 v{ob+1}, {sv[2]}, {sv[3]}")
            fin(f"buffer_store_dwordx2 v[{ob}:{ob+1}], v{3+tb}, s[12:15], s37 offen offset:{jj*32}")
    if opts.get("time"):
        fin("s_waitcnt vmcnt(0)")
        T(fin, 8)
        fin(f"""
        s_waitcnt lgkmcnt(0)
        s_lshl_b32 s6, s2, 2
        s_add_u32 s6, s6, s3
        s_lshl_b32 s6, s6, 6
        s_add_u32 s6, s6, {WS_TIME + 65536}
        v_mov_b32 v3, s6
        """)
        for k_, i in enumerate((0, 9, 10, 11, 8)):
            fin(f"v_mov_b32 v2, s{SB(i)}\nbuffer_store_dword v2, v3, {SRD_WS}, 0 offen offset:{4*k_}")
        for i in range(2):
            fin(f"v_mov_b32 v2, s{64+2*i}\nbuffer_store_dword v2, v3, {SRD_WS}, 0 offen offset:{32+4*i}")
    fin("KB_end:\ns_endpgm")
    po2, st = lin(post.insts, None, [])
    b0, st = auto_wait_loop(body0, st); b0 = merge_adjacent_waits(b0)
    b1, st = auto_wait_loop(body1, st); b1 = merge_adjacent_waits(b1)
    f2, st = lin(fin.insts, st, b1[-40:])
    for nm, seq in (("l3", po2[-40:] + b0 + b0 + b1 + b1 + f2[:30]),):
        for p_ in check_hazards(seq): print("HAZARD", nm, p_, file=sys.stderr)
    return po2 + [Inst("K3_loop0:")] + b0 + mid + [Inst("K3_loop1:")] + b1 + f2

def gen(opts):
    hdr = f"""; @launch kernel=attn_kernel grid=(256,1,1) block=(256,1,1) lds=131072
; @launch kernel=oproj_kernel grid=(256,1,1) block=(256,1,1) lds=131072
.amdgcn_target "amdgcn-amd-amdhsa--gfx950"
.text
"""
    return hdr + kernel_text("attn_kernel", gen_ka(opts), 512, 256) + kernel_text("oproj_kernel", gen_kb(opts), 288, 160)

if __name__ == "__main__":
    opts = {}
    for a in sys.argv[2:]:
        k, _, v = a.partition("=")
        opts[k] = int(v) if v else 1
    open(sys.argv[1], "w").write(gen(opts))
```

```python
import sys, math
sys.path.insert(0, "dev")
from asmdsl import *
from gen import (NAME, WS_XN, WS_ACT, WS_SLAB, WS_TIME, LOG2E, QSCALE, f32hex, kernel_text, finish, rbf16,
                 S, P, NEGM, Qb, Q, VKA, VVA, VOFFK, VOFFV, L, O, KF, VF, SRD_K, SRD_V, SRD_K0, SRD_WS, S_OFF, S_WB, S_CNT,
                 SRD_WQ, SRD_G, SRD_U, k_read, v_reads, dma_k, dma_v, emit_phase)
from gen2 import ln_rows

SRD_DBG = "s[72:73]"
SB = lambda i: 80 + (i % 11) * 2 if i < 11 else 60 + (i - 11) * 2
CY = {1: 64, 2: 66, 3: 68, 4: 70, 9: 64, 10: 66}
def stamp(pr, opts, idx):
    if opts.get("time"):
        b = SB(idx)
        pr(f"s_memrealtime s[{b}:{b+1}]")
        if idx in CY: pr(f"s_memtime s[{CY[idx]}:{CY[idx]+1}]")

def poll(pr, label, addr_v, thresh, shift=None, sleep=2, cache="sc1"):
    pr(f"""
    {label}:
    global_load_dword v5, {addr_v}, {SRD_DBG} {cache}
    s_waitcnt vmcnt(0)
    v_readfirstlane_b32 s75, v5
    """)
    if shift is not None:
        pr(f"s_lshr_b32 s75, s75, {shift}\ns_and_b32 s75, s75, 0xff")
    pr(f"""
    s_cmp_ge_u32 s75, {thresh}
    s_cbranch_scc1 {label}_ok
    s_sleep {sleep}
    s_branch {label}
    {label}_ok:
    """)

def lin(insts, st, prev):
    a, st = auto_wait_linear(insts, st)
    a = merge_adjacent_waits(a)
    n = len(prev)
    return check_hazards(prev + a, fix=True)[n:], st

def issue_groups(pr, groups):
    for d in groups:
        pr.extend(d[:-1])
        if len(d) > 1: pr("s_nop 0")
        pr.extend(d[-1:])

def QACC(cb, tb, r=None):
    b = 16 + (cb * 4 + tb) * 4
    return f"v[{b}:{b+3}]" if r is None else f"v{b+r}"
def GACC(cb, tb, r=None):
    b = (cb * 4 + tb) * 4
    return f"a[{b}:{b+3}]" if r is None else f"a{b+r}"
def UACC(cb, tb, r=None):
    b = 64 + (cb * 4 + tb) * 4
    return f"a[{b}:{b+3}]" if r is None else f"a{b+r}"
def AF(cb, u=None):
    b = 128 + cb * 4
    if u is None: return f"a[{b}:{b+3}]"
    return f"a[{b+2*u}:{b+2*u+1}]"
def BF(st, tb):
    b = 144 + st * 16 + tb * 4
    return f"v[{b}:{b+3}]"
VA_Q = lambda ds: f"v{230+ds}"
VA_G = lambda cb: f"v{234+cb}"
VO_X = "v238"; VO_WQ = lambda ii: f"v{239+ii}"; VO_G = "v241"
S_OX = "s50"; S_OWQ = "s51"; S_OGU = "s52"
S_MWQ = "s55"; S_MG = "s56"; S_MU = "s57"
GW = 65536

def a_reads(cb, stage):
    if cb < 8:
        ds, h = cb >> 1, cb & 1
        return [Inst(f"ds_read_b64_tr_b16 {AF(cb,u)}, {VA_Q(ds)} offset:{stage*16384 + 8*h + 1024*u}") for u in range(2)]
    mat, c2 = (cb - 8) >> 2, (cb - 8) & 3
    return [Inst(f"ds_read_b64_tr_b16 {AF(cb,u)}, {VA_G(c2)} offset:{stage*16384 + 8192 + 4096*mat + 512*u}") for u in range(2)]
def w_dma(stage):
    r = []
    r.append([Inst(f"s_add_u32 m0, {S_MWQ}, {stage*16384}"), Inst(f"buffer_load_dwordx4 {VO_WQ(0)}, {SRD_WQ}, {S_OWQ} offen lds")])
    r.append([Inst(f"buffer_load_dwordx4 {VO_WQ(1)}, {SRD_WQ}, {S_OWQ} offen offset:1024 lds")])
    r.append([Inst(f"s_add_u32 m0, {S_MG}, {stage*16384}"), Inst(f"buffer_load_dwordx4 {VO_G}, {SRD_G}, {S_OGU} offen lds")])
    r.append([Inst(f"s_add_u32 m0, {S_MU}, {stage*16384}"), Inst(f"buffer_load_dwordx4 {VO_G}, {SRD_U}, {S_OGU} offen lds")])
    adv = [Inst(f"s_add_u32 {S_OWQ}, {S_OWQ}, {32*8192}"), Inst(f"s_add_u32 {S_OGU}, {S_OGU}, {32*3584}")]
    return r, adv
def x_loads(st):
    r = [[Inst(f"buffer_load_dwordx4 {BF(st,tb)}, {VO_X}, {SRD_WS}, {S_OX} offen offset:{tb*1024} sc1")] for tb in range(4)]
    return r, [Inst(f"s_add_u32 {S_OX}, {S_OX}, 16384")]

def gemm_period(c, groups, adv, read_next=True, extra=(), nvm=8):
    st = c & 3
    NG = 64
    pre = [[] for _ in range(NG + 1)]; mem = [[] for _ in range(NG + 1)]; gaps = [[] for _ in range(NG + 1)]
    pre[0].append(Hint(*[BF(st, t) for t in range(4)]))
    if nvm is not None: pre[0].append(Inst(f"s_waitcnt vmcnt({nvm})"))
    pre[0].append(Inst("s_barrier"))
    if read_next:
        for cb in range(16):
            rd = a_reads(cb, (c + 1) & 3)
            if cb < 15:
                mem[4 * cb + 4].append(rd[0]); mem[4 * cb + 5].append(rd[1])
            else:
                mem[63].append(rd[0]); mem[63].append(rd[1])
    pos = [2, 6, 10, 14, 18, 22, 26, 30, 34, 38, 42, 46]
    for gp, d in zip(pos, groups):
        gaps[gp - 1] += d[:-1]
        mem[gp] += d[-1:]
    for i, a in enumerate(adv): gaps[48 + i].append(a)
    for gp, lst in extra:
        for ins in lst:
            (mem if ins.kind in ("vmem", "dma", "lds") else gaps)[gp].append(ins)
    out = []
    for cb in range(16):
        if cb % 4 == 0:
            pre[4 * cb].insert(0, Hint(*[AF(c_) for c_ in range(cb, cb + 4)]))
        for tb in range(4):
            k = 4 * cb + tb
            d = QACC(cb, tb) if cb < 8 else GACC(cb - 8, tb) if cb < 12 else UACC(cb - 12, tb)
            out += pre[k]
            out.append(Inst(f"v_mfma_f32_16x16x32_bf16 {d}, {AF(cb)}, {BF(st,tb)}, {d}"))
            out += mem[k]; out += gaps[k]
    return out

def act_lane_offset(pr, dst0, dst1=None):
    pr(f"""
    v_and_b32 v2, 15, v1
    v_lshrrev_b32 v3, 4, v1
    v_bfe_u32 v4, v1, 2, 1
    v_lshlrev_b32 v4, 1, v4
    v_bfe_u32 v5, v1, 3, 1
    v_mul_u32_u24 v5, 3, v5
    v_xor_b32 v4, v4, v5
    v_xor_b32 v4, v4, v3
    v_lshlrev_b32 v4, 4, v4
    v_lshl_add_u32 {dst0}, v2, 6, v4
    """)
    if dst1: pr(f"v_add_u32 {dst1}, 8192, {dst0}")


def code_touch(pr, start_label, end_label, idx_sgpr, nblk, vt=(250, 251, 252)):
    a, b, d = vt
    pr(f"""
    s_getpc_b64 s[78:79]
    CT_{start_label}:
    s_sub_u32 s78, s78, CT_{start_label}-{start_label}
    s_subb_u32 s79, s79, 0
    s_lshl_b32 s77, {idx_sgpr}, 13
    v_lshlrev_b32 v{a}, 7, v1
    v_add_u32 v{a}, s77, v{a}
    v_min_u32 v{a}, {end_label}-{start_label}-4, v{a}
    v_mov_b32 v{b}, s79
    v_add_co_u32 v{a}, vcc, s78, v{a}
    v_addc_co_u32 v{b}, vcc, 0, v{b}, vcc
    global_load_dword v{d}, v[{a}:{b}], off
    """)

def gen_ka(opts):
    T = lambda pr, idx: stamp(pr, opts, idx)
    pr = Prog()
    pr("s_cmp_ge_u32 s2, 256\ns_cbranch_scc1 KA_end")
    T(pr, 0)
    pr(f"""
    s_load_dwordx2 s[76:77], s[0:1], 0
    s_load_dwordx2 s[34:35], s[0:1], 88
    s_load_dwordx4 s[28:31], s[0:1], 8
    s_load_dwordx2 s[32:33], s[0:1], 24
    s_load_dwordx4 s[40:43], s[0:1], 48
    s_load_dwordx2 s[72:73], s[0:1], 80
    v_and_b32 v1, 63, v0
    v_lshrrev_b32 v2, 6, v0
    s_nop 0
    v_readfirstlane_b32 s3, v2
    s_and_b32 s4, s2, 7
    s_lshl_b32 s4, s4, 2
    s_lshr_b32 s5, s2, 3
    s_and_b32 s6, s5, 3
    s_add_u32 s4, s4, s6
    s_lshr_b32 s5, s2, 5
    s_lshl_b32 {S_WB}, s3, 12
    s_lshl_b32 s16, s5, 8
    s_lshl_b32 s17, s4, 3
    s_add_u32 s16, s16, s17
    s_lshl_b32 s17, s3, 1
    s_add_u32 s16, s16, s17
    s_lshl_b32 s17, s16, 10
    v_lshlrev_b32 v2, 4, v1
    s_waitcnt lgkmcnt(0)
    s_mov_b32 s8, s76
    s_and_b32 s9, s77, 0xffff
    s_mov_b32 s10, {2048*1024}
    s_mov_b32 s11, 0x20000
    buffer_load_dwordx4 v[4:7], v2, s[8:11], s17 offen
    buffer_load_dwordx4 v[8:11], v2, s[8:11], s17 offen offset:1024
    s_mov_b32 s20, s34
    s_and_b32 s21, s35, 0xffff
    s_mov_b32 s22, 0x10000000
    s_mov_b32 s23, 0x20000
    s_mov_b32 s36, s32
    s_and_b32 s37, s33, 0xffff
    s_mov_b32 s38, {0 if opts.get("kanow") else 512*8192}
    s_mov_b32 s39, 0x20000
    s_mov_b32 s44, s42
    s_and_b32 s45, s43, 0xffff
    s_and_b32 s41, s41, 0xffff
    s_cmp_lt_u32 s4, 28
    s_cselect_b32 s42, {0 if opts.get("kanow") else 512*3584}, 0
    s_mov_b32 s46, s42
    s_mov_b32 s43, 0x20000
    s_mov_b32 s47, 0x20000
    s_lshl_b32 {S_OX}, s5, 18
    s_add_u32 {S_OX}, {S_OX}, {WS_XN}
    s_add_u32 {S_OX}, {S_OX}, {S_WB}
    {"s_mov_b32 s50, 0xf0000000" if opts.get("kanox") else ""}
    s_lshl_b32 {S_OWQ}, s4, 8
    s_lshl_b32 {S_OGU}, s4, 7
    s_lshl_b32 s6, s3, 11
    s_add_u32 {S_MWQ}, s6, {GW}
    s_lshl_b32 s6, s3, 10
    s_add_u32 {S_MG}, s6, {GW + 8192}
    s_add_u32 {S_MU}, s6, {GW + 12288}
    v_lshrrev_b32 v12, 4, v1
    v_and_b32 v13, 15, v1
    v_lshlrev_b32 v14, 2, v12
    v_xor_b32 v14, v14, v13
    v_lshlrev_b32 v14, 4, v14
    s_lshl_b32 s6, s3, 3
    v_add_u32 v15, s6, v12
    v_lshlrev_b32 v15, 13, v15
    v_add_u32 {VO_WQ(0)}, v15, v14
    v_add_u32 {VO_WQ(1)}, {4*8192-1024}, {VO_WQ(0)}
    v_lshrrev_b32 v12, 3, v1
    v_and_b32 v13, 7, v1
    v_bfe_u32 v14, v1, 4, 1
    s_and_b32 s7, s3, 1
    s_lshl_b32 s7, s7, 1
    v_or_b32 v14, s7, v14
    v_lshlrev_b32 v14, 1, v14
    v_xor_b32 v14, v14, v13
    v_add_u32 v15, s6, v12
    s_movk_i32 s7, 3584
    v_mul_lo_u32 v15, v15, s7
    v_lshl_add_u32 {VO_G}, v14, 4, v15
    """)
    for c in range(3):
        gr, adv = w_dma(c)
        issue_groups(pr, gr); pr.extend(adv)
    if opts.get("ctouch", 0):
        pr("""
        s_lshr_b32 s6, s2, 3
        s_lshl_b32 s6, s6, 2
        s_add_u32 s6, s6, s3
        s_mul_i32 s7, s6, 43
        s_lshr_b32 s7, s7, 8
        s_mul_i32 s7, s7, 6
        s_sub_u32 s6, s6, s7
        """)
        code_touch(pr, "attn_kernel", "TEXT_END", "s6", 6)
    pr(f"""
    v_bfe_u32 v3, v1, 2, 3
    v_lshlrev_b32 v3, 14, v3
    v_lshrrev_b32 v12, 5, v1
    v_lshl_add_u32 v3, v12, 6, v3
    v_and_b32 v12, 3, v1
    s_lshr_b32 s18, s16, 8
    s_lshl_b32 s18, s18, 18
    s_and_b32 s19, s16, 255
    s_lshl_b32 s6, s19, 6
    s_add_u32 s18, s18, s6
    s_add_u32 s18, s18, {WS_XN}
    s_lshr_b32 s6, s19, 2
    s_and_b32 s6, s6, 3
    s_and_b32 s7, s6, 1
    s_lshl_b32 s7, s7, 1
    s_lshr_b32 s6, s6, 1
    s_mul_i32 s6, s6, 3
    s_xor_b32 s7, s7, s6
    v_xor_b32 v12, s7, v12
    v_lshl_add_u32 v3, v12, 4, v3
    """)
    ln_rows(pr, opts)
    pr(f"""
    s_lshl_b32 s6, s4, 19
    s_add_u32 s16, s28, s6
    s_addc_u32 s17, s29, 0
    s_and_b32 s17, s17, 0xffff
    s_mov_b32 s18, 524288
    s_mov_b32 s19, 0x20000
    s_add_u32 s8, s16, 16384
    s_addc_u32 s9, s17, 0
    s_mov_b32 s10, {524288-16384}
    s_mov_b32 s11, 0x20000
    s_add_u32 s12, s30, s6
    s_addc_u32 s13, s31, 0
    s_and_b32 s13, s13, 0xffff
    s_mov_b32 s14, 524288
    s_mov_b32 s15, 0x20000
    """)
    pr("s_waitcnt vmcnt(0)\ns_barrier")
    T(pr, 6)
    pr(f"""
    s_and_b32 s6, s5, 3
    s_lshl_b32 s6, s6, 6
    s_lshr_b32 s7, s5, 2
    s_lshl_b32 s7, s7, 2
    s_add_u32 s74, s6, s7
    s_cmp_lg_u32 s3, 0
    s_cbranch_scc1 K_xn_skip
    v_mov_b32 v2, s74
    v_mov_b32 v4, 1
    s_mov_b64 exec, 1
    global_atomic_add v2, v4, {SRD_DBG} sc1
    s_mov_b64 exec, -1
    K_xn_skip:
    """)
    pr(f"""
    v_bfe_u32 v2, v1, 2, 2
    v_and_b32 v3, 3, v1
    v_lshrrev_b32 v4, 4, v1
    v_lshl_add_u32 v5, v4, 3, v2
    v_lshlrev_b32 v6, 8, v5
    v_add_u32 v6, {GW}, v6
    v_lshlrev_b32 v7, 2, v2
    """)
    for ds in range(4):
        pr(f"""
        v_add_u32 v8, {4*ds}, v3
        v_xor_b32 v8, v8, v7
        v_lshl_add_u32 {VA_Q(ds)}, v8, 4, v6
        """)
    pr(f"""
    v_lshlrev_b32 v6, 7, v5
    v_add_u32 v6, {GW}, v6
    v_and_b32 v7, 1, v3
    v_lshl_add_u32 v6, v7, 3, v6
    v_bfe_u32 v7, v1, 3, 1
    v_and_b32 v8, 1, v4
    v_lshl_or_b32 v7, v8, 1, v7
    v_lshlrev_b32 v7, 1, v7
    v_lshrrev_b32 v9, 1, v3
    """)
    for cb in range(4):
        pr(f"""
        v_add_u32 v8, {2*cb}, v9
        v_xor_b32 v8, v8, v7
        v_lshl_add_u32 {VA_G(cb)}, v8, 4, v6
        """)
    act_lane_offset(pr, VO_X)
    pr(f"""
    v_lshrrev_b32 v2, 4, v1
    v_and_b32 v3, 15, v1
    v_lshlrev_b32 v4, 8, v2
    v_add_u32 v4, {S_WB}, v4
    """)
    for ii in range(4):
        pr(f"""
        v_add_u32 v5, {4*ii}, v2
        v_xor_b32 v5, v5, v3
        v_lshl_add_u32 {VOFFK(ii)}, v5, 4, v4
        """)
    for par in range(2):
        pr(f"""
        v_add_u32 v5, {4*par}, v2
        v_lshlrev_b32 v5, 1, v5
        v_xor_b32 v5, v5, v3
        v_lshl_add_u32 {VOFFV(par)}, v5, 4, v4
        """)
    pr(f"""
    v_and_b32 v2, 15, v1
    v_lshrrev_b32 v3, 4, v1
    v_lshlrev_b32 v5, 8, v2
    """)
    for ds in range(4):
        pr(f"""
        v_add_u32 v6, {4*ds}, v3
        v_xor_b32 v6, v6, v2
        v_lshl_add_u32 {VKA(ds)}, v6, 4, v5
        """)
    pr(f"""
    v_bfe_u32 v2, v1, 2, 2
    v_and_b32 v3, 3, v1
    v_lshrrev_b32 v4, 4, v1
    v_lshl_add_u32 v6, v4, 2, v2
    v_and_b32 v8, 7, v6
    v_lshlrev_b32 v8, 1, v8
    v_lshlrev_b32 v6, 8, v6
    v_add_u32 v6, 65536, v6
    v_and_b32 v7, 1, v3
    v_lshl_add_u32 v6, v7, 3, v6
    v_lshrrev_b32 v7, 1, v3
    """)
    for db in range(8):
        pr(f"""
        v_add_u32 v9, {2*db}, v7
        v_xor_b32 v9, v9, v8
        v_lshl_add_u32 {VVA(db)}, v9, 4, v6
        """)
    for i in range(128): pr(f"v_mov_b32 v{16+i}, 0")
    for i in range(128): pr(f"v_accvgpr_write_b32 a{i}, 0")
    for cb in range(16): pr.extend(a_reads(cb, 0))
    pr(f"""
    s_cmp_lg_u32 s3, 0
    s_cbranch_scc1 K_xn_wait
    v_mov_b32 v2, s74
    s_mov_b64 exec, 1
    """)
    poll(pr, "K_xn_poll", "v2", 32)
    pr(f"""
    s_mov_b64 exec, -1
    K_xn_wait:
    s_barrier
    """)
    T(pr, 7)
    for c in range(3):
        gr, adv = x_loads(c)
        issue_groups(pr, gr); pr.extend(adv)
    T(pr, 1)
    pr(f"s_mov_b32 {S_CNT}, 3")
    seg_a = pr.insts
    def full(c):
        xg, xa = x_loads((c + 3) & 3); wg_, wa = w_dma((c + 3) & 3)
        return gemm_period(c, xg + wg_, xa + wa)
    body = []
    for c in range(4): body += full(c)
    body += [Inst(f"s_sub_u32 {S_CNT}, {S_CNT}, 1"), Inst(f"s_cmp_lg_u32 {S_CNT}, 0"), Inst("s_cbranch_scc1 K_gloop")]
    def mk_touch():
        tp = Prog()
        tp(f"""
        s_load_dwordx2 s[40:41], s[0:1], 32
        s_load_dwordx2 s[42:43], s[0:1], 64
        s_and_b32 s51, s2, 3
        s_bfe_u32 s58, s2, 0x30003
        s_lshl_b32 s58, s58, 2
        s_lshr_b32 s59, s2, 6
        s_add_u32 s58, s58, s59
        s_lshl_b32 s58, s58, 2
        s_add_u32 s58, s58, s3
        s_lshl_b32 s58, s58, 4
        s_mul_i32 s59, s51, {24*64}
        s_add_u32 s59, s59, s58
        v_lshlrev_b32 v242, 7, v1
        v_add_u32 v243, 8192, v242
        """)
        tp2 = Prog()
        tp2(f"""
        s_waitcnt lgkmcnt(0)
        s_and_b32 s41, s41, 0xffff
        s_sub_u32 s42, s42, {64*65536}
        s_subb_u32 s43, s43, 0
        s_and_b32 s43, s43, 0xffff
        s_cmp_lt_u32 s59, 4096
        s_cselect_b32 s44, s40, s42
        s_cselect_b32 s45, s41, s43
        s_mov_b32 s46, {92*65536}
        s_cselect_b32 s46, {64*65536}, s46
        s_mov_b32 s47, 0x20000
        s_lshl_b32 s59, s59, 10
        s_cmp_lt_u32 s58, {24*64}
        s_cselect_b32 s59, s59, 0xf0000000
        """)
        tp3 = [Inst("buffer_load_dword v240, v242, s[44:47], s59 offen"), Inst("buffer_load_dword v241, v243, s[44:47], s59 offen")]
        return tp.insts, tp2.insts, tp3
    p2 = Prog()
    p2.extend(full(12))
    p2(f"s_mov_b32 s6, 0\ns_mov_b32 s7, 16384")
    p2.extend(gemm_period(13, dma_k(3, SRD_K0, "0") + dma_v(0, "s6"), []))
    p2.extend(gemm_period(14, dma_k(0, SRD_K, "s6") + dma_v(1, "s7"), []))
    p2.extend(gemm_period(15, dma_k(1, SRD_K, "s7"), [], read_next=False, nvm=None))
    T(p2, 2)
    p2(f"s_mov_b32 s6, {f32hex(QSCALE)}\ns_mov_b32 s7, {f32hex(QSCALE)}\ns_nop 7")
    for tb in range(4):
        for ds in range(4):
            for h in range(2):
                b = 16 + ((2 * ds + h) * 4 + tb) * 4
                p2(f"v_pk_mul_f32 v[{b}:{b+1}], v[{b}:{b+1}], s[6:7]\nv_pk_mul_f32 v[{b+2}:{b+3}], v[{b+2}:{b+3}], s[6:7]")
            for h in range(2):
                cb = 2 * ds + h
                for i in range(2):
                    p2(f"v_cvt_pk_bf16_f32 v{Qb(tb,ds)+2*h+i}, {QACC(cb,tb,2*i)}, {QACC(cb,tb,2*i+1)}")
    p2("s_cmp_ge_u32 s4, 28\ns_cbranch_scc1 K_noh")
    p2(f"""
    s_lshl_b32 s6, s5, 1
    s_lshr_b32 s7, s3, 1
    s_add_u32 s6, s6, s7
    s_mul_i32 s6, s6, 92
    s_add_u32 s6, s6, s4
    s_add_u32 s6, s6, 64
    s_lshl_b32 s6, s6, 14
    s_and_b32 s7, s3, 1
    s_lshl_b32 s7, s7, 12
    s_add_u32 s6, s6, s7
    s_add_u32 s6, s6, {WS_ACT}
    """)
    act_lane_offset(p2, "v2", "v3")
    p2(f"""
    s_mov_b32 s26, {f32hex(-LOG2E)}
    s_mov_b32 s27, {f32hex(-LOG2E)}
    s_mov_b32 s78, 1.0
    s_mov_b32 s79, 1.0
    """)
    for tb in range(4):
        for e in range(2):
            t0 = 16 + e * 32
            for hh in range(2):
                cb = 2 * e + hh
                for r in range(4):
                    j = hh * 4 + r
                    p2(f"v_accvgpr_read_b32 v{t0+j}, {GACC(cb,tb,r)}")
                    p2(f"v_accvgpr_read_b32 v{t0+8+j}, {UACC(cb,tb,r)}")
            pk = lambda op, d, a, b: p2(f"{op} v[{d}:{d+1}], v[{a}:{a+1}], {b}")
            for j in range(0, 8, 2): pk("v_pk_mul_f32", t0 + 16 + j, t0 + j, "s[26:27]")
            for j in range(8): p2(f"v_exp_f32 v{t0+16+j}, v{t0+16+j}")
            for j in range(0, 8, 2): pk("v_pk_mul_f32", t0 + j, t0 + j, f"v[{t0+8+j}:{t0+9+j}]")
            for j in range(0, 8, 2): pk("v_pk_add_f32", t0 + 16 + j, t0 + 16 + j, "s[78:79]")
            for j in range(8): p2(f"v_rcp_f32 v{t0+16+j}, v{t0+16+j}")
            for j in range(0, 8, 2): pk("v_pk_mul_f32", t0 + j, t0 + j, f"v[{t0+16+j}:{t0+17+j}]")
            for i in range(4): p2(f"v_cvt_pk_bf16_f32 v{t0+24+i}, v{t0+2*i}, v{t0+2*i+1}")
            p2(f"buffer_store_dwordx4 v[{t0+24}:{t0+27}], v{2+e}, {SRD_WS}, s6 offen offset:{tb*1024}")
    p2("K_noh:")
    p2("s_mov_b32 s27, 0")
    p3 = Prog()
    p3("K_astart:")
    for i in range(128): p3(f"v_accvgpr_write_b32 a{i}, 0")
    for qb in range(4): p3(f"v_mov_b32 {L(qb)}, 0")
    p3(f"s_mov_b32 {S_OFF}, 32768")
    p3("s_waitcnt vmcnt(0) lgkmcnt(0)\ns_barrier")
    T(p3, 3)
    for f in range(4): p3.add(k_read(0, f))
    ph, carry = emit_phase(-1, opts, [])
    p3.extend(ph)
    p3("s_cmp_lg_u32 s27, 0\ns_cbranch_scc1 K_havemax")
    p3("s_nop 7")
    for qb in range(4):
        m = f"v{244+qb}"
        p3(f"v_max3_f32 {m}, {S(0,0,qb,0)}, {S(0,0,qb,1)}, {S(0,0,qb,2)}")
        p3(f"v_max3_f32 {m}, {m}, {S(0,0,qb,3)}, {S(0,1,qb,0)}")
        p3(f"v_max3_f32 {m}, {m}, {S(0,1,qb,1)}, {S(0,1,qb,2)}")
        p3(f"v_max_f32 {m}, {m}, {S(0,1,qb,3)}")
        p3(f"v_mov_b32 v248, {m}")
        p3(f"v_permlane32_swap_b32 v248, {m}")
        p3(f"v_max_f32 {m}, {m}, v248")
        p3(f"v_mov_b32 v248, {m}")
        p3(f"v_permlane16_swap_b32 v248, {m}")
        p3(f"v_max_f32 {m}, {m}, v248")
    p3("K_havemax:")
    p3("s_nop 7")
    for qb in range(4):
        m = f"v{244+qb}"
        for r in range(4): p3(f"v_sub_f32 {NEGM(qb,r)}, 0, {m}")
        for kb in range(2):
            for r in range(4): p3(f"v_sub_f32 {S(0,kb,qb,r)}, {S(0,kb,qb,r)}, {m}")
    p2 = (p2, p3); p2a, p2 = p2
    ph, carry = emit_phase(0, opts, carry)
    p2.extend(ph)
    p2(f"s_mov_b32 {S_CNT}, 7")
    abody = []
    c2 = carry
    for p in range(1, 9):
        ph, c2 = emit_phase(p, opts, c2)
        abody += ph
    abody += [Inst(f"s_sub_u32 {S_CNT}, {S_CNT}, 1"), Inst(f"s_cmp_lg_u32 {S_CNT}, 0"), Inst("s_cbranch_scc1 K_aloop")]
    if opts.get("wtouch", 1):
        opts = dict(opts)
        ta, tb_, tc = mk_touch()
        opts["extra"] = {58: [(3, ta)], 59: [(41, tb_), (50, tc[:1]), (54, tc[1:])]}
        opts["vmadj"] = {30: 2, 31: 2}
    tail = []
    c3 = c2
    for p in range(57, 65):
        ph, c3 = emit_phase(p, opts, c3)
        tail += ph
    tail += c3
    post = Prog()
    T(post, 4)
    for qb in range(4):
        post(f"""
        v_mov_b32 v248, {L(qb)}
        v_permlane32_swap_b32 v248, {L(qb)}
        v_add_f32 {L(qb)}, {L(qb)}, v248
        v_mov_b32 v248, {L(qb)}
        v_permlane16_swap_b32 v248, {L(qb)}
        v_add_f32 {L(qb)}, {L(qb)}, v248
        """)
    post(f"""
    v_max3_f32 v248, {L(0)}, {L(1)}, {L(2)}
    v_max_f32 v248, v248, {L(3)}
    v_add_f32 v249, {L(0)}, {L(1)}
    v_add_f32 v250, {L(2)}, {L(3)}
    v_add_f32 v249, v249, v250
    s_mov_b32 s6, {f32hex(float(2**24))}
    v_cmp_nlt_f32 vcc, v248, s6
    v_cmp_u_f32 s[6:7], v249, v249
    s_or_b64 vcc, vcc, s[6:7]
    s_cmp_lg_u64 vcc, 0
    s_cselect_b32 s6, 1, 0
    v_mov_b32 v248, s6
    v_mov_b32 v249, 131072
    v_lshl_add_u32 v250, s3, 2, v249
    ds_write_b32 v250, v248
    s_waitcnt lgkmcnt(0)
    s_barrier
    ds_read_b128 v[248:251], v249
    s_waitcnt lgkmcnt(0)
    v_or3_b32 v248, v248, v249, v250
    v_or_b32 v248, v248, v251
    s_nop 0
    v_readfirstlane_b32 s6, v248
    s_xor_b32 s7, s27, 1
    s_and_b32 s6, s6, s7
    s_cmp_lg_u32 s6, 0
    s_cbranch_scc1 K_fallback
    """)
    for qb in range(4): post(f"v_rcp_f32 {L(qb)}, {L(qb)}")
    post(f"""
    s_lshl_b32 s6, s5, 1
    s_lshr_b32 s7, s3, 1
    s_add_u32 s6, s6, s7
    s_mul_i32 s6, s6, 92
    s_lshl_b32 s7, s4, 1
    s_add_u32 s6, s6, s7
    s_lshl_b32 s6, s6, 14
    s_and_b32 s7, s3, 1
    s_lshl_b32 s7, s7, 12
    s_add_u32 s6, s6, s7
    s_add_u32 s52, s6, {WS_ACT}
    s_add_u32 s53, s52, 16384
    """)
    act_lane_offset(post, "v2", "v3")
    for qb in range(4):
        lp = 226 + (qb & ~1)
        osel = "op_sel:[0,0] op_sel_hi:[1,0]" if qb % 2 == 0 else "op_sel:[0,1] op_sel_hi:[1,1]"
        for e in range(4):
            t0 = 16 + (e & 1) * 16
            for hh in range(2):
                for r in range(4):
                    post(f"v_accvgpr_read_b32 v{t0+hh*4+r}, {O(2*e+hh,qb,r)}")
            for j in range(0, 8, 2): post(f"v_pk_mul_f32 v[{t0+j}:{t0+j+1}], v[{t0+j}:{t0+j+1}], v[{lp}:{lp+1}] {osel}")
            for i in range(4): post(f"v_cvt_pk_bf16_f32 v{t0+8+i}, v{t0+2*i}, v{t0+2*i+1}")
            post(f"buffer_store_dwordx4 v[{t0+8}:{t0+11}], v{2+(e&1)}, {SRD_WS}, s{52+(e>>1)} offen offset:{qb*1024}")
    if opts.get("time"):
        post("s_waitcnt vmcnt(0)")
        T(post, 5)
        post(f"""
        s_waitcnt lgkmcnt(0)
        s_lshl_b32 s6, s2, 2
        s_add_u32 s6, s6, s3
        s_lshl_b32 s6, s6, 6
        s_add_u32 s6, s6, {WS_TIME}
        v_mov_b32 v3, s6
        """)
        for i in range(8):
            post(f"v_mov_b32 v2, s{SB(i)}\nbuffer_store_dword v2, v3, {SRD_WS}, 0 offen offset:{4*i}")
        for i in range(4):
            post(f"v_mov_b32 v2, s{64+2*i}\nbuffer_store_dword v2, v3, {SRD_WS}, 0 offen offset:{32+4*i}")
    post("KA_end:\ns_endpgm")
    fb = Prog()
    fb(f"""
    K_fallback:
    s_waitcnt vmcnt(0) lgkmcnt(0)
    s_barrier
    s_mov_b32 s27, 1
    v_and_b32 v2, 15, v1
    v_lshrrev_b32 v3, 4, v1
    v_lshlrev_b32 v2, 8, v2
    v_lshl_add_u32 v2, v3, 4, v2
    s_mov_b32 s6, 0
    """)
    for qb in range(4): fb(f"v_mov_b32 v{244+qb}, 0xff800000")
    fb("K_fb_loop:")
    for ds in range(4):
        fb(f"buffer_load_dwordx4 v[{16+4*ds}:{19+4*ds}], v2, {SRD_K0}, s6 offen offset:{64*ds}")
    fb("s_waitcnt vmcnt(0)")
    for qb in range(4):
        for ds in range(4):
            c = "0" if ds == 0 else f"v[{32+4*qb}:{35+4*qb}]"
            fb(f"v_mfma_f32_16x16x32_bf16 v[{32+4*qb}:{35+4*qb}], v[{16+4*ds}:{19+4*ds}], {Q(qb,ds)}, {c}")
    fb("s_nop 15")
    for qb in range(4):
        b = 32 + 4 * qb
        fb(f"v_max3_f32 v{244+qb}, v{244+qb}, v{b}, v{b+1}")
        fb(f"v_max3_f32 v{244+qb}, v{244+qb}, v{b+2}, v{b+3}")
    fb(f"""
    s_add_u32 s6, s6, 4096
    s_cmp_lt_u32 s6, 524288
    s_cbranch_scc1 K_fb_loop
    """)
    for qb in range(4):
        m = f"v{244+qb}"
        fb(f"""
        v_mov_b32 v248, {m}
        s_nop 1
        v_permlane32_swap_b32 v248, {m}
        v_max_f32 {m}, {m}, v248
        v_mov_b32 v248, {m}
        s_nop 1
        v_permlane16_swap_b32 v248, {m}
        v_max_f32 {m}, {m}, v248
        """)
    fb("s_mov_b32 s6, 0\ns_mov_b32 s7, 16384")
    issue_groups(fb, dma_k(3, SRD_K0, "0") + dma_v(0, "s6") + dma_k(0, SRD_K, "s6") + dma_v(1, "s7") + dma_k(1, SRD_K, "s7"))
    fb("s_branch K_astart")
    fb2 = check_hazards([Inst("s_nop 15")] + fb.insts, fix=True)[1:]
    a2, st = lin(seg_a, None, [])
    b2, st = auto_wait_loop(body, st); b2 = merge_adjacent_waits(b2)
    q1, st = lin(p2a.insts, st, b2[-40:])
    q2, st = lin(p2.insts, WaitState(), q1[-40:])
    q2 = q1 + q2
    ab2, st = auto_wait_loop(abody, st); ab2 = merge_adjacent_waits(ab2)
    t2, st = lin(tail, st, ab2[-40:])
    po2, st = lin(post.insts, st, t2[-40:])
    for nm, seq in (("gloop", a2[-60:] + b2 + b2 + q2[:80]), ("aloop", q2[-60:] + ab2 + ab2 + t2 + po2[:40])):
        for p_ in check_hazards(seq): print("HAZARD", nm, p_, file=sys.stderr)
    return a2 + [Inst("K_gloop:")] + b2 + q2 + [Inst("K_aloop:")] + ab2 + t2 + po2 + fb2

def gen_kb(opts):
    T = lambda pr, idx: stamp(pr, opts, idx)
    NCH = 24
    ACC = lambda st_, cb, tb, r=None: (f"a[{st_*64+(cb*2+tb)*4}:{st_*64+(cb*2+tb)*4+3}]" if r is None else f"a{st_*64+(cb*2+tb)*4+r}")
    def AF3(s, cb, u=None):
        b = 16 + (s * 8 + cb) * 4
        return f"v[{b}:{b+3}]" if u is None else f"v[{b+2*u}:{b+2*u+1}]"
    R = opts.get('kbR', 4); D = R - 1
    def BF3(st, s, tb):
        b = 80 + st * 16 + (s * 2 + tb) * 4
        return f"v[{b}:{b+3}]"
    VA = lambda cb, hi=0: f"v{208+hi*8+cb}"
    VOW = lambda ii: f"v{224+ii}"; VOA = lambda s: f"v{228+s}"
    SRD_W = "s[8:11]"; SRD_A = "s[12:15]"
    S_GP = "s19"; S_OA = "s24"; S_OW = "s26"; S_MW = "s25"
    PART = "s48"; TM = "s49"; TN = "s50"
    def a_rd(s, cb, stage):
        return [Inst(f"ds_read_b64_tr_b16 {AF3(s,cb,u)}, {VA(cb, stage >> 2)} offset:{(stage & 3)*16384 + (32*s+16*u)*256}") for u in range(2)]
    def sel_w():
        return [Inst(f"s_cmp_lt_u32 {S_GP}, 64"), Inst("s_cselect_b32 s8, s40, s42"), Inst("s_cselect_b32 s9, s41, s43"), Inst(f"s_add_u32 {S_GP}, {S_GP}, {R}")]
    def dma_w(stage):
        r = [[Inst(f"s_add_u32 m0, {S_MW}, {stage*16384}"), Inst(f"buffer_load_dwordx4 {VOW(0)}, {SRD_W}, {S_OW} offen lds")]]
        for ii in range(1, 4):
            r.append([Inst(f"buffer_load_dwordx4 {VOW(ii)}, {SRD_W}, {S_OW} offen offset:{ii*1024} lds")])
        return r, [Inst(f"s_add_u32 {S_OW}, {S_OW}, 65536")]
    def ld_a(st):
        so = S_OA
        if opts.get("kbuniq"):
            so = f"s{60 + (st & 3)}"
        r = [[Inst(f"buffer_load_dwordx4 {BF3(st,s,tb)}, {VOA(s)}, {SRD_A}, {so} offen offset:{tb*1024}")] for s in range(2) for tb in range(2)]
        adv = [Inst(f"s_add_u32 {S_OA}, {S_OA}, 16384")]
        if opts.get("kbuniq"):
            adv = [Inst(f"s_add_u32 s{60+i}, s{60+i}, 16384") for i in range(4)]
        return r, adv
    def period(c, accset):
        st = c % R
        NG = 32
        pre = [[] for _ in range(NG + 1)]; mem = [[] for _ in range(NG + 1)]; gaps = [[] for _ in range(NG + 1)]
        pre[0] += [Hint(*[BF3(st, s, t) for s in range(2) for t in range(2)]), Inst(f"s_waitcnt vmcnt({8*(D-2)})"), Inst("s_barrier")]
        ag, aadv = ld_a((c + D) % R)
        wg_, wadv = dma_w((c + D) % R)
        for s in range(2):
            for cb in range(8):
                k = 2 * (s * 8 + cb) + 2
                rd = a_rd(s, cb, (c + 1) % R)
                if k < 31: mem[k].append(rd[0]); mem[k + 1].append(rd[1])
                else: mem[31].append(rd[0]); mem[31].append(rd[1])
        mem[0] += ag[0]; mem[1] += ag[1]
        if st == 1: gaps[0] += sel_w()[:1]; gaps[1] += sel_w()[1:2]; gaps[2] += sel_w()[2:3]; gaps[3] += sel_w()[3:]
        mem[5] += ag[2]; mem[8] += ag[3]; gaps[9] += aadv
        gaps[11] += wg_[0][:-1]
        for gp, d in zip([12, 16, 20, 24], wg_): mem[gp] += d[-1:]
        gaps[26] += wadv
        out = []
        for s in range(2):
            for cb in range(8):
                if cb == 0 or (s == 0 and cb == 4): pre[2 * (s * 8 + cb)].insert(0, Hint(*[AF3(s, c_) for c_ in range(cb, 8 if s else cb + 4)] + ([AF3(0, c_) for c_ in range(4, 8)] if False else [])))
                for tb in range(2):
                    k = 2 * (s * 8 + cb) + tb
                    d = ACC(accset, cb, tb)
                    out += pre[k]
                    out.append(Inst(f"v_mfma_f32_16x16x32_bf16 {d}, {AF3(s,cb)}, {BF3(st,s,tb)}, {d}"))
                    out += mem[k]; out += gaps[k]
        return out
    post = Prog()
    post("s_cmp_ge_u32 s2, 256\ns_cbranch_scc1 KB_end")
    T(post, 0)
    post(f"""
    s_load_dwordx2 s[40:41], s[0:1], 32
    s_load_dwordx2 s[42:43], s[0:1], 64
    s_load_dwordx2 s[34:35], s[0:1], 88
    s_load_dwordx2 s[30:31], s[0:1], 0
    s_load_dwordx2 s[32:33], s[0:1], 72
    s_load_dwordx2 s[72:73], s[0:1], 80
    v_and_b32 v1, 63, v0
    v_lshrrev_b32 v2, 6, v0
    s_nop 0
    v_readfirstlane_b32 s3, v2
    s_and_b32 {PART}, s2, 3
    s_bfe_u32 {TM}, s2, 0x10002
    s_lshl_b32 {TM}, {TM}, 3
    s_bfe_u32 s6, s2, 0x30003
    s_add_u32 {TM}, {TM}, s6
    s_lshr_b32 {TN}, s2, 6
    s_mul_i32 {S_GP}, {PART}, {NCH}
    s_sub_u32 s14, 92, {S_GP}
    s_min_u32 s14, s14, {NCH}
    s_lshl_b32 s14, s14, 14
    s_mul_i32 s6, {TM}, 92
    s_add_u32 s6, s6, {S_GP}
    s_lshl_b32 s6, s6, 14
    s_add_u32 s36, s6, {WS_ACT}
    s_lshl_b32 {S_OA}, s3, 11
    s_lshl_b32 {S_OW}, {S_GP}, 16
    s_lshl_b32 s7, {TN}, 8
    s_add_u32 {S_OW}, {S_OW}, s7
    s_lshl_b32 {S_MW}, s3, 12
    v_lshrrev_b32 v2, 4, v1
    v_and_b32 v3, 15, v1
    s_lshl_b32 s7, s3, 4
    """)
    for ii in range(4):
        post(f"""
        v_add_u32 v4, {4*(ii&1)}, v2
        v_lshlrev_b32 v4, 1, v4
        v_xor_b32 v4, v4, v3
        v_lshlrev_b32 v4, 4, v4
        v_add_u32 v5, s7, v2
        v_add_u32 v5, {4*ii}, v5
        v_lshl_add_u32 v4, v5, 10, v4
        v_subrev_u32 {VOW(ii)}, {1024*ii}, v4
        """)
    act_lane_offset(post, VOA(0), VOA(1))
    post(f"""
    s_waitcnt lgkmcnt(0)
    s_and_b32 s41, s41, 0xffff
    s_sub_u32 s42, s42, {64*65536}
    s_subb_u32 s43, s43, 0
    s_and_b32 s43, s43, 0xffff
    s_mov_b32 s10, {92*65536}
    s_mov_b32 s11, 0x20000
    s_mov_b32 s20, s34
    s_and_b32 s21, s35, 0xffff
    s_mov_b32 s22, 0x10000000
    s_mov_b32 s23, 0x20000
    s_add_u32 s12, s34, s36
    s_addc_u32 s13, s35, 0
    s_and_b32 s13, s13, 0xffff
    s_mov_b32 s15, 0x20000
    """)
    if opts.get("kbuniq"):
        for i in range(4):
            post(f"s_cmp_eq_u32 {TN}, {i}\ns_cselect_b32 s{60+i}, {S_OA}, 0xf0000000")
        if opts.get("kbuniq") == 2:
            post(f"s_and_b32 s6, {TM}, 7\ns_cmp_eq_u32 s6, 0\ns_cselect_b32 {S_OW}, {S_OW}, 0xf0000000")
    post.extend(sel_w())
    for c in range(D):
        gr, adv = dma_w(c); issue_groups(post, gr); post.extend(adv)
        gr, adv = ld_a(c); issue_groups(post, gr); post.extend(adv)
    NT = 0
    if opts.get("ctouch", 0):
        post("s_and_b32 s6, s3, 1")
        code_touch(post, "oproj_kernel", "TEXT_END", "s6", 2, vt=(238, 239, 240))
        NT += 1
    if opts.get("kbtouch"):
        NT += 5
        post(f"""
        v_and_b32 v4, 31, v1
        v_lshlrev_b32 v4, 7, v4
        v_lshrrev_b32 v5, 5, v1
        v_lshl_add_u32 v4, v5, 16, v4
        s_lshl_b32 s6, {TN}, 14
        s_lshl_b32 s7, s3, 12
        s_add_u32 s6, s6, s7
        s_add_u32 s6, s6, {4*16384}
        buffer_load_dword v232, v4, {SRD_A}, s6 offen
        s_add_u32 s6, s6, {8*16384}
        buffer_load_dword v233, v4, {SRD_A}, s6 offen
        s_add_u32 s6, s6, {8*16384}
        buffer_load_dword v234, v4, {SRD_A}, s6 offen
        """)
        post(f"""
        s_and_b32 s58, {TM}, 7
        s_lshl_b32 s58, s58, 2
        s_add_u32 s58, s58, {TN}
        s_lshl_b32 s58, s58, 2
        s_add_u32 s58, s58, s3
        s_mul_i32 s58, s58, 10
        s_add_u32 s58, s58, 256
        s_mul_i32 s59, {PART}, {24*64}
        s_add_u32 s59, s59, s58
        s_cmp_lt_u32 s59, 4096
        s_cselect_b32 s44, s40, s42
        s_cselect_b32 s45, s41, s43
        s_cselect_b32 s46, {64*65536}, s10
        s_mov_b32 s47, 0x20000
        s_lshl_b32 s59, s59, 10
        v_lshlrev_b32 v4, 7, v1
        v_add_u32 v5, 8192, v4
        buffer_load_dword v235, v4, s[44:47], s59 offen
        v_cmp_gt_u32 vcc, 16, v1
        s_and_saveexec_b64 s[6:7], vcc
        buffer_load_dword v236, v5, s[44:47], s59 offen
        s_mov_b64 exec, s[6:7]
        """)
    post(f"""
    v_bfe_u32 v2, v1, 2, 2
    v_and_b32 v3, 3, v1
    v_lshrrev_b32 v4, 4, v1
    v_lshl_add_u32 v6, v4, 2, v2
    v_and_b32 v8, 7, v6
    v_lshlrev_b32 v8, 1, v8
    v_lshlrev_b32 v6, 8, v6
    v_and_b32 v7, 1, v3
    v_lshl_add_u32 v6, v7, 3, v6
    v_lshrrev_b32 v7, 1, v3
    """)
    for cb in range(8):
        post(f"""
        v_add_u32 v9, {2*cb}, v7
        v_xor_b32 v9, v9, v8
        v_lshl_add_u32 {VA(cb)}, v9, 4, v6
        v_add_u32 {VA(cb,1)}, 65536, {VA(cb)}
        """)
    for i in range(128): post(f"v_accvgpr_write_b32 a{i}, 0")
    post(f"""
    s_mov_b32 s56, {24//R}
    s_mov_b32 s57, 0
    s_cmp_eq_u32 {PART}, 2
    s_cselect_b32 s56, {16//R}, s56
    s_cselect_b32 s57, {8//R}, s57
    s_cmp_eq_u32 {PART}, 3
    s_cselect_b32 s56, 0, s56
    s_cselect_b32 s57, {24//R if R == 8 else 5}, s57
    s_waitcnt vmcnt({8*D-4+NT})
    s_barrier
    """)
    T(post, 9)
    for s in range(2):
        for cb in range(8): post.extend(a_rd(s, cb, 0))
    post("s_cmp_eq_u32 s56, 0\ns_cbranch_scc1 K3_l1pre")
    body0 = []; body1 = []
    for c in range(R): body0 += period(c, 0); body1 += period(c, 1)
    body0 += [Inst("s_sub_u32 s56, s56, 1"), Inst("s_cmp_lg_u32 s56, 0"), Inst("s_cbranch_scc1 K3_loop0")]
    mid = [Inst("K3_l1pre:"), Inst("s_cmp_eq_u32 s57, 0"), Inst("s_cbranch_scc1 K3_post")]
    body1 += [Inst("s_sub_u32 s57, s57, 1"), Inst("s_cmp_lg_u32 s57, 0"), Inst("s_cbranch_scc1 K3_loop1")]
    fin = Prog()
    fin("K3_post:")
    fin("s_waitcnt lgkmcnt(0)\ns_nop 15")
    T(fin, 10)
    fin(f"""
    s_lshl_b32 s7, {TM}, 2
    s_add_u32 s7, s7, {TN}
    s_mul_i32 s58, s7, 5
    s_lshl_b32 s58, s58, 15
    s_add_u32 s58, s58, {WS_SLAB}
    s_lshl_b32 s59, s3, 13
    s_add_u32 s59, s59, s58
    s_lshl_b32 s6, {PART}, 15
    s_add_u32 s6, s6, s59
    v_lshlrev_b32 v2, 4, v1
    s_cmp_eq_u32 {PART}, 3
    s_cbranch_scc1 K3_st1
    """)
    def slab_store(base):
        for j in range(8):
            t0 = 16 + (j & 1) * 16
            for r in range(8): fin(f"v_accvgpr_read_b32 v{t0+r}, a{base+j*8+r}")
            for i in range(4): fin(f"v_cvt_pk_bf16_f32 v{t0+8+i}, v{t0+2*i}, v{t0+2*i+1}")
            if j == 4: fin("s_add_u32 s6, s6, 4096")
            fin(f"buffer_store_dwordx4 v[{t0+8}:{t0+11}], v2, {SRD_WS}, s6 offen offset:{(j%4)*1024} sc1")
    slab_store(0)
    fin(f"""
    K3_st1:
    s_cmp_lt_u32 {PART}, 2
    s_cbranch_scc1 K3_sync
    s_add_u32 s6, {PART}, 1
    s_lshl_b32 s6, s6, 15
    s_add_u32 s6, s6, s59
    """)
    slab_store(64)
    fin(f"""
    K3_sync:
    s_mov_b32 s8, s30
    s_and_b32 s9, s31, 0xffff
    s_mov_b32 s10, {2048*1024}
    s_mov_b32 s11, 0x20000
    s_mov_b32 s12, s32
    s_and_b32 s13, s33, 0xffff
    s_mov_b32 s14, {2048*1024}
    s_mov_b32 s15, 0x20000
    s_lshl_b32 s6, {TM}, 7
    s_lshl_b32 s74, {PART}, 5
    s_add_u32 s6, s6, s74
    s_lshl_b32 s6, s6, 10
    s_lshl_b32 s74, {TN}, 8
    s_add_u32 s6, s6, s74
    s_lshl_b32 s74, s3, 6
    s_add_u32 s37, s6, s74
    v_and_b32 v3, 15, v1
    v_lshrrev_b32 v4, 4, v1
    v_lshlrev_b32 v3, 10, v3
    v_lshl_add_u32 v3, v4, 3, v3
    v_add_u32 v4, 16384, v3
    """)
    for jj in range(2):
        for tb in range(2):
            b = 100 + (jj * 2 + tb) * 2
            fin(f"buffer_load_dwordx2 v[{b}:{b+1}], v{3+tb}, s[8:11], s37 offen offset:{jj*32}")
    fin(f"""
    s_waitcnt vmcnt(4)
    s_barrier
    s_cmp_lg_u32 s3, 0
    s_cbranch_scc1 K3_wait
    s_and_b32 s6, s7, 3
    s_lshl_b32 s6, s6, 6
    s_lshr_b32 s74, s7, 4
    s_lshl_b32 s74, s74, 2
    s_add_u32 s6, s6, s74
    s_bfe_u32 s74, s7, 0x20002
    s_lshl_b32 s74, s74, 3
    s_lshl_b32 s75, 1, s74
    v_mov_b32 v6, s6
    v_mov_b32 v7, s75
    s_mov_b64 exec, 1
    global_atomic_add v6, v7, {SRD_DBG} sc1
    """)
    poll(fin, "K3_spin", "v6", 4, shift="s74", sleep=1)
    fin(f"""
    s_mov_b64 exec, -1
    K3_wait:
    s_barrier
    """)
    T(fin, 11)
    fin(f"""
    s_lshl_b32 s59, {PART}, 13
    s_add_u32 s59, s59, s58
    s_lshl_b32 s6, s3, 11
    s_add_u32 s59, s59, s6
    """)
    for sl in range(5):
        fin(f"s_add_u32 s6, s59, {sl*32768}")
        for jj in range(2):
            b = 16 + (sl * 2 + jj) * 4
            fin(f"buffer_load_dwordx4 v[{b}:{b+3}], v2, {SRD_WS}, s6 offen offset:{jj*1024} sc1")
    fin(f"s_mov_b32 s7, {f32hex(-LOG2E)}")
    for jj in range(2):
        for tb in range(2):
            src = lambda sl, i: f"v{16+(sl*2+jj)*4+tb*2+i}"
            sv = [f"v{60+r}" for r in range(4)]; yv = [f"v{64+r}" for r in range(4)]; tv = [f"v{68+r}" for r in range(4)]
            def unp(dst, sl):
                fin(f"v_lshlrev_b32 {dst[0]}, 16, {src(sl,0)}\nv_and_b32 {dst[1]}, 0xffff0000, {src(sl,0)}")
                fin(f"v_lshlrev_b32 {dst[2]}, 16, {src(sl,1)}\nv_and_b32 {dst[3]}, 0xffff0000, {src(sl,1)}")
            unp(sv, 0); unp(tv, 1)
            for r in range(4): fin(f"v_add_f32 {sv[r]}, {sv[r]}, {tv[r]}")
            unp(tv, 2)
            for r in range(4): fin(f"v_add_f32 {sv[r]}, {sv[r]}, {tv[r]}")
            unp(yv, 3); unp(tv, 4)
            for r in range(4): fin(f"v_add_f32 {yv[r]}, {yv[r]}, {tv[r]}")
            for r in range(4): fin(f"v_mul_f32 {tv[r]}, s7, {yv[r]}")
            for r in range(4): fin(f"v_exp_f32 {tv[r]}, {tv[r]}")
            for r in range(4): fin(f"v_add_f32 {tv[r]}, 1.0, {tv[r]}")
            for r in range(4): fin(f"v_rcp_f32 {tv[r]}, {tv[r]}")
            for r in range(4): fin(f"v_mul_f32 {yv[r]}, {yv[r]}, {tv[r]}")
            xb = 100 + (jj * 2 + tb) * 2
            fin(f"v_lshlrev_b32 {tv[0]}, 16, v{xb}\nv_and_b32 {tv[1]}, 0xffff0000, v{xb}\nv_lshlrev_b32 {tv[2]}, 16, v{xb+1}\nv_and_b32 {tv[3]}, 0xffff0000, v{xb+1}")
            for r in range(4): fin(f"v_fma_f32 {sv[r]}, {sv[r]}, {yv[r]}, {tv[r]}")
            ob = 72 + 2 * ((jj * 2 + tb) & 1)
            fin(f"v_cvt_pk_bf16_f32 v{ob}, {sv[0]}, {sv[1]}\nv_cvt_pk_bf16_f32 v{ob+1}, {sv[2]}, {sv[3]}")
            fin(f"buffer_store_dwordx2 v[{ob}:{ob+1}], v{3+tb}, s[12:15], s37 offen offset:{jj*32}")
    if opts.get("time"):
        fin("s_waitcnt vmcnt(0)")
        T(fin, 8)
        fin(f"""
        s_waitcnt lgkmcnt(0)
        s_lshl_b32 s6, s2, 2
        s_add_u32 s6, s6, s3
        s_lshl_b32 s6, s6, 6
        s_add_u32 s6, s6, {WS_TIME + 65536}
        v_mov_b32 v3, s6
        """)
        for k_, i in enumerate((0, 9, 10, 11, 8)):
            fin(f"v_mov_b32 v2, s{SB(i)}\nbuffer_store_dword v2, v3, {SRD_WS}, 0 offen offset:{4*k_}")
        for i in range(2):
            fin(f"v_mov_b32 v2, s{64+2*i}\nbuffer_store_dword v2, v3, {SRD_WS}, 0 offen offset:{32+4*i}")
    fin("KB_end:\ns_endpgm")
    po2, st = lin(post.insts, None, [])
    b0, st = auto_wait_loop(body0, st); b0 = merge_adjacent_waits(b0)
    b1, st = auto_wait_loop(body1, st); b1 = merge_adjacent_waits(b1)
    f2, st = lin(fin.insts, st, b1[-40:])
    for nm, seq in (("l3", po2[-40:] + b0 + b0 + b1 + b1 + f2[:30]),):
        for p_ in check_hazards(seq): print("HAZARD", nm, p_, file=sys.stderr)
    return po2 + [Inst("K3_loop0:")] + b0 + mid + [Inst("K3_loop1:")] + b1 + f2

def gen(opts):
    hdr = f"""; @launch kernel=attn_kernel grid=(256,1,1) block=(256,1,1) lds=131328
; @launch kernel=oproj_kernel grid=(256,1,1) block=(256,1,1) lds=131072
.amdgcn_target "amdgcn-amd-amdhsa--gfx950"
.text
"""
    return hdr + kernel_text("attn_kernel", gen_ka(opts), 512, 256) + kernel_text("oproj_kernel", gen_kb(opts) + [Inst("TEXT_END:")], 384, 256)

if __name__ == "__main__":
    opts = {}
    for a in sys.argv[2:]:
        k, _, v = a.partition("=")
        opts[k] = int(v) if v else 1
    open(sys.argv[1], "w").write(gen(opts))
```

```python
import sys
sys.path.insert(0, "dev")
from asmdsl import *
from gen import (S, P, NEGM, Q, L, O, KF, VF, S_OFF, k_read, v_reads, dma_list, H)

ONES_A = "v[128:131]"
def LACC(qb):
    b = 132 + (qb - 2) * 4
    return f"v[{b}:{b+3}]"

def emit_phase2(p, opts, carry):
    NS = opts.get("nsum", 2)
    do_qk = (p + 1) < H
    do_pv = (p - 1) >= 0
    do_sm = 0 <= p < H
    sb = p & 1
    mf = []
    for u in range(8):
        kb, qb = u >> 2, u & 3
        for ds in range(4):
            if do_qk:
                c = NEGM(qb) if ds == 0 else S(sb ^ 1, kb, qb)
                if p == -1 and ds == 0: c = "0"
                mf.append(Inst(f"v_mfma_f32_16x16x32_bf16 {S(sb^1,kb,qb)}, {KF(kb*4+ds)}, {Q(qb,ds)}, {c}"))
            else: mf.append(None)
        for q2 in range(4):
            mf.append(Inst(f"v_mfma_f32_16x16x32_bf16 {O(u,q2)}, {VF(u)}, {P(sb^1,q2)}, {O(u,q2)}") if do_pv else None)
    ins_after = {2: {3: 2, 7: 3}, 4: {1: 0, 3: 1, 5: 2, 7: 3}, 0: {}}[NS]
    seq = []; newidx = {}
    for k, m in enumerate(mf):
        newidx[k] = len(seq); seq.append(m)
        u = k >> 3
        if (k & 7) == 7 and u in ins_after:
            qb = ins_after[u]
            seq.append(Inst(f"v_mfma_f32_16x16x32_bf16 {LACCN(qb, NS)}, {ONES_A}, {P(sb^1,qb)}, {LACCN(qb, NS)}") if do_pv else None)
    NG = len(seq)
    mem = [[] for _ in range(NG + 1)]; pre = [[] for _ in range(NG + 1)]; fixed = [[] for _ in range(NG + 1)]
    ni = lambda k: newidx[k]
    for u in range(8):
        pp, uu = (p, u + 4) if u < 4 else (p + 1, u - 4)
        if 0 <= pp - 1 < H:
            vr = v_reads(pp - 1, uu)
            mem[ni(8 * u + 3)].append(vr[0]); mem[ni(8 * u + 7)].append(vr[1])
    kpos = [1, 5, 13, 21]
    for j in range(4):
        if 0 <= p + 1 < H: mem[ni(kpos[j])].append(k_read(p + 1, 4 + j))
        if 0 <= p + 2 < H: mem[ni(32 + kpos[j])].append(k_read(p + 2, j))
    if p % 2 == 0 and p >= 0:
        T = p // 2
        if T < 32:
            nvm = 8 if T + 1 < 32 else 0
            if T + 1 == 31: nvm = 4
            nvm += opts.get("vmadj", {}).get(T, 0)
            if opts.get("kvtouch") and 1 <= T <= 28: nvm += 1
            if opts.get("kvtouch") and p <= 56:
                mem[ni(34)].append(Inst(f"buffer_load_dword v{248 + (T & 3)}, v243, s[56:59], {S_OFF} offen"))
            pre[ni(32)].append(Inst(f"s_waitcnt vmcnt({nvm})"))
            pre[ni(32)].append(Inst("s_barrier"))
    for gp, lst in opts.get("extra", {}).get(p, []):
        for ins in lst:
            (mem if ins.kind in ("vmem", "dma", "lds") else fixed)[ni(gp)].append(ins)
    if p % 2 == 0:
        T = p // 2; slots = [(38, 0), (46, 1), (54, 2)]
    else:
        T = (p - 1) // 2; slots = [(6, 3), (14, 4), (22, 5), (30, 6), (38, 7)]
    if p >= 0 and T + 2 <= 31:
        dl = dma_list(T + 2)
        for gp, idx in slots:
            if T + 2 == 31 and idx < 4: continue
            d = dl[idx]
            fixed[ni(gp) - 1] += d[:-1]
            mem[ni(gp)] += d[-1:]
        if p % 2 == 1:
            fixed[ni(47)].append(Inst(f"s_add_u32 {S_OFF}, {S_OFF}, 16384"))
    for u in range(8):
        kb = u >> 2
        if u % 4 == 0 and do_qk: pre[ni(8 * u)].insert(0, Hint(*[KF(kb * 4 + ds) for ds in range(4)]))
        if u % 2 == 0 and do_pv: pre[ni(8 * u + (0 if u % 4 == 0 else 4))].insert(0, Hint(VF(u), VF(u + 1)))
    nwait = [0] * (NG + 1)
    for k in range(1, NG):
        n = sum(1 for i in pre[k] if i.kind in ("wait", "barrier"))
        h = any(i.kind == "hint" for i in pre[k])
        nwait[k - 1] = n + (1 if (h and not any(i.kind == "wait" for i in pre[k])) else 0)
    exps = [];
    if do_sm:
        for e in range(32):
            kb, qb, r = e >> 4, (e >> 2) & 3, e & 3
            exps.append((e, kb, qb, r))
    ready = [(0, dl, c) for dl, c in carry]
    gaps = [[] for _ in range(NG + 1)]
    ei = 0
    placed_exp = {}
    for k in range(NG):
        cap = 2 - len(mem[k]) - len(fixed[k]) - nwait[k]
        if seq[k] is None: cap = 2 - len(fixed[k])
        for x in [t for t in ready if t[1] <= k and t[0] <= k]:
            ready.remove(x); gaps[k].append(x[2]); cap -= 1
        while cap > 0:
            avail = [x for x in ready if x[0] <= k]
            want_exp = ei < len(exps) and cap >= 2
            if want_exp and (ei * NG <= (k + 1) * 32 + opts.get("lead", 40)):
                e, kb, qb, r = exps[ei]; ei += 1
                gaps[k].append(Inst(f"v_exp_f32 {S(sb,kb,qb,r)}, {S(sb,kb,qb,r)}"))
                if qb < 4 - NS:
                    ready.append((k + 1, NG + 8 * (4 * kb + qb) - 2, Inst(f"v_add_f32 {L(qb)}, {L(qb)}, {S(sb,kb,qb,r)}")))
                if r & 1:
                    ready.append((k + 1, min(NG + 1, NG + 8 * (4 * kb + qb) - 2), Inst(f"v_cvt_pk_bf16_f32 {P(sb,qb,kb*2+(r>>1))}, {S(sb,kb,qb,r-1)}, {S(sb,kb,qb,r)}")))
                cap -= 2
            elif avail:
                x = min(avail, key=lambda t: t[1]); ready.remove(x); gaps[k].append(x[2]); cap -= 1
                assert x[1] >= k or seq[k] is None or True
            else: break
    while ei < len(exps):
        e, kb, qb, r = exps[ei]; ei += 1
        gaps[NG - 1].append(Inst(f"v_exp_f32 {S(sb,kb,qb,r)}, {S(sb,kb,qb,r)}"))
        if qb < 4 - NS: ready.append((0, NG + 8 * (4 * kb + qb) - 2, Inst(f"v_add_f32 {L(qb)}, {L(qb)}, {S(sb,kb,qb,r)}")))
        if r & 1: ready.append((0, NG + 1, Inst(f"v_cvt_pk_bf16_f32 {P(sb,qb,kb*2+(r>>1))}, {S(sb,kb,qb,r-1)}, {S(sb,kb,qb,r)}")))
    newcarry = [(x[1] - NG, x[2]) for x in ready]
    if opts.get("verbose"): print("phase", p, "carry", [(d, i.text[:24]) for d, i in newcarry], file=sys.stderr)
    out = []
    for k in range(NG):
        out += pre[k]
        if seq[k] is not None: out.append(seq[k])
        out += mem[k]; out += gaps[k]; out += fixed[k]
    return out, newcarry

LREGS = [132, 136, 140, 232]
def LACCN(qb, NS):
    b = LREGS[qb - (4 - NS)]
    return f"v[{b}:{b+3}]"
```

```python
import sys, math
sys.path.insert(0, "dev")
from asmdsl import *
from gen import (NAME, WS_XN, WS_ACT, WS_SLAB, WS_TIME, LOG2E, QSCALE, f32hex, kernel_text, finish, rbf16,
                 S, P, NEGM, Qb, Q, VKA, VVA, VOFFK, VOFFV, L, O, KF, VF, SRD_K, SRD_V, SRD_K0, SRD_WS, S_OFF, S_WB, S_CNT,
                 SRD_WQ, SRD_G, SRD_U, k_read, v_reads, dma_k, dma_v, emit_phase)
from gen2 import ln_rows
from phase2 import emit_phase2, LACCN, ONES_A, LREGS
import gen as _g

SRD_DBG = "s[72:73]"
SB = lambda i: 80 + (i % 11) * 2 if i < 11 else 60 + (i - 11) * 2
CY = {1: 64, 2: 66, 3: 68, 4: 70, 9: 64, 10: 66}
def stamp(pr, opts, idx):
    if opts.get("time"):
        b = SB(idx)
        pr(f"s_memrealtime s[{b}:{b+1}]")
        if idx in CY: pr(f"s_memtime s[{CY[idx]}:{CY[idx]+1}]")

def poll(pr, label, addr_v, thresh, shift=None, sleep=2, cache="sc1"):
    pr(f"""
    {label}:
    global_load_dword v5, {addr_v}, {SRD_DBG} {cache}
    s_waitcnt vmcnt(0)
    v_readfirstlane_b32 s75, v5
    """)
    if shift is not None:
        pr(f"s_lshr_b32 s75, s75, {shift}\ns_and_b32 s75, s75, 0xff")
    pr(f"""
    s_cmp_ge_u32 s75, {thresh}
    s_cbranch_scc1 {label}_ok
    s_sleep {sleep}
    s_branch {label}
    {label}_ok:
    """)

def lin(insts, st, prev):
    a, st = auto_wait_linear(insts, st)
    a = merge_adjacent_waits(a)
    n = len(prev)
    return check_hazards(prev + a, fix=True)[n:], st

def issue_groups(pr, groups):
    for d in groups:
        pr.extend(d[:-1])
        if len(d) > 1: pr("s_nop 0")
        pr.extend(d[-1:])

def QACC(cb, tb, r=None):
    b = 16 + (cb * 4 + tb) * 4
    return f"v[{b}:{b+3}]" if r is None else f"v{b+r}"
def GACC(cb, tb, r=None):
    b = (cb * 4 + tb) * 4
    return f"a[{b}:{b+3}]" if r is None else f"a{b+r}"
def UACC(cb, tb, r=None):
    b = 64 + (cb * 4 + tb) * 4
    return f"a[{b}:{b+3}]" if r is None else f"a{b+r}"
def AF(cb, u=None):
    b = 128 + cb * 4
    if u is None: return f"a[{b}:{b+3}]"
    return f"a[{b+2*u}:{b+2*u+1}]"
def BF(st, tb):
    b = 144 + st * 16 + tb * 4
    return f"v[{b}:{b+3}]"
VA_Q = lambda ds: f"v{230+ds}"
VA_G = lambda cb: f"v{234+cb}"
VO_X = "v238"; VO_WQ = lambda ii: f"v{239+ii}"; VO_G = "v241"
S_OX = "s50"; S_OWQ = "s51"; S_OGU = "s52"
S_MWQ = "s55"; S_MG = "s56"; S_MU = "s57"
GW = 65536

def a_reads(cb, stage):
    if cb < 8:
        ds, h = cb >> 1, cb & 1
        return [Inst(f"ds_read_b64_tr_b16 {AF(cb,u)}, {VA_Q(ds)} offset:{stage*16384 + 8*h + 1024*u}") for u in range(2)]
    mat, c2 = (cb - 8) >> 2, (cb - 8) & 3
    return [Inst(f"ds_read_b64_tr_b16 {AF(cb,u)}, {VA_G(c2)} offset:{stage*16384 + 8192 + 4096*mat + 512*u}") for u in range(2)]
def w_dma(stage):
    r = []
    r.append([Inst(f"s_add_u32 m0, {S_MWQ}, {stage*16384}"), Inst(f"buffer_load_dwordx4 {VO_WQ(0)}, {SRD_WQ}, {S_OWQ} offen lds")])
    r.append([Inst(f"buffer_load_dwordx4 {VO_WQ(1)}, {SRD_WQ}, {S_OWQ} offen offset:1024 lds")])
    r.append([Inst(f"s_add_u32 m0, {S_MG}, {stage*16384}"), Inst(f"buffer_load_dwordx4 {VO_G}, {SRD_G}, {S_OGU} offen lds")])
    r.append([Inst(f"s_add_u32 m0, {S_MU}, {stage*16384}"), Inst(f"buffer_load_dwordx4 {VO_G}, {SRD_U}, {S_OGU} offen lds")])
    adv = [Inst(f"s_add_u32 {S_OWQ}, {S_OWQ}, {32*8192}"), Inst(f"s_add_u32 {S_OGU}, {S_OGU}, {32*3584}")]
    return r, adv
def x_loads(st):
    r = [[Inst(f"buffer_load_dwordx4 {BF(st,tb)}, {VO_X}, {SRD_WS}, {S_OX} offen offset:{tb*1024} sc1")] for tb in range(4)]
    return r, [Inst(f"s_add_u32 {S_OX}, {S_OX}, 16384")]

def gemm_period(c, groups, adv, read_next=True, extra=(), nvm=8):
    st = c & 3
    NG = 64
    pre = [[] for _ in range(NG + 1)]; mem = [[] for _ in range(NG + 1)]; gaps = [[] for _ in range(NG + 1)]
    pre[0].append(Hint(*[BF(st, t) for t in range(4)]))
    if nvm is not None: pre[0].append(Inst(f"s_waitcnt vmcnt({nvm})"))
    pre[0].append(Inst("s_barrier"))
    if read_next:
        for cb in range(16):
            rd = a_reads(cb, (c + 1) & 3)
            if cb < 15:
                mem[4 * cb + 4].append(rd[0]); mem[4 * cb + 5].append(rd[1])
            else:
                mem[63].append(rd[0]); mem[63].append(rd[1])
    pos = [2, 6, 10, 14, 18, 22, 26, 30, 34, 38, 42, 46]
    for gp, d in zip(pos, groups):
        gaps[gp - 1] += d[:-1]
        mem[gp] += d[-1:]
    for i, a in enumerate(adv): gaps[48 + i].append(a)
    for gp, lst in extra:
        for ins in lst:
            (mem if ins.kind in ("vmem", "dma", "lds") else gaps)[gp].append(ins)
    out = []
    for cb in range(16):
        if cb % 4 == 0:
            pre[4 * cb].insert(0, Hint(*[AF(c_) for c_ in range(cb, cb + 4)]))
        for tb in range(4):
            k = 4 * cb + tb
            d = QACC(cb, tb) if cb < 8 else GACC(cb - 8, tb) if cb < 12 else UACC(cb - 12, tb)
            out += pre[k]
            out.append(Inst(f"v_mfma_f32_16x16x32_bf16 {d}, {AF(cb)}, {BF(st,tb)}, {d}"))
            out += mem[k]; out += gaps[k]
    return out

def act_lane_offset(pr, dst0, dst1=None):
    pr(f"""
    v_and_b32 v2, 15, v1
    v_lshrrev_b32 v3, 4, v1
    v_bfe_u32 v4, v1, 2, 1
    v_lshlrev_b32 v4, 1, v4
    v_bfe_u32 v5, v1, 3, 1
    v_mul_u32_u24 v5, 3, v5
    v_xor_b32 v4, v4, v5
    v_xor_b32 v4, v4, v3
    v_lshlrev_b32 v4, 4, v4
    v_lshl_add_u32 {dst0}, v2, 6, v4
    """)
    if dst1: pr(f"v_add_u32 {dst1}, 8192, {dst0}")


def code_touch(pr, start_label, end_label, idx_sgpr, nblk, vt=(250, 251, 252)):
    a, b, d = vt
    pr(f"""
    s_getpc_b64 s[78:79]
    CT_{start_label}:
    s_sub_u32 s78, s78, CT_{start_label}-{start_label}
    s_subb_u32 s79, s79, 0
    s_lshl_b32 s77, {idx_sgpr}, 13
    v_lshlrev_b32 v{a}, 7, v1
    v_add_u32 v{a}, s77, v{a}
    v_min_u32 v{a}, {end_label}-{start_label}-4, v{a}
    v_mov_b32 v{b}, s79
    v_add_co_u32 v{a}, vcc, s78, v{a}
    v_addc_co_u32 v{b}, vcc, 0, v{b}, vcc
    global_load_dword v{d}, v[{a}:{b}], off
    """)

def gen_ka(opts):
    global emit_phase
    NS = opts.get('nsum', 2) if opts.get('ph2', 1) else 0
    emit_phase = emit_phase2 if opts.get('ph2', 1) else _g.emit_phase
    opts = dict(opts); opts['nsum'] = NS
    T = lambda pr, idx: stamp(pr, opts, idx)
    pr = Prog()
    pr("s_cmp_ge_u32 s2, 256\ns_cbranch_scc1 KA_end")
    T(pr, 0)
    pr(f"""
    s_load_dwordx2 s[76:77], s[0:1], 0
    s_load_dwordx2 s[34:35], s[0:1], 88
    s_load_dwordx4 s[28:31], s[0:1], 8
    s_load_dwordx2 s[32:33], s[0:1], 24
    s_load_dwordx4 s[40:43], s[0:1], 48
    s_load_dwordx2 s[72:73], s[0:1], 80
    v_and_b32 v1, 63, v0
    v_lshrrev_b32 v2, 6, v0
    s_nop 0
    v_readfirstlane_b32 s3, v2
    s_and_b32 s4, s2, 7
    s_lshl_b32 s4, s4, 2
    s_lshr_b32 s5, s2, 3
    s_and_b32 s6, s5, 3
    s_add_u32 s4, s4, s6
    s_lshr_b32 s5, s2, 5
    s_lshl_b32 {S_WB}, s3, 12
    s_lshl_b32 s16, s5, 8
    s_lshl_b32 s17, s4, 3
    s_add_u32 s16, s16, s17
    s_lshl_b32 s17, s3, 1
    s_add_u32 s16, s16, s17
    s_lshl_b32 s17, s16, 10
    v_lshlrev_b32 v2, 4, v1
    s_waitcnt lgkmcnt(0)
    s_mov_b32 s8, s76
    s_and_b32 s9, s77, 0xffff
    s_mov_b32 s10, {2048*1024}
    s_mov_b32 s11, 0x20000
    buffer_load_dwordx4 v[4:7], v2, s[8:11], s17 offen
    buffer_load_dwordx4 v[8:11], v2, s[8:11], s17 offen offset:1024
    s_mov_b32 s20, s34
    s_and_b32 s21, s35, 0xffff
    s_mov_b32 s22, 0x10000000
    s_mov_b32 s23, 0x20000
    s_mov_b32 s36, s32
    s_and_b32 s37, s33, 0xffff
    s_mov_b32 s38, {0 if opts.get("kanow") else 512*8192}
    s_mov_b32 s39, 0x20000
    s_mov_b32 s44, s42
    s_and_b32 s45, s43, 0xffff
    s_and_b32 s41, s41, 0xffff
    s_cmp_lt_u32 s4, 28
    s_cselect_b32 s42, {0 if opts.get("kanow") else 512*3584}, 0
    s_mov_b32 s46, s42
    s_mov_b32 s43, 0x20000
    s_mov_b32 s47, 0x20000
    s_lshl_b32 {S_OX}, s5, 18
    s_add_u32 {S_OX}, {S_OX}, {WS_XN}
    s_add_u32 {S_OX}, {S_OX}, {S_WB}
    {"s_mov_b32 s50, 0xf0000000" if opts.get("kanox") else ""}
    s_lshl_b32 {S_OWQ}, s4, 8
    s_lshl_b32 {S_OGU}, s4, 7
    s_lshl_b32 s6, s3, 11
    s_add_u32 {S_MWQ}, s6, {GW}
    s_lshl_b32 s6, s3, 10
    s_add_u32 {S_MG}, s6, {GW + 8192}
    s_add_u32 {S_MU}, s6, {GW + 12288}
    v_lshrrev_b32 v12, 4, v1
    v_and_b32 v13, 15, v1
    v_lshlrev_b32 v14, 2, v12
    v_xor_b32 v14, v14, v13
    v_lshlrev_b32 v14, 4, v14
    s_lshl_b32 s6, s3, 3
    v_add_u32 v15, s6, v12
    v_lshlrev_b32 v15, 13, v15
    v_add_u32 {VO_WQ(0)}, v15, v14
    v_add_u32 {VO_WQ(1)}, {4*8192-1024}, {VO_WQ(0)}
    v_lshrrev_b32 v12, 3, v1
    v_and_b32 v13, 7, v1
    v_bfe_u32 v14, v1, 4, 1
    s_and_b32 s7, s3, 1
    s_lshl_b32 s7, s7, 1
    v_or_b32 v14, s7, v14
    v_lshlrev_b32 v14, 1, v14
    v_xor_b32 v14, v14, v13
    v_add_u32 v15, s6, v12
    s_movk_i32 s7, 3584
    v_mul_lo_u32 v15, v15, s7
    v_lshl_add_u32 {VO_G}, v14, 4, v15
    """)
    for c in range(3):
        gr, adv = w_dma(c)
        issue_groups(pr, gr); pr.extend(adv)
    if opts.get("ctouch", 0):
        pr("""
        s_lshr_b32 s6, s2, 3
        s_lshl_b32 s6, s6, 2
        s_add_u32 s6, s6, s3
        s_mul_i32 s7, s6, 43
        s_lshr_b32 s7, s7, 8
        s_mul_i32 s7, s7, 6
        s_sub_u32 s6, s6, s7
        """)
        code_touch(pr, "attn_kernel", "TEXT_END", "s6", 6)
    pr(f"""
    v_bfe_u32 v3, v1, 2, 3
    v_lshlrev_b32 v3, 14, v3
    v_lshrrev_b32 v12, 5, v1
    v_lshl_add_u32 v3, v12, 6, v3
    v_and_b32 v12, 3, v1
    s_lshr_b32 s18, s16, 8
    s_lshl_b32 s18, s18, 18
    s_and_b32 s19, s16, 255
    s_lshl_b32 s6, s19, 6
    s_add_u32 s18, s18, s6
    s_add_u32 s18, s18, {WS_XN}
    s_lshr_b32 s6, s19, 2
    s_and_b32 s6, s6, 3
    s_and_b32 s7, s6, 1
    s_lshl_b32 s7, s7, 1
    s_lshr_b32 s6, s6, 1
    s_mul_i32 s6, s6, 3
    s_xor_b32 s7, s7, s6
    v_xor_b32 v12, s7, v12
    v_lshl_add_u32 v3, v12, 4, v3
    """)
    ln_rows(pr, opts)
    pr(f"""
    s_lshl_b32 s6, s4, 19
    s_add_u32 s16, s28, s6
    s_addc_u32 s17, s29, 0
    s_and_b32 s17, s17, 0xffff
    s_mov_b32 s18, 524288
    s_mov_b32 s19, 0x20000
    s_add_u32 s8, s16, 16384
    s_addc_u32 s9, s17, 0
    s_mov_b32 s10, {524288-16384}
    s_mov_b32 s11, 0x20000
    s_add_u32 s12, s30, s6
    s_addc_u32 s13, s31, 0
    s_and_b32 s13, s13, 0xffff
    s_mov_b32 s14, 524288
    s_mov_b32 s15, 0x20000
    """)
    pr("s_waitcnt vmcnt(0)\ns_barrier")
    T(pr, 6)
    pr(f"""
    s_and_b32 s6, s5, 3
    s_lshl_b32 s6, s6, 6
    s_lshr_b32 s7, s5, 2
    s_lshl_b32 s7, s7, 2
    s_add_u32 s74, s6, s7
    s_cmp_lg_u32 s3, 0
    s_cbranch_scc1 K_xn_skip
    v_mov_b32 v2, s74
    v_mov_b32 v4, 1
    s_mov_b64 exec, 1
    global_atomic_add v2, v4, {SRD_DBG} sc1
    s_mov_b64 exec, -1
    K_xn_skip:
    """)
    pr(f"""
    v_bfe_u32 v2, v1, 2, 2
    v_and_b32 v3, 3, v1
    v_lshrrev_b32 v4, 4, v1
    v_lshl_add_u32 v5, v4, 3, v2
    v_lshlrev_b32 v6, 8, v5
    v_add_u32 v6, {GW}, v6
    v_lshlrev_b32 v7, 2, v2
    """)
    for ds in range(4):
        pr(f"""
        v_add_u32 v8, {4*ds}, v3
        v_xor_b32 v8, v8, v7
        v_lshl_add_u32 {VA_Q(ds)}, v8, 4, v6
        """)
    pr(f"""
    v_lshlrev_b32 v6, 7, v5
    v_add_u32 v6, {GW}, v6
    v_and_b32 v7, 1, v3
    v_lshl_add_u32 v6, v7, 3, v6
    v_bfe_u32 v7, v1, 3, 1
    v_and_b32 v8, 1, v4
    v_lshl_or_b32 v7, v8, 1, v7
    v_lshlrev_b32 v7, 1, v7
    v_lshrrev_b32 v9, 1, v3
    """)
    for cb in range(4):
        pr(f"""
        v_add_u32 v8, {2*cb}, v9
        v_xor_b32 v8, v8, v7
        v_lshl_add_u32 {VA_G(cb)}, v8, 4, v6
        """)
    act_lane_offset(pr, VO_X)
    pr(f"""
    v_lshrrev_b32 v2, 4, v1
    v_and_b32 v3, 15, v1
    v_lshlrev_b32 v4, 8, v2
    v_add_u32 v4, {S_WB}, v4
    """)
    for ii in range(4):
        pr(f"""
        v_add_u32 v5, {4*ii}, v2
        v_xor_b32 v5, v5, v3
        v_lshl_add_u32 {VOFFK(ii)}, v5, 4, v4
        """)
    for par in range(2):
        pr(f"""
        v_add_u32 v5, {4*par}, v2
        v_lshlrev_b32 v5, 1, v5
        v_xor_b32 v5, v5, v3
        v_lshl_add_u32 {VOFFV(par)}, v5, 4, v4
        """)
    pr(f"""
    v_and_b32 v2, 15, v1
    v_lshrrev_b32 v3, 4, v1
    v_lshlrev_b32 v5, 8, v2
    """)
    for ds in range(4):
        pr(f"""
        v_add_u32 v6, {4*ds}, v3
        v_xor_b32 v6, v6, v2
        v_lshl_add_u32 {VKA(ds)}, v6, 4, v5
        """)
    pr(f"""
    v_bfe_u32 v2, v1, 2, 2
    v_and_b32 v3, 3, v1
    v_lshrrev_b32 v4, 4, v1
    v_lshl_add_u32 v6, v4, 2, v2
    v_and_b32 v8, 7, v6
    v_lshlrev_b32 v8, 1, v8
    v_lshlrev_b32 v6, 8, v6
    v_add_u32 v6, 65536, v6
    v_and_b32 v7, 1, v3
    v_lshl_add_u32 v6, v7, 3, v6
    v_lshrrev_b32 v7, 1, v3
    """)
    for db in range(8):
        pr(f"""
        v_add_u32 v9, {2*db}, v7
        v_xor_b32 v9, v9, v8
        v_lshl_add_u32 {VVA(db)}, v9, 4, v6
        """)
    for i in range(128): pr(f"v_mov_b32 v{16+i}, 0")
    for i in range(128): pr(f"v_accvgpr_write_b32 a{i}, 0")
    for cb in range(16): pr.extend(a_reads(cb, 0))
    pr(f"""
    s_cmp_lg_u32 s3, 0
    s_cbranch_scc1 K_xn_wait
    v_mov_b32 v2, s74
    s_mov_b64 exec, 1
    """)
    poll(pr, "K_xn_poll", "v2", 32)
    pr(f"""
    s_mov_b64 exec, -1
    K_xn_wait:
    s_barrier
    """)
    T(pr, 7)
    for c in range(3):
        gr, adv = x_loads(c)
        issue_groups(pr, gr); pr.extend(adv)
    T(pr, 1)
    pr(f"s_mov_b32 {S_CNT}, 3")
    seg_a = pr.insts
    def full(c):
        xg, xa = x_loads((c + 3) & 3); wg_, wa = w_dma((c + 3) & 3)
        return gemm_period(c, xg + wg_, xa + wa)
    body = []
    for c in range(4): body += full(c)
    body += [Inst(f"s_sub_u32 {S_CNT}, {S_CNT}, 1"), Inst(f"s_cmp_lg_u32 {S_CNT}, 0"), Inst("s_cbranch_scc1 K_gloop")]
    def mk_touch():
        tp = Prog()
        tp(f"""
        s_load_dwordx2 s[40:41], s[0:1], 32
        s_load_dwordx2 s[42:43], s[0:1], 64
        s_and_b32 s51, s2, 3
        s_bfe_u32 s58, s2, 0x30003
        s_lshl_b32 s58, s58, 2
        s_lshr_b32 s59, s2, 6
        s_add_u32 s58, s58, s59
        s_lshl_b32 s58, s58, 2
        s_add_u32 s58, s58, s3
        s_lshl_b32 s58, s58, 4
        s_mul_i32 s59, s51, {24*64}
        s_add_u32 s59, s59, s58
        v_lshlrev_b32 v242, 7, v1
        v_add_u32 v243, 8192, v242
        """)
        tp2 = Prog()
        tp2(f"""
        s_waitcnt lgkmcnt(0)
        s_and_b32 s41, s41, 0xffff
        s_sub_u32 s42, s42, {64*65536}
        s_subb_u32 s43, s43, 0
        s_and_b32 s43, s43, 0xffff
        s_cmp_lt_u32 s59, 4096
        s_cselect_b32 s44, s40, s42
        s_cselect_b32 s45, s41, s43
        s_mov_b32 s46, {92*65536}
        s_cselect_b32 s46, {64*65536}, s46
        s_mov_b32 s47, 0x20000
        s_lshl_b32 s59, s59, 10
        s_cmp_lt_u32 s58, {24*64}
        s_cselect_b32 s59, s59, 0xf0000000
        """)
        tp3 = [Inst("buffer_load_dword v240, v242, s[44:47], s59 offen"), Inst("buffer_load_dword v241, v243, s[44:47], s59 offen")]
        return tp.insts, tp2.insts, tp3
    p2 = Prog()
    p2.extend(full(12))
    p2(f"s_mov_b32 s6, 0\ns_mov_b32 s7, 16384")
    p2.extend(gemm_period(13, dma_k(3, SRD_K0, "0") + dma_v(0, "s6"), []))
    p2.extend(gemm_period(14, dma_k(0, SRD_K, "s6") + dma_v(1, "s7"), []))
    p2.extend(gemm_period(15, dma_k(1, SRD_K, "s7"), [], read_next=False, nvm=None))
    T(p2, 2)
    p2(f"s_mov_b32 s6, {f32hex(QSCALE)}\ns_mov_b32 s7, {f32hex(QSCALE)}\ns_nop 7")
    for tb in range(4):
        for ds in range(4):
            for h in range(2):
                b = 16 + ((2 * ds + h) * 4 + tb) * 4
                p2(f"v_pk_mul_f32 v[{b}:{b+1}], v[{b}:{b+1}], s[6:7]\nv_pk_mul_f32 v[{b+2}:{b+3}], v[{b+2}:{b+3}], s[6:7]")
            for h in range(2):
                cb = 2 * ds + h
                for i in range(2):
                    p2(f"v_cvt_pk_bf16_f32 v{Qb(tb,ds)+2*h+i}, {QACC(cb,tb,2*i)}, {QACC(cb,tb,2*i+1)}")
    p2("s_cmp_ge_u32 s4, 28\ns_cbranch_scc1 K_noh")
    p2(f"""
    s_lshl_b32 s6, s5, 1
    s_lshr_b32 s7, s3, 1
    s_add_u32 s6, s6, s7
    s_mul_i32 s6, s6, 92
    s_add_u32 s6, s6, s4
    s_add_u32 s6, s6, 64
    s_lshl_b32 s6, s6, 14
    s_and_b32 s7, s3, 1
    s_lshl_b32 s7, s7, 12
    s_add_u32 s6, s6, s7
    s_add_u32 s6, s6, {WS_ACT}
    """)
    act_lane_offset(p2, "v2", "v3")
    p2(f"""
    s_mov_b32 s26, {f32hex(-LOG2E)}
    s_mov_b32 s27, {f32hex(-LOG2E)}
    s_mov_b32 s78, 1.0
    s_mov_b32 s79, 1.0
    """)
    for tb in range(4):
        for e in range(2):
            t0 = 16 + e * 32
            for hh in range(2):
                cb = 2 * e + hh
                for r in range(4):
                    j = hh * 4 + r
                    p2(f"v_accvgpr_read_b32 v{t0+j}, {GACC(cb,tb,r)}")
                    p2(f"v_accvgpr_read_b32 v{t0+8+j}, {UACC(cb,tb,r)}")
            pk = lambda op, d, a, b: p2(f"{op} v[{d}:{d+1}], v[{a}:{a+1}], {b}")
            for j in range(0, 8, 2): pk("v_pk_mul_f32", t0 + 16 + j, t0 + j, "s[26:27]")
            for j in range(8): p2(f"v_exp_f32 v{t0+16+j}, v{t0+16+j}")
            for j in range(0, 8, 2): pk("v_pk_mul_f32", t0 + j, t0 + j, f"v[{t0+8+j}:{t0+9+j}]")
            for j in range(0, 8, 2): pk("v_pk_add_f32", t0 + 16 + j, t0 + 16 + j, "s[78:79]")
            for j in range(8): p2(f"v_rcp_f32 v{t0+16+j}, v{t0+16+j}")
            for j in range(0, 8, 2): pk("v_pk_mul_f32", t0 + j, t0 + j, f"v[{t0+16+j}:{t0+17+j}]")
            for i in range(4): p2(f"v_cvt_pk_bf16_f32 v{t0+24+i}, v{t0+2*i}, v{t0+2*i+1}")
            p2(f"buffer_store_dwordx4 v[{t0+24}:{t0+27}], v{2+e}, {SRD_WS}, s6 offen offset:{tb*1024}")
    p2("K_noh:")
    p2("s_mov_b32 s27, 0")
    p3 = Prog()
    p3("K_astart:")
    for i in range(128): p3(f"v_accvgpr_write_b32 a{i}, 0")
    for qb in range(4): p3(f"v_mov_b32 {L(qb)}, 0")
    for i in range(4): p3(f"v_mov_b32 v{128+i}, 0x3f803f80")
    for j in range(NS):
        for i in range(4): p3(f"v_mov_b32 v{LREGS[j]+i}, 0")
    p3(f"s_mov_b32 {S_OFF}, 32768")
    if opts.get("kvtouch"):
        D = opts.get("kvdist", 2) * 16384
        p3(f"""
        s_cmp_lt_u32 s3, 2
        s_cselect_b32 s56, s8, s12
        s_cselect_b32 s57, s9, s13
        s_cselect_b32 s58, s10, s14
        s_add_u32 s56, s56, {D}
        s_addc_u32 s57, s57, 0
        s_sub_u32 s58, s58, {D}
        s_mov_b32 s59, 0x20000
        s_lshl_b32 s6, s5, 11
        s_and_b32 s7, s3, 1
        s_lshl_b32 s7, s7, 10
        s_add_u32 s6, s6, s7
        v_lshlrev_b32 v243, 4, v1
        v_add_u32 v243, s6, v243
        """)
    p3("s_waitcnt vmcnt(0) lgkmcnt(0)\ns_barrier")
    T(p3, 3)
    for f in range(4): p3.add(k_read(0, f))
    ph, carry = emit_phase(-1, opts, [])
    p3.extend(ph)
    p3("s_cmp_lg_u32 s27, 0\ns_cbranch_scc1 K_havemax")
    p3("s_nop 7")
    for qb in range(4):
        m = f"v{244+qb}"
        p3(f"v_max3_f32 {m}, {S(0,0,qb,0)}, {S(0,0,qb,1)}, {S(0,0,qb,2)}")
        p3(f"v_max3_f32 {m}, {m}, {S(0,0,qb,3)}, {S(0,1,qb,0)}")
        p3(f"v_max3_f32 {m}, {m}, {S(0,1,qb,1)}, {S(0,1,qb,2)}")
        p3(f"v_max_f32 {m}, {m}, {S(0,1,qb,3)}")
        p3(f"v_mov_b32 v248, {m}")
        p3(f"v_permlane32_swap_b32 v248, {m}")
        p3(f"v_max_f32 {m}, {m}, v248")
        p3(f"v_mov_b32 v248, {m}")
        p3(f"v_permlane16_swap_b32 v248, {m}")
        p3(f"v_max_f32 {m}, {m}, v248")
    p3("K_havemax:")
    p3("s_nop 7")
    for qb in range(4):
        m = f"v{244+qb}"
        for r in range(4): p3(f"v_sub_f32 {NEGM(qb,r)}, 0, {m}")
        for kb in range(2):
            for r in range(4): p3(f"v_sub_f32 {S(0,kb,qb,r)}, {S(0,kb,qb,r)}, {m}")
    p2 = (p2, p3); p2a, p2 = p2
    ph, carry = emit_phase(0, opts, carry)
    p2.extend(ph)
    p2(f"s_mov_b32 {S_CNT}, 7")
    abody = []
    c2 = carry
    for p in range(1, 9):
        ph, c2 = emit_phase(p, opts, c2)
        abody += ph
    abody += [Inst(f"s_sub_u32 {S_CNT}, {S_CNT}, 1"), Inst(f"s_cmp_lg_u32 {S_CNT}, 0"), Inst("s_cbranch_scc1 K_aloop")]
    if opts.get("wtouch", 1):
        opts = dict(opts)
        ta, tb_, tc = mk_touch()
        opts["extra"] = {58: [(3, ta)], 59: [(41, tb_), (50, tc[:1]), (54, tc[1:])]}
        opts["vmadj"] = {30: 2, 31: 2}
    tail = []
    c3 = c2
    for p in range(57, 65):
        ph, c3 = emit_phase(p, opts, c3)
        tail += ph
    tail += [c[1] if isinstance(c, tuple) else c for c in c3]
    post = Prog()
    T(post, 4)
    for qb in range(4):
        if qb >= 4 - NS:
            post(f"v_mov_b32 {L(qb)}, v{LREGS[qb - (4 - NS)]}")
            continue
        post(f"""
        v_mov_b32 v248, {L(qb)}
        v_permlane32_swap_b32 v248, {L(qb)}
        v_add_f32 {L(qb)}, {L(qb)}, v248
        v_mov_b32 v248, {L(qb)}
        v_permlane16_swap_b32 v248, {L(qb)}
        v_add_f32 {L(qb)}, {L(qb)}, v248
        """)
    post(f"""
    v_max3_f32 v248, {L(0)}, {L(1)}, {L(2)}
    v_max_f32 v248, v248, {L(3)}
    v_add_f32 v249, {L(0)}, {L(1)}
    v_add_f32 v250, {L(2)}, {L(3)}
    v_add_f32 v249, v249, v250
    s_mov_b32 s6, {f32hex(float(2**24))}
    v_cmp_nlt_f32 vcc, v248, s6
    v_cmp_u_f32 s[6:7], v249, v249
    s_or_b64 vcc, vcc, s[6:7]
    s_cmp_lg_u64 vcc, 0
    s_cselect_b32 s6, 1, 0
    v_mov_b32 v248, s6
    v_mov_b32 v249, 131072
    v_lshl_add_u32 v250, s3, 2, v249
    ds_write_b32 v250, v248
    s_waitcnt lgkmcnt(0)
    s_barrier
    ds_read_b128 v[248:251], v249
    s_waitcnt lgkmcnt(0)
    v_or3_b32 v248, v248, v249, v250
    v_or_b32 v248, v248, v251
    s_nop 0
    v_readfirstlane_b32 s6, v248
    s_xor_b32 s7, s27, 1
    s_and_b32 s6, s6, s7
    s_cmp_lg_u32 s6, 0
    s_cbranch_scc1 K_fallback
    """)
    for qb in range(4): post(f"v_rcp_f32 {L(qb)}, {L(qb)}")
    post(f"""
    s_lshl_b32 s6, s5, 1
    s_lshr_b32 s7, s3, 1
    s_add_u32 s6, s6, s7
    s_mul_i32 s6, s6, 92
    s_lshl_b32 s7, s4, 1
    s_add_u32 s6, s6, s7
    s_lshl_b32 s6, s6, 14
    s_and_b32 s7, s3, 1
    s_lshl_b32 s7, s7, 12
    s_add_u32 s6, s6, s7
    s_add_u32 s52, s6, {WS_ACT}
    s_add_u32 s53, s52, 16384
    """)
    act_lane_offset(post, "v2", "v3")
    for qb in range(4):
        lp = 226 + (qb & ~1)
        osel = "op_sel:[0,0] op_sel_hi:[1,0]" if qb % 2 == 0 else "op_sel:[0,1] op_sel_hi:[1,1]"
        for e in range(4):
            t0 = 16 + (e & 1) * 16
            for hh in range(2):
                for r in range(4):
                    post(f"v_accvgpr_read_b32 v{t0+hh*4+r}, {O(2*e+hh,qb,r)}")
            for j in range(0, 8, 2): post(f"v_pk_mul_f32 v[{t0+j}:{t0+j+1}], v[{t0+j}:{t0+j+1}], v[{lp}:{lp+1}] {osel}")
            for i in range(4): post(f"v_cvt_pk_bf16_f32 v{t0+8+i}, v{t0+2*i}, v{t0+2*i+1}")
            post(f"buffer_store_dwordx4 v[{t0+8}:{t0+11}], v{2+(e&1)}, {SRD_WS}, s{52+(e>>1)} offen offset:{qb*1024}")
    if opts.get("time"):
        post("s_waitcnt vmcnt(0)")
        T(post, 5)
        post(f"""
        s_waitcnt lgkmcnt(0)
        s_lshl_b32 s6, s2, 2
        s_add_u32 s6, s6, s3
        s_lshl_b32 s6, s6, 6
        s_add_u32 s6, s6, {WS_TIME}
        v_mov_b32 v3, s6
        """)
        for i in range(8):
            post(f"v_mov_b32 v2, s{SB(i)}\nbuffer_store_dword v2, v3, {SRD_WS}, 0 offen offset:{4*i}")
        for i in range(4):
            post(f"v_mov_b32 v2, s{64+2*i}\nbuffer_store_dword v2, v3, {SRD_WS}, 0 offen offset:{32+4*i}")
    post("KA_end:\ns_endpgm")
    fb = Prog()
    fb(f"""
    K_fallback:
    s_waitcnt vmcnt(0) lgkmcnt(0)
    s_barrier
    s_mov_b32 s27, 1
    v_and_b32 v2, 15, v1
    v_lshrrev_b32 v3, 4, v1
    v_lshlrev_b32 v2, 8, v2
    v_lshl_add_u32 v2, v3, 4, v2
    s_mov_b32 s6, 0
    """)
    for qb in range(4): fb(f"v_mov_b32 v{244+qb}, 0xff800000")
    fb("K_fb_loop:")
    for ds in range(4):
        fb(f"buffer_load_dwordx4 v[{16+4*ds}:{19+4*ds}], v2, {SRD_K0}, s6 offen offset:{64*ds}")
    fb("s_waitcnt vmcnt(0)")
    for qb in range(4):
        for ds in range(4):
            c = "0" if ds == 0 else f"v[{32+4*qb}:{35+4*qb}]"
            fb(f"v_mfma_f32_16x16x32_bf16 v[{32+4*qb}:{35+4*qb}], v[{16+4*ds}:{19+4*ds}], {Q(qb,ds)}, {c}")
    fb("s_nop 15")
    for qb in range(4):
        b = 32 + 4 * qb
        fb(f"v_max3_f32 v{244+qb}, v{244+qb}, v{b}, v{b+1}")
        fb(f"v_max3_f32 v{244+qb}, v{244+qb}, v{b+2}, v{b+3}")
    fb(f"""
    s_add_u32 s6, s6, 4096
    s_cmp_lt_u32 s6, 524288
    s_cbranch_scc1 K_fb_loop
    """)
    for qb in range(4):
        m = f"v{244+qb}"
        fb(f"""
        v_mov_b32 v248, {m}
        s_nop 1
        v_permlane32_swap_b32 v248, {m}
        v_max_f32 {m}, {m}, v248
        v_mov_b32 v248, {m}
        s_nop 1
        v_permlane16_swap_b32 v248, {m}
        v_max_f32 {m}, {m}, v248
        """)
    fb("s_mov_b32 s6, 0\ns_mov_b32 s7, 16384")
    issue_groups(fb, dma_k(3, SRD_K0, "0") + dma_v(0, "s6") + dma_k(0, SRD_K, "s6") + dma_v(1, "s7") + dma_k(1, SRD_K, "s7"))
    fb("s_branch K_astart")
    fb2 = check_hazards([Inst("s_nop 15")] + fb.insts, fix=True)[1:]
    a2, st = lin(seg_a, None, [])
    b2, st = auto_wait_loop(body, st); b2 = merge_adjacent_waits(b2)
    q1, st = lin(p2a.insts, st, b2[-40:])
    q2, st = lin(p2.insts, WaitState(), q1[-40:])
    q2 = q1 + q2
    ab2, st = auto_wait_loop(abody, st); ab2 = merge_adjacent_waits(ab2)
    t2, st = lin(tail, st, ab2[-40:])
    po2, st = lin(post.insts, st, t2[-40:])
    for nm, seq in (("gloop", a2[-60:] + b2 + b2 + q2[:80]), ("aloop", q2[-60:] + ab2 + ab2 + t2 + po2[:40])):
        for p_ in check_hazards(seq): print("HAZARD", nm, p_, file=sys.stderr)
    return a2 + [Inst("K_gloop:")] + b2 + q2 + [Inst("K_aloop:")] + ab2 + t2 + po2 + fb2

def gen_kb(opts):
    T = lambda pr, idx: stamp(pr, opts, idx)
    NCH = 24
    ACC = lambda st_, cb, tb, r=None: (f"v[{16+st_*64+(cb*2+tb)*4}:{16+st_*64+(cb*2+tb)*4+3}]" if r is None else f"v{16+st_*64+(cb*2+tb)*4+r}")
    def AF3(s, cb, u=None):
        b = (s * 8 + cb) * 4
        return f"a[{b}:{b+3}]" if u is None else f"a[{b+2*u}:{b+2*u+1}]"
    R = opts.get('kbR', 4); D = R - 1
    def BF3(st, s, tb):
        b = 64 + st * 16 + (s * 2 + tb) * 4
        return f"a[{b}:{b+3}]"
    VA = lambda cb, hi=0: f"v{208+hi*8+cb}"
    VOW = lambda ii: f"v{224+ii}"; VOA = lambda s: f"v{228+s}"
    SRD_W = "s[8:11]"; SRD_A = "s[12:15]"
    S_GP = "s19"; S_OA = "s24"; S_OW = "s26"; S_MW = "s25"
    PART = "s48"; TM = "s49"; TN = "s50"
    def a_rd(s, cb, stage):
        return [Inst(f"ds_read_b64_tr_b16 {AF3(s,cb,u)}, {VA(cb, stage >> 2)} offset:{(stage & 3)*16384 + (32*s+16*u)*256}") for u in range(2)]
    def sel_w():
        return [Inst(f"s_cmp_lt_u32 {S_GP}, 64"), Inst("s_cselect_b32 s8, s40, s42"), Inst("s_cselect_b32 s9, s41, s43"), Inst(f"s_add_u32 {S_GP}, {S_GP}, {R}")]
    def dma_w(stage):
        r = [[Inst(f"s_add_u32 m0, {S_MW}, {stage*16384}"), Inst(f"buffer_load_dwordx4 {VOW(0)}, {SRD_W}, {S_OW} offen lds")]]
        for ii in range(1, 4):
            r.append([Inst(f"buffer_load_dwordx4 {VOW(ii)}, {SRD_W}, {S_OW} offen offset:{ii*1024} lds")])
        return r, [Inst(f"s_add_u32 {S_OW}, {S_OW}, 65536")]
    def ld_a(st):
        so = S_OA
        if opts.get("kbuniq"):
            so = f"s{60 + (st & 3)}"
        r = [[Inst(f"buffer_load_dwordx4 {BF3(st,s,tb)}, {VOA(s)}, {SRD_A}, {so} offen offset:{tb*1024}")] for s in range(2) for tb in range(2)]
        adv = [Inst(f"s_add_u32 {S_OA}, {S_OA}, 16384")]
        if opts.get("kbuniq"):
            adv = [Inst(f"s_add_u32 s{60+i}, s{60+i}, 16384") for i in range(4)]
        return r, adv
    def period(c, accset):
        st = c % R
        NG = 32
        pre = [[] for _ in range(NG + 1)]; mem = [[] for _ in range(NG + 1)]; gaps = [[] for _ in range(NG + 1)]
        pre[0] += [Hint(*[BF3(st, s, t) for s in range(2) for t in range(2)]), Inst(f"s_waitcnt vmcnt({8*(D-2)})"), Inst("s_barrier")]
        ag, aadv = ld_a((c + D) % R)
        wg_, wadv = dma_w((c + D) % R)
        for s in range(2):
            for cb in range(8):
                k = 2 * (s * 8 + cb) + 2
                rd = a_rd(s, cb, (c + 1) % R)
                if k < 31: mem[k].append(rd[0]); mem[k + 1].append(rd[1])
                else: mem[31].append(rd[0]); mem[31].append(rd[1])
        mem[0] += ag[0]; mem[1] += ag[1]
        if st == 1: gaps[0] += sel_w()[:1]; gaps[1] += sel_w()[1:2]; gaps[2] += sel_w()[2:3]; gaps[3] += sel_w()[3:]
        mem[5] += ag[2]; mem[8] += ag[3]; gaps[9] += aadv
        gaps[11] += wg_[0][:-1]
        for gp, d in zip([12, 16, 20, 24], wg_): mem[gp] += d[-1:]
        gaps[26] += wadv
        out = []
        for s in range(2):
            for cb in range(8):
                if cb == 0 or (s == 0 and cb == 4): pre[2 * (s * 8 + cb)].insert(0, Hint(*[AF3(s, c_) for c_ in range(cb, 8 if s else cb + 4)] + ([AF3(0, c_) for c_ in range(4, 8)] if False else [])))
                for tb in range(2):
                    k = 2 * (s * 8 + cb) + tb
                    d = ACC(accset, cb, tb)
                    out += pre[k]
                    out.append(Inst(f"v_mfma_f32_16x16x32_bf16 {d}, {AF3(s,cb)}, {BF3(st,s,tb)}, {d}"))
                    out += mem[k]; out += gaps[k]
        return out
    post = Prog()
    post("s_cmp_ge_u32 s2, 256\ns_cbranch_scc1 KB_end")
    T(post, 0)
    post(f"""
    s_load_dwordx2 s[40:41], s[0:1], 32
    s_load_dwordx2 s[42:43], s[0:1], 64
    s_load_dwordx2 s[34:35], s[0:1], 88
    s_load_dwordx2 s[30:31], s[0:1], 0
    s_load_dwordx2 s[32:33], s[0:1], 72
    s_load_dwordx2 s[72:73], s[0:1], 80
    v_and_b32 v1, 63, v0
    v_lshrrev_b32 v2, 6, v0
    s_nop 0
    v_readfirstlane_b32 s3, v2
    s_and_b32 {PART}, s2, 3
    s_bfe_u32 {TM}, s2, 0x10002
    s_lshl_b32 {TM}, {TM}, 3
    s_bfe_u32 s6, s2, 0x30003
    s_add_u32 {TM}, {TM}, s6
    s_lshr_b32 {TN}, s2, 6
    s_mul_i32 {S_GP}, {PART}, {NCH}
    s_sub_u32 s14, 92, {S_GP}
    s_min_u32 s14, s14, {NCH}
    s_lshl_b32 s14, s14, 14
    s_mul_i32 s6, {TM}, 92
    s_add_u32 s6, s6, {S_GP}
    s_lshl_b32 s6, s6, 14
    s_add_u32 s36, s6, {WS_ACT}
    s_lshl_b32 {S_OA}, s3, 11
    s_lshl_b32 {S_OW}, {S_GP}, 16
    s_lshl_b32 s7, {TN}, 8
    s_add_u32 {S_OW}, {S_OW}, s7
    s_lshl_b32 {S_MW}, s3, 12
    v_lshrrev_b32 v2, 4, v1
    v_and_b32 v3, 15, v1
    s_lshl_b32 s7, s3, 4
    """)
    for ii in range(4):
        post(f"""
        v_add_u32 v4, {4*(ii&1)}, v2
        v_lshlrev_b32 v4, 1, v4
        v_xor_b32 v4, v4, v3
        v_lshlrev_b32 v4, 4, v4
        v_add_u32 v5, s7, v2
        v_add_u32 v5, {4*ii}, v5
        v_lshl_add_u32 v4, v5, 10, v4
        v_subrev_u32 {VOW(ii)}, {1024*ii}, v4
        """)
    act_lane_offset(post, VOA(0), VOA(1))
    post(f"""
    s_waitcnt lgkmcnt(0)
    s_and_b32 s41, s41, 0xffff
    s_sub_u32 s42, s42, {64*65536}
    s_subb_u32 s43, s43, 0
    s_and_b32 s43, s43, 0xffff
    s_mov_b32 s10, {92*65536}
    s_mov_b32 s11, 0x20000
    s_mov_b32 s20, s34
    s_and_b32 s21, s35, 0xffff
    s_mov_b32 s22, 0x10000000
    s_mov_b32 s23, 0x20000
    s_add_u32 s12, s34, s36
    s_addc_u32 s13, s35, 0
    s_and_b32 s13, s13, 0xffff
    s_mov_b32 s15, 0x20000
    """)
    if opts.get("kbuniq"):
        for i in range(4):
            post(f"s_cmp_eq_u32 {TN}, {i}\ns_cselect_b32 s{60+i}, {S_OA}, 0xf0000000")
        if opts.get("kbuniq") == 2:
            post(f"s_and_b32 s6, {TM}, 7\ns_cmp_eq_u32 s6, 0\ns_cselect_b32 {S_OW}, {S_OW}, 0xf0000000")
    post.extend(sel_w())
    for c in range(D):
        gr, adv = dma_w(c); issue_groups(post, gr); post.extend(adv)
        gr, adv = ld_a(c); issue_groups(post, gr); post.extend(adv)
    NT = 0
    if opts.get("ctouch", 0):
        post("s_and_b32 s6, s3, 1")
        code_touch(post, "oproj_kernel", "TEXT_END", "s6", 2, vt=(238, 239, 240))
        NT += 1
    if opts.get("kbtouch"):
        NT += 5
        post(f"""
        v_and_b32 v4, 31, v1
        v_lshlrev_b32 v4, 7, v4
        v_lshrrev_b32 v5, 5, v1
        v_lshl_add_u32 v4, v5, 16, v4
        s_lshl_b32 s6, {TN}, 14
        s_lshl_b32 s7, s3, 12
        s_add_u32 s6, s6, s7
        s_add_u32 s6, s6, {4*16384}
        buffer_load_dword v232, v4, {SRD_A}, s6 offen
        s_add_u32 s6, s6, {8*16384}
        buffer_load_dword v233, v4, {SRD_A}, s6 offen
        s_add_u32 s6, s6, {8*16384}
        buffer_load_dword v234, v4, {SRD_A}, s6 offen
        """)
        post(f"""
        s_and_b32 s58, {TM}, 7
        s_lshl_b32 s58, s58, 2
        s_add_u32 s58, s58, {TN}
        s_lshl_b32 s58, s58, 2
        s_add_u32 s58, s58, s3
        s_mul_i32 s58, s58, 10
        s_add_u32 s58, s58, 256
        s_mul_i32 s59, {PART}, {24*64}
        s_add_u32 s59, s59, s58
        s_cmp_lt_u32 s59, 4096
        s_cselect_b32 s44, s40, s42
        s_cselect_b32 s45, s41, s43
        s_cselect_b32 s46, {64*65536}, s10
        s_mov_b32 s47, 0x20000
        s_lshl_b32 s59, s59, 10
        v_lshlrev_b32 v4, 7, v1
        v_add_u32 v5, 8192, v4
        buffer_load_dword v235, v4, s[44:47], s59 offen
        v_cmp_gt_u32 vcc, 16, v1
        s_and_saveexec_b64 s[6:7], vcc
        buffer_load_dword v236, v5, s[44:47], s59 offen
        s_mov_b64 exec, s[6:7]
        """)
    post(f"""
    v_bfe_u32 v2, v1, 2, 2
    v_and_b32 v3, 3, v1
    v_lshrrev_b32 v4, 4, v1
    v_lshl_add_u32 v6, v4, 2, v2
    v_and_b32 v8, 7, v6
    v_lshlrev_b32 v8, 1, v8
    v_lshlrev_b32 v6, 8, v6
    v_and_b32 v7, 1, v3
    v_lshl_add_u32 v6, v7, 3, v6
    v_lshrrev_b32 v7, 1, v3
    """)
    for cb in range(8):
        post(f"""
        v_add_u32 v9, {2*cb}, v7
        v_xor_b32 v9, v9, v8
        v_lshl_add_u32 {VA(cb)}, v9, 4, v6
        v_add_u32 {VA(cb,1)}, 65536, {VA(cb)}
        """)
    for i in range(128): post(f"v_mov_b32 v{16+i}, 0")
    post(f"""
    s_mov_b32 s56, {24//R}
    s_mov_b32 s57, 0
    s_cmp_eq_u32 {PART}, 2
    s_cselect_b32 s56, {16//R}, s56
    s_cselect_b32 s57, {8//R}, s57
    s_cmp_eq_u32 {PART}, 3
    s_cselect_b32 s56, 0, s56
    s_cselect_b32 s57, {24//R if R == 8 else 5}, s57
    s_waitcnt vmcnt({8*D-4+NT})
    s_barrier
    """)
    T(post, 9)
    for s in range(2):
        for cb in range(8): post.extend(a_rd(s, cb, 0))
    post("s_cmp_eq_u32 s56, 0\ns_cbranch_scc1 K3_l1pre")
    body0 = []; body1 = []
    for c in range(R): body0 += period(c, 0); body1 += period(c, 1)
    body0 += [Inst("s_sub_u32 s56, s56, 1"), Inst("s_cmp_lg_u32 s56, 0"), Inst("s_cbranch_scc1 K3_loop0")]
    mid = [Inst("K3_l1pre:"), Inst("s_cmp_eq_u32 s57, 0"), Inst("s_cbranch_scc1 K3_post")]
    body1 += [Inst("s_sub_u32 s57, s57, 1"), Inst("s_cmp_lg_u32 s57, 0"), Inst("s_cbranch_scc1 K3_loop1")]
    fin = Prog()
    fin("K3_post:")
    fin("s_waitcnt lgkmcnt(0)\ns_nop 15")
    T(fin, 10)
    fin(f"""
    s_lshl_b32 s7, {TM}, 2
    s_add_u32 s7, s7, {TN}
    s_mul_i32 s58, s7, 5
    s_lshl_b32 s58, s58, 15
    s_add_u32 s58, s58, {WS_SLAB}
    s_lshl_b32 s59, s3, 13
    s_add_u32 s59, s59, s58
    s_lshl_b32 s6, {PART}, 15
    s_add_u32 s6, s6, s59
    v_lshlrev_b32 v2, 4, v1
    s_cmp_eq_u32 {PART}, 3
    s_cbranch_scc1 K3_st1
    """)
    def slab_store(base):
        for j in range(8):
            t0 = 144 + (j & 3) * 4
            for i in range(4): fin(f"v_cvt_pk_bf16_f32 v{t0+i}, v{16+base+j*8+2*i}, v{16+base+j*8+2*i+1}")
            if j == 4: fin("s_add_u32 s6, s6, 4096")
            fin(f"buffer_store_dwordx4 v[{t0}:{t0+3}], v2, {SRD_WS}, s6 offen offset:{(j%4)*1024} sc1")
    slab_store(0)
    fin(f"""
    K3_st1:
    s_cmp_lt_u32 {PART}, 2
    s_cbranch_scc1 K3_sync
    s_add_u32 s6, {PART}, 1
    s_lshl_b32 s6, s6, 15
    s_add_u32 s6, s6, s59
    """)
    slab_store(64)
    fin(f"""
    K3_sync:
    s_mov_b32 s8, s30
    s_and_b32 s9, s31, 0xffff
    s_mov_b32 s10, {2048*1024}
    s_mov_b32 s11, 0x20000
    s_mov_b32 s12, s32
    s_and_b32 s13, s33, 0xffff
    s_mov_b32 s14, {2048*1024}
    s_mov_b32 s15, 0x20000
    s_lshl_b32 s6, {TM}, 7
    s_lshl_b32 s74, {PART}, 5
    s_add_u32 s6, s6, s74
    s_lshl_b32 s6, s6, 10
    s_lshl_b32 s74, {TN}, 8
    s_add_u32 s6, s6, s74
    s_lshl_b32 s74, s3, 6
    s_add_u32 s37, s6, s74
    v_and_b32 v3, 15, v1
    v_lshrrev_b32 v4, 4, v1
    v_lshlrev_b32 v3, 10, v3
    v_lshl_add_u32 v3, v4, 3, v3
    v_add_u32 v4, 16384, v3
    """)
    for jj in range(2):
        for tb in range(2):
            b = 200 + (jj * 2 + tb) * 2
            fin(f"buffer_load_dwordx2 v[{b}:{b+1}], v{3+tb}, s[8:11], s37 offen offset:{jj*32}")
    fin(f"""
    s_lshl_b32 s59, {PART}, 13
    s_add_u32 s59, s59, s58
    s_lshl_b32 s6, s3, 11
    s_add_u32 s59, s59, s6
    s_waitcnt vmcnt(4)
    s_barrier
    s_cmp_lg_u32 s3, 0
    s_cbranch_scc1 K3_wait
    s_and_b32 s6, s7, 3
    s_lshl_b32 s6, s6, 6
    s_lshr_b32 s74, s7, 4
    s_lshl_b32 s74, s74, 2
    s_add_u32 s6, s6, s74
    s_bfe_u32 s74, s7, 0x20002
    s_lshl_b32 s74, s74, 3
    s_lshl_b32 s75, 1, s74
    v_mov_b32 v6, s6
    v_mov_b32 v7, s75
    s_mov_b64 exec, 1
    global_atomic_add v6, v7, {SRD_DBG} sc1
    """)
    poll(fin, "K3_spin", "v6", 4, shift="s74", sleep=1)
    fin(f"""
    s_mov_b64 exec, -1
    K3_wait:
    s_barrier
    """)
    T(fin, 11)
    for sl in range(5):
        fin(f"s_add_u32 s6, s59, {sl*32768}")
        for jj in range(2):
            b = 16 + (sl * 2 + jj) * 4
            fin(f"buffer_load_dwordx4 v[{b}:{b+3}], v2, {SRD_WS}, s6 offen offset:{jj*1024} sc1")
    fin(f"s_mov_b32 s7, {f32hex(-LOG2E)}")
    for jj in range(2):
        for tb in range(2):
            src = lambda sl, i: f"v{16+(sl*2+jj)*4+tb*2+i}"
            sv = [f"v{60+r}" for r in range(4)]; yv = [f"v{64+r}" for r in range(4)]; tv = [f"v{68+r}" for r in range(4)]
            def unp(dst, sl):
                fin(f"v_lshlrev_b32 {dst[0]}, 16, {src(sl,0)}\nv_and_b32 {dst[1]}, 0xffff0000, {src(sl,0)}")
                fin(f"v_lshlrev_b32 {dst[2]}, 16, {src(sl,1)}\nv_and_b32 {dst[3]}, 0xffff0000, {src(sl,1)}")
            unp(sv, 0); unp(tv, 1)
            for r in range(4): fin(f"v_add_f32 {sv[r]}, {sv[r]}, {tv[r]}")
            unp(tv, 2)
            for r in range(4): fin(f"v_add_f32 {sv[r]}, {sv[r]}, {tv[r]}")
            unp(yv, 3); unp(tv, 4)
            for r in range(4): fin(f"v_add_f32 {yv[r]}, {yv[r]}, {tv[r]}")
            for r in range(4): fin(f"v_mul_f32 {tv[r]}, s7, {yv[r]}")
            for r in range(4): fin(f"v_exp_f32 {tv[r]}, {tv[r]}")
            for r in range(4): fin(f"v_add_f32 {tv[r]}, 1.0, {tv[r]}")
            for r in range(4): fin(f"v_rcp_f32 {tv[r]}, {tv[r]}")
            for r in range(4): fin(f"v_mul_f32 {yv[r]}, {yv[r]}, {tv[r]}")
            xb = 200 + (jj * 2 + tb) * 2
            fin(f"v_lshlrev_b32 {tv[0]}, 16, v{xb}\nv_and_b32 {tv[1]}, 0xffff0000, v{xb}\nv_lshlrev_b32 {tv[2]}, 16, v{xb+1}\nv_and_b32 {tv[3]}, 0xffff0000, v{xb+1}")
            for r in range(4): fin(f"v_fma_f32 {sv[r]}, {sv[r]}, {yv[r]}, {tv[r]}")
            ob = 72 + 2 * ((jj * 2 + tb) & 1)
            fin(f"v_cvt_pk_bf16_f32 v{ob}, {sv[0]}, {sv[1]}\nv_cvt_pk_bf16_f32 v{ob+1}, {sv[2]}, {sv[3]}")
            fin(f"buffer_store_dwordx2 v[{ob}:{ob+1}], v{3+tb}, s[12:15], s37 offen offset:{jj*32}")
    if opts.get("time"):
        fin("s_waitcnt vmcnt(0)")
        T(fin, 8)
        fin(f"""
        s_waitcnt lgkmcnt(0)
        s_lshl_b32 s6, s2, 2
        s_add_u32 s6, s6, s3
        s_lshl_b32 s6, s6, 6
        s_add_u32 s6, s6, {WS_TIME + 65536}
        v_mov_b32 v3, s6
        """)
        for k_, i in enumerate((0, 9, 10, 11, 8)):
            fin(f"v_mov_b32 v2, s{SB(i)}\nbuffer_store_dword v2, v3, {SRD_WS}, 0 offen offset:{4*k_}")
        for i in range(2):
            fin(f"v_mov_b32 v2, s{64+2*i}\nbuffer_store_dword v2, v3, {SRD_WS}, 0 offen offset:{32+4*i}")
    fin("KB_end:\ns_endpgm")
    po2, st = lin(post.insts, None, [])
    b0, st = auto_wait_loop(body0, st); b0 = merge_adjacent_waits(b0)
    b1, st = auto_wait_loop(body1, st); b1 = merge_adjacent_waits(b1)
    f2, st = lin(fin.insts, st, b1[-40:])
    for nm, seq in (("l3", po2[-40:] + b0 + b0 + b1 + b1 + f2[:30]),):
        for p_ in check_hazards(seq): print("HAZARD", nm, p_, file=sys.stderr)
    return po2 + [Inst("K3_loop0:")] + b0 + mid + [Inst("K3_loop1:")] + b1 + f2

def gen(opts):
    hdr = f"""; @launch kernel=attn_kernel grid=(256,1,1) block=(256,1,1) lds=131328
; @launch kernel=oproj_kernel grid=(256,1,1) block=(256,1,1) lds=131072
.amdgcn_target "amdgcn-amd-amdhsa--gfx950"
.text
"""
    return hdr + kernel_text("attn_kernel", gen_ka(opts), 512, 256) + kernel_text("oproj_kernel", gen_kb(opts) + [Inst("TEXT_END:")], 384, 256)

if __name__ == "__main__":
    opts = {}
    for a in sys.argv[2:]:
        k, _, v = a.partition("=")
        opts[k] = int(v) if v else 1
    open(sys.argv[1], "w").write(gen(opts))
```

```python
import sys, math
sys.path.insert(0, "dev")
from asmdsl import *
from gen import (NAME, WS_XN, WS_ACT, WS_SLAB, WS_TIME, LOG2E, QSCALE, f32hex, kernel_text, finish, rbf16,
                 S, P, NEGM, Qb, Q, VKA, VVA, VOFFK, VOFFV, L, O, KF, VF, SRD_K, SRD_V, SRD_K0, SRD_WS, S_OFF, S_WB, S_CNT,
                 SRD_WQ, SRD_G, SRD_U, k_read, v_reads, dma_k, dma_v, emit_phase)
from gen2 import ln_rows
from phase2 import emit_phase2, LACCN, ONES_A, LREGS
import gen as _g

SRD_DBG = "s[72:73]"
SB = lambda i: 80 + (i % 11) * 2 if i < 11 else 60 + (i - 11) * 2
CY = {1: 64, 2: 66, 3: 68, 4: 70, 9: 64, 10: 66}
def stamp(pr, opts, idx):
    if opts.get("time"):
        b = SB(idx)
        pr(f"s_memrealtime s[{b}:{b+1}]")
        if idx in CY: pr(f"s_memtime s[{CY[idx]}:{CY[idx]+1}]")

def poll(pr, label, addr_v, thresh, shift=None, sleep=2, cache="sc1"):
    pr(f"""
    {label}:
    global_load_dword v5, {addr_v}, {SRD_DBG} {cache}
    s_waitcnt vmcnt(0)
    v_readfirstlane_b32 s75, v5
    """)
    if shift is not None:
        pr(f"s_lshr_b32 s75, s75, {shift}\ns_and_b32 s75, s75, 0xff")
    pr(f"""
    s_cmp_ge_u32 s75, {thresh}
    s_cbranch_scc1 {label}_ok
    s_sleep {sleep}
    s_branch {label}
    {label}_ok:
    """)

def lin(insts, st, prev):
    a, st = auto_wait_linear(insts, st)
    a = merge_adjacent_waits(a)
    n = len(prev)
    return check_hazards(prev + a, fix=True)[n:], st

def issue_groups(pr, groups):
    for d in groups:
        pr.extend(d[:-1])
        if len(d) > 1: pr("s_nop 0")
        pr.extend(d[-1:])

def QACC(cb, tb, r=None):
    b = 16 + (cb * 4 + tb) * 4
    return f"v[{b}:{b+3}]" if r is None else f"v{b+r}"
def GACC(cb, tb, r=None):
    b = (cb * 4 + tb) * 4
    return f"a[{b}:{b+3}]" if r is None else f"a{b+r}"
def UACC(cb, tb, r=None):
    b = 64 + (cb * 4 + tb) * 4
    return f"a[{b}:{b+3}]" if r is None else f"a{b+r}"
def AF(cb, u=None):
    b = 128 + cb * 4
    if u is None: return f"a[{b}:{b+3}]"
    return f"a[{b+2*u}:{b+2*u+1}]"
def BF(st, tb):
    b = 144 + st * 16 + tb * 4
    return f"v[{b}:{b+3}]"
VA_Q = lambda ds: f"v{230+ds}"
VA_G = lambda cb: f"v{234+cb}"
VO_X = "v238"; VO_WQ = lambda ii: f"v{239+ii}"; VO_G = "v241"
S_OX = "s50"; S_OWQ = "s51"; S_OGU = "s52"
S_MWQ = "s55"; S_MG = "s56"; S_MU = "s57"
GW = 65536

def a_reads(cb, stage):
    if cb < 8:
        ds, h = cb >> 1, cb & 1
        return [Inst(f"ds_read_b64_tr_b16 {AF(cb,u)}, {VA_Q(ds)} offset:{stage*16384 + 8*h + 1024*u}") for u in range(2)]
    mat, c2 = (cb - 8) >> 2, (cb - 8) & 3
    return [Inst(f"ds_read_b64_tr_b16 {AF(cb,u)}, {VA_G(c2)} offset:{stage*16384 + 8192 + 4096*mat + 512*u}") for u in range(2)]
def w_dma(stage):
    r = []
    r.append([Inst(f"s_add_u32 m0, {S_MWQ}, {stage*16384}"), Inst(f"buffer_load_dwordx4 {VO_WQ(0)}, {SRD_WQ}, {S_OWQ} offen lds")])
    r.append([Inst(f"buffer_load_dwordx4 {VO_WQ(1)}, {SRD_WQ}, {S_OWQ} offen offset:1024 lds")])
    r.append([Inst(f"s_add_u32 m0, {S_MG}, {stage*16384}"), Inst(f"buffer_load_dwordx4 {VO_G}, {SRD_G}, {S_OGU} offen lds")])
    r.append([Inst(f"s_add_u32 m0, {S_MU}, {stage*16384}"), Inst(f"buffer_load_dwordx4 {VO_G}, {SRD_U}, {S_OGU} offen lds")])
    adv = [Inst(f"s_add_u32 {S_OWQ}, {S_OWQ}, {32*8192}"), Inst(f"s_add_u32 {S_OGU}, {S_OGU}, {32*3584}")]
    return r, adv
def x_loads(st):
    r = [[Inst(f"buffer_load_dwordx4 {BF(st,tb)}, {VO_X}, {SRD_WS}, {S_OX} offen offset:{tb*1024} sc1")] for tb in range(4)]
    return r, [Inst(f"s_add_u32 {S_OX}, {S_OX}, 16384")]

def gemm_period(c, groups, adv, read_next=True, extra=(), nvm=8):
    st = c & 3
    NG = 64
    pre = [[] for _ in range(NG + 1)]; mem = [[] for _ in range(NG + 1)]; gaps = [[] for _ in range(NG + 1)]
    pre[0].append(Hint(*[BF(st, t) for t in range(4)]))
    if nvm is not None: pre[0].append(Inst(f"s_waitcnt vmcnt({nvm})"))
    pre[0].append(Inst("s_barrier"))
    if read_next:
        for cb in range(16):
            rd = a_reads(cb, (c + 1) & 3)
            if cb < 15:
                mem[4 * cb + 4].append(rd[0]); mem[4 * cb + 5].append(rd[1])
            else:
                mem[63].append(rd[0]); mem[63].append(rd[1])
    pos = [2, 6, 10, 14, 18, 22, 26, 30, 34, 38, 42, 46]
    for gp, d in zip(pos, groups):
        gaps[gp - 1] += d[:-1]
        mem[gp] += d[-1:]
    for i, a in enumerate(adv): gaps[48 + i].append(a)
    for gp, lst in extra:
        for ins in lst:
            (mem if ins.kind in ("vmem", "dma", "lds") else gaps)[gp].append(ins)
    out = []
    for cb in range(16):
        if cb % 4 == 0:
            pre[4 * cb].insert(0, Hint(*[AF(c_) for c_ in range(cb, cb + 4)]))
        for tb in range(4):
            k = 4 * cb + tb
            d = QACC(cb, tb) if cb < 8 else GACC(cb - 8, tb) if cb < 12 else UACC(cb - 12, tb)
            out += pre[k]
            out.append(Inst(f"v_mfma_f32_16x16x32_bf16 {d}, {AF(cb)}, {BF(st,tb)}, {d}"))
            out += mem[k]; out += gaps[k]
    return out

def act_lane_offset(pr, dst0, dst1=None):
    pr(f"""
    v_and_b32 v2, 15, v1
    v_lshrrev_b32 v3, 4, v1
    v_bfe_u32 v4, v1, 2, 1
    v_lshlrev_b32 v4, 1, v4
    v_bfe_u32 v5, v1, 3, 1
    v_mul_u32_u24 v5, 3, v5
    v_xor_b32 v4, v4, v5
    v_xor_b32 v4, v4, v3
    v_lshlrev_b32 v4, 4, v4
    v_lshl_add_u32 {dst0}, v2, 6, v4
    """)
    if dst1: pr(f"v_add_u32 {dst1}, 8192, {dst0}")


def code_touch(pr, start_label, end_label, idx_sgpr, nblk, vt=(250, 251, 252)):
    a, b, d = vt
    pr(f"""
    s_getpc_b64 s[78:79]
    CT_{start_label}:
    s_sub_u32 s78, s78, CT_{start_label}-{start_label}
    s_subb_u32 s79, s79, 0
    s_lshl_b32 s77, {idx_sgpr}, 13
    v_lshlrev_b32 v{a}, 7, v1
    v_add_u32 v{a}, s77, v{a}
    v_min_u32 v{a}, {end_label}-{start_label}-4, v{a}
    v_mov_b32 v{b}, s79
    v_add_co_u32 v{a}, vcc, s78, v{a}
    v_addc_co_u32 v{b}, vcc, 0, v{b}, vcc
    global_load_dword v{d}, v[{a}:{b}], off
    """)

def gen_ka(opts):
    global emit_phase
    NS = opts.get('nsum', 2) if opts.get('ph2', 1) else 0
    emit_phase = emit_phase2 if opts.get('ph2', 1) else _g.emit_phase
    opts = dict(opts); opts['nsum'] = NS
    T = lambda pr, idx: stamp(pr, opts, idx)
    pr = Prog()
    pr("s_cmp_ge_u32 s2, 256\ns_cbranch_scc1 KA_end")
    T(pr, 0)
    pr(f"""
    s_load_dwordx2 s[76:77], s[0:1], 0
    s_load_dwordx2 s[34:35], s[0:1], 88
    s_load_dwordx4 s[28:31], s[0:1], 8
    s_load_dwordx2 s[32:33], s[0:1], 24
    s_load_dwordx4 s[40:43], s[0:1], 48
    s_load_dwordx2 s[72:73], s[0:1], 80
    v_and_b32 v1, 63, v0
    v_lshrrev_b32 v2, 6, v0
    s_nop 0
    v_readfirstlane_b32 s3, v2
    s_and_b32 s4, s2, 7
    s_lshl_b32 s4, s4, 2
    s_lshr_b32 s5, s2, 3
    s_and_b32 s6, s5, 3
    s_add_u32 s4, s4, s6
    s_lshr_b32 s5, s2, 5
    s_lshl_b32 {S_WB}, s3, 12
    s_lshl_b32 s16, s5, 8
    s_lshl_b32 s17, s4, 3
    s_add_u32 s16, s16, s17
    s_lshl_b32 s17, s3, 1
    s_add_u32 s16, s16, s17
    s_lshl_b32 s17, s16, 10
    v_lshlrev_b32 v2, 4, v1
    s_waitcnt lgkmcnt(0)
    s_mov_b32 s8, s76
    s_and_b32 s9, s77, 0xffff
    s_mov_b32 s10, {2048*1024}
    s_mov_b32 s11, 0x20000
    buffer_load_dwordx4 v[4:7], v2, s[8:11], s17 offen
    buffer_load_dwordx4 v[8:11], v2, s[8:11], s17 offen offset:1024
    s_mov_b32 s20, s34
    s_and_b32 s21, s35, 0xffff
    s_mov_b32 s22, 0x10000000
    s_mov_b32 s23, 0x20000
    s_mov_b32 s36, s32
    s_and_b32 s37, s33, 0xffff
    s_mov_b32 s38, {0 if opts.get("kanow") else 512*8192}
    s_mov_b32 s39, 0x20000
    s_mov_b32 s44, s42
    s_and_b32 s45, s43, 0xffff
    s_and_b32 s41, s41, 0xffff
    s_cmp_lt_u32 s4, 28
    s_cselect_b32 s42, {0 if opts.get("kanow") else 512*3584}, 0
    s_mov_b32 s46, s42
    s_mov_b32 s43, 0x20000
    s_mov_b32 s47, 0x20000
    s_lshl_b32 {S_OX}, s5, 18
    s_add_u32 {S_OX}, {S_OX}, {WS_XN}
    s_add_u32 {S_OX}, {S_OX}, {S_WB}
    {"s_mov_b32 s50, 0xf0000000" if opts.get("kanox") else ""}
    s_lshl_b32 {S_OWQ}, s4, 8
    s_lshl_b32 {S_OGU}, s4, 7
    s_lshl_b32 s6, s3, 11
    s_add_u32 {S_MWQ}, s6, {GW}
    s_lshl_b32 s6, s3, 10
    s_add_u32 {S_MG}, s6, {GW + 8192}
    s_add_u32 {S_MU}, s6, {GW + 12288}
    v_lshrrev_b32 v12, 4, v1
    v_and_b32 v13, 15, v1
    v_lshlrev_b32 v14, 2, v12
    v_xor_b32 v14, v14, v13
    v_lshlrev_b32 v14, 4, v14
    s_lshl_b32 s6, s3, 3
    v_add_u32 v15, s6, v12
    v_lshlrev_b32 v15, 13, v15
    v_add_u32 {VO_WQ(0)}, v15, v14
    v_add_u32 {VO_WQ(1)}, {4*8192-1024}, {VO_WQ(0)}
    v_lshrrev_b32 v12, 3, v1
    v_and_b32 v13, 7, v1
    v_bfe_u32 v14, v1, 4, 1
    s_and_b32 s7, s3, 1
    s_lshl_b32 s7, s7, 1
    v_or_b32 v14, s7, v14
    v_lshlrev_b32 v14, 1, v14
    v_xor_b32 v14, v14, v13
    v_add_u32 v15, s6, v12
    s_movk_i32 s7, 3584
    v_mul_lo_u32 v15, v15, s7
    v_lshl_add_u32 {VO_G}, v14, 4, v15
    """)
    for c in range(3):
        gr, adv = w_dma(c)
        issue_groups(pr, gr); pr.extend(adv)
    if opts.get("ctouch", 0):
        pr("""
        s_lshr_b32 s6, s2, 3
        s_lshl_b32 s6, s6, 2
        s_add_u32 s6, s6, s3
        s_mul_i32 s7, s6, 43
        s_lshr_b32 s7, s7, 8
        s_mul_i32 s7, s7, 6
        s_sub_u32 s6, s6, s7
        """)
        code_touch(pr, "attn_kernel", "TEXT_END", "s6", 6)
    pr(f"""
    v_bfe_u32 v3, v1, 2, 3
    v_lshlrev_b32 v3, 14, v3
    v_lshrrev_b32 v12, 5, v1
    v_lshl_add_u32 v3, v12, 6, v3
    v_and_b32 v12, 3, v1
    s_lshr_b32 s18, s16, 8
    s_lshl_b32 s18, s18, 18
    s_and_b32 s19, s16, 255
    s_lshl_b32 s6, s19, 6
    s_add_u32 s18, s18, s6
    s_add_u32 s18, s18, {WS_XN}
    s_lshr_b32 s6, s19, 2
    s_and_b32 s6, s6, 3
    s_and_b32 s7, s6, 1
    s_lshl_b32 s7, s7, 1
    s_lshr_b32 s6, s6, 1
    s_mul_i32 s6, s6, 3
    s_xor_b32 s7, s7, s6
    v_xor_b32 v12, s7, v12
    v_lshl_add_u32 v3, v12, 4, v3
    """)
    ln_rows(pr, opts)
    pr(f"""
    s_lshl_b32 s6, s4, 19
    s_add_u32 s16, s28, s6
    s_addc_u32 s17, s29, 0
    s_and_b32 s17, s17, 0xffff
    s_mov_b32 s18, 524288
    s_mov_b32 s19, 0x20000
    s_add_u32 s8, s16, 16384
    s_addc_u32 s9, s17, 0
    s_mov_b32 s10, {524288-16384}
    s_mov_b32 s11, 0x20000
    s_add_u32 s12, s30, s6
    s_addc_u32 s13, s31, 0
    s_and_b32 s13, s13, 0xffff
    s_mov_b32 s14, 524288
    s_mov_b32 s15, 0x20000
    """)
    pr("s_waitcnt vmcnt(0)\ns_barrier")
    T(pr, 6)
    pr(f"""
    s_and_b32 s6, s5, 3
    s_lshl_b32 s6, s6, 6
    s_lshr_b32 s7, s5, 2
    s_lshl_b32 s7, s7, 2
    s_add_u32 s74, s6, s7
    s_cmp_lg_u32 s3, 0
    s_cbranch_scc1 K_xn_skip
    v_mov_b32 v2, s74
    v_mov_b32 v4, 1
    s_mov_b64 exec, 1
    global_atomic_add v2, v4, {SRD_DBG} sc1
    s_mov_b64 exec, -1
    K_xn_skip:
    """)
    pr(f"""
    v_bfe_u32 v2, v1, 2, 2
    v_and_b32 v3, 3, v1
    v_lshrrev_b32 v4, 4, v1
    v_lshl_add_u32 v5, v4, 3, v2
    v_lshlrev_b32 v6, 8, v5
    v_add_u32 v6, {GW}, v6
    v_lshlrev_b32 v7, 2, v2
    """)
    for ds in range(4):
        pr(f"""
        v_add_u32 v8, {4*ds}, v3
        v_xor_b32 v8, v8, v7
        v_lshl_add_u32 {VA_Q(ds)}, v8, 4, v6
        """)
    pr(f"""
    v_lshlrev_b32 v6, 7, v5
    v_add_u32 v6, {GW}, v6
    v_and_b32 v7, 1, v3
    v_lshl_add_u32 v6, v7, 3, v6
    v_bfe_u32 v7, v1, 3, 1
    v_and_b32 v8, 1, v4
    v_lshl_or_b32 v7, v8, 1, v7
    v_lshlrev_b32 v7, 1, v7
    v_lshrrev_b32 v9, 1, v3
    """)
    for cb in range(4):
        pr(f"""
        v_add_u32 v8, {2*cb}, v9
        v_xor_b32 v8, v8, v7
        v_lshl_add_u32 {VA_G(cb)}, v8, 4, v6
        """)
    act_lane_offset(pr, VO_X)
    pr(f"""
    v_lshrrev_b32 v2, 4, v1
    v_and_b32 v3, 15, v1
    v_lshlrev_b32 v4, 8, v2
    v_add_u32 v4, {S_WB}, v4
    """)
    for ii in range(4):
        pr(f"""
        v_add_u32 v5, {4*ii}, v2
        v_xor_b32 v5, v5, v3
        v_lshl_add_u32 {VOFFK(ii)}, v5, 4, v4
        """)
    for par in range(2):
        pr(f"""
        v_add_u32 v5, {4*par}, v2
        v_lshlrev_b32 v5, 1, v5
        v_xor_b32 v5, v5, v3
        v_lshl_add_u32 {VOFFV(par)}, v5, 4, v4
        """)
    pr(f"""
    v_and_b32 v2, 15, v1
    v_lshrrev_b32 v3, 4, v1
    v_lshlrev_b32 v5, 8, v2
    """)
    for ds in range(4):
        pr(f"""
        v_add_u32 v6, {4*ds}, v3
        v_xor_b32 v6, v6, v2
        v_lshl_add_u32 {VKA(ds)}, v6, 4, v5
        """)
    pr(f"""
    v_bfe_u32 v2, v1, 2, 2
    v_and_b32 v3, 3, v1
    v_lshrrev_b32 v4, 4, v1
    v_lshl_add_u32 v6, v4, 2, v2
    v_and_b32 v8, 7, v6
    v_lshlrev_b32 v8, 1, v8
    v_lshlrev_b32 v6, 8, v6
    v_add_u32 v6, 65536, v6
    v_and_b32 v7, 1, v3
    v_lshl_add_u32 v6, v7, 3, v6
    v_lshrrev_b32 v7, 1, v3
    """)
    for db in range(8):
        pr(f"""
        v_add_u32 v9, {2*db}, v7
        v_xor_b32 v9, v9, v8
        v_lshl_add_u32 {VVA(db)}, v9, 4, v6
        """)
    for i in range(128): pr(f"v_mov_b32 v{16+i}, 0")
    for i in range(128): pr(f"v_accvgpr_write_b32 a{i}, 0")
    for cb in range(16): pr.extend(a_reads(cb, 0))
    pr(f"""
    s_cmp_lg_u32 s3, 0
    s_cbranch_scc1 K_xn_wait
    v_mov_b32 v2, s74
    s_mov_b64 exec, 1
    """)
    poll(pr, "K_xn_poll", "v2", 32)
    pr(f"""
    s_mov_b64 exec, -1
    K_xn_wait:
    s_barrier
    """)
    T(pr, 7)
    for c in range(3):
        gr, adv = x_loads(c)
        issue_groups(pr, gr); pr.extend(adv)
    T(pr, 1)
    pr(f"s_mov_b32 {S_CNT}, 3")
    seg_a = pr.insts
    def full(c):
        xg, xa = x_loads((c + 3) & 3); wg_, wa = w_dma((c + 3) & 3)
        return gemm_period(c, xg + wg_, xa + wa)
    body = []
    for c in range(4): body += full(c)
    body += [Inst(f"s_sub_u32 {S_CNT}, {S_CNT}, 1"), Inst(f"s_cmp_lg_u32 {S_CNT}, 0"), Inst("s_cbranch_scc1 K_gloop")]
    def mk_touch():
        tp = Prog()
        tp(f"""
        s_load_dwordx2 s[40:41], s[0:1], 32
        s_load_dwordx2 s[42:43], s[0:1], 64
        s_and_b32 s51, s2, 3
        s_bfe_u32 s58, s2, 0x30003
        s_lshl_b32 s58, s58, 2
        s_lshr_b32 s59, s2, 6
        s_add_u32 s58, s58, s59
        s_lshl_b32 s58, s58, 2
        s_add_u32 s58, s58, s3
        s_lshl_b32 s58, s58, 4
        s_mul_i32 s59, s51, {24*64}
        s_add_u32 s59, s59, s58
        v_lshlrev_b32 v242, 7, v1
        v_add_u32 v243, 8192, v242
        """)
        tp2 = Prog()
        tp2(f"""
        s_waitcnt lgkmcnt(0)
        s_and_b32 s41, s41, 0xffff
        s_sub_u32 s42, s42, {64*65536}
        s_subb_u32 s43, s43, 0
        s_and_b32 s43, s43, 0xffff
        s_cmp_lt_u32 s59, 4096
        s_cselect_b32 s44, s40, s42
        s_cselect_b32 s45, s41, s43
        s_mov_b32 s46, {92*65536}
        s_cselect_b32 s46, {64*65536}, s46
        s_mov_b32 s47, 0x20000
        s_lshl_b32 s59, s59, 10
        s_cmp_lt_u32 s58, {24*64}
        s_cselect_b32 s59, s59, 0xf0000000
        """)
        tp3 = [Inst("buffer_load_dword v240, v242, s[44:47], s59 offen"), Inst("buffer_load_dword v241, v243, s[44:47], s59 offen")]
        return tp.insts, tp2.insts, tp3
    p2 = Prog()
    p2.extend(full(12))
    p2(f"s_mov_b32 s6, 0\ns_mov_b32 s7, 16384")
    p2.extend(gemm_period(13, dma_k(3, SRD_K0, "0") + dma_v(0, "s6"), []))
    p2.extend(gemm_period(14, dma_k(0, SRD_K, "s6") + dma_v(1, "s7"), []))
    p2.extend(gemm_period(15, dma_k(1, SRD_K, "s7"), [], read_next=False, nvm=None))
    T(p2, 2)
    p2(f"s_mov_b32 s6, {f32hex(QSCALE)}\ns_mov_b32 s7, {f32hex(QSCALE)}\ns_nop 7")
    for tb in range(4):
        for ds in range(4):
            for h in range(2):
                b = 16 + ((2 * ds + h) * 4 + tb) * 4
                p2(f"v_pk_mul_f32 v[{b}:{b+1}], v[{b}:{b+1}], s[6:7]\nv_pk_mul_f32 v[{b+2}:{b+3}], v[{b+2}:{b+3}], s[6:7]")
            for h in range(2):
                cb = 2 * ds + h
                for i in range(2):
                    p2(f"v_cvt_pk_bf16_f32 v{Qb(tb,ds)+2*h+i}, {QACC(cb,tb,2*i)}, {QACC(cb,tb,2*i+1)}")
    p2("s_cmp_ge_u32 s4, 28\ns_cbranch_scc1 K_noh")
    p2(f"""
    s_lshl_b32 s6, s5, 1
    s_lshr_b32 s7, s3, 1
    s_add_u32 s6, s6, s7
    s_mul_i32 s6, s6, {92*16384 + opts.get("actpad", 4096)}
    s_add_u32 s7, s4, 64
    s_lshl_b32 s7, s7, 14
    s_add_u32 s6, s6, s7
    s_and_b32 s7, s3, 1
    s_lshl_b32 s7, s7, 12
    s_add_u32 s6, s6, s7
    s_add_u32 s6, s6, {WS_ACT}
    """)
    act_lane_offset(p2, "v2", "v3")
    p2(f"""
    s_mov_b32 s26, {f32hex(-LOG2E)}
    s_mov_b32 s27, {f32hex(-LOG2E)}
    s_mov_b32 s78, 1.0
    s_mov_b32 s79, 1.0
    """)
    for tb in range(4):
        for e in range(2):
            t0 = 16 + e * 32
            for hh in range(2):
                cb = 2 * e + hh
                for r in range(4):
                    j = hh * 4 + r
                    p2(f"v_accvgpr_read_b32 v{t0+j}, {GACC(cb,tb,r)}")
                    p2(f"v_accvgpr_read_b32 v{t0+8+j}, {UACC(cb,tb,r)}")
            pk = lambda op, d, a, b: p2(f"{op} v[{d}:{d+1}], v[{a}:{a+1}], {b}")
            for j in range(0, 8, 2): pk("v_pk_mul_f32", t0 + 16 + j, t0 + j, "s[26:27]")
            for j in range(8): p2(f"v_exp_f32 v{t0+16+j}, v{t0+16+j}")
            for j in range(0, 8, 2): pk("v_pk_mul_f32", t0 + j, t0 + j, f"v[{t0+8+j}:{t0+9+j}]")
            for j in range(0, 8, 2): pk("v_pk_add_f32", t0 + 16 + j, t0 + 16 + j, "s[78:79]")
            for j in range(8): p2(f"v_rcp_f32 v{t0+16+j}, v{t0+16+j}")
            for j in range(0, 8, 2): pk("v_pk_mul_f32", t0 + j, t0 + j, f"v[{t0+16+j}:{t0+17+j}]")
            for i in range(4): p2(f"v_cvt_pk_bf16_f32 v{t0+24+i}, v{t0+2*i}, v{t0+2*i+1}")
            p2(f"buffer_store_dwordx4 v[{t0+24}:{t0+27}], v{2+e}, {SRD_WS}, s6 offen offset:{tb*1024}")
    p2("K_noh:")
    p2("s_mov_b32 s27, 0")
    p3 = Prog()
    p3("K_astart:")
    for i in range(128): p3(f"v_accvgpr_write_b32 a{i}, 0")
    for qb in range(4): p3(f"v_mov_b32 {L(qb)}, 0")
    for i in range(4): p3(f"v_mov_b32 v{128+i}, 0x3f803f80")
    for j in range(NS):
        for i in range(4): p3(f"v_mov_b32 v{LREGS[j]+i}, 0")
    p3(f"s_mov_b32 {S_OFF}, 32768")
    if opts.get("kvtouch"):
        D = opts.get("kvdist", 2) * 16384
        p3(f"""
        s_cmp_lt_u32 s3, 2
        s_cselect_b32 s56, s8, s12
        s_cselect_b32 s57, s9, s13
        s_cselect_b32 s58, s10, s14
        s_add_u32 s56, s56, {D}
        s_addc_u32 s57, s57, 0
        s_sub_u32 s58, s58, {D}
        s_mov_b32 s59, 0x20000
        s_lshl_b32 s6, s5, 11
        s_and_b32 s7, s3, 1
        s_lshl_b32 s7, s7, 10
        s_add_u32 s6, s6, s7
        v_lshlrev_b32 v243, 4, v1
        v_add_u32 v243, s6, v243
        """)
    p3("s_waitcnt vmcnt(0) lgkmcnt(0)\ns_barrier")
    T(p3, 3)
    for f in range(4): p3.add(k_read(0, f))
    ph, carry = emit_phase(-1, opts, [])
    p3.extend(ph)
    p3("s_cmp_lg_u32 s27, 0\ns_cbranch_scc1 K_havemax")
    p3("s_nop 7")
    for qb in range(4):
        m = f"v{244+qb}"
        p3(f"v_max3_f32 {m}, {S(0,0,qb,0)}, {S(0,0,qb,1)}, {S(0,0,qb,2)}")
        p3(f"v_max3_f32 {m}, {m}, {S(0,0,qb,3)}, {S(0,1,qb,0)}")
        p3(f"v_max3_f32 {m}, {m}, {S(0,1,qb,1)}, {S(0,1,qb,2)}")
        p3(f"v_max_f32 {m}, {m}, {S(0,1,qb,3)}")
        p3(f"v_mov_b32 v248, {m}")
        p3(f"v_permlane32_swap_b32 v248, {m}")
        p3(f"v_max_f32 {m}, {m}, v248")
        p3(f"v_mov_b32 v248, {m}")
        p3(f"v_permlane16_swap_b32 v248, {m}")
        p3(f"v_max_f32 {m}, {m}, v248")
    p3("K_havemax:")
    p3("s_nop 7")
    for qb in range(4):
        m = f"v{244+qb}"
        for r in range(4): p3(f"v_sub_f32 {NEGM(qb,r)}, 0, {m}")
        for kb in range(2):
            for r in range(4): p3(f"v_sub_f32 {S(0,kb,qb,r)}, {S(0,kb,qb,r)}, {m}")
    p2 = (p2, p3); p2a, p2 = p2
    ph, carry = emit_phase(0, opts, carry)
    p2.extend(ph)
    p2(f"s_mov_b32 {S_CNT}, 7")
    abody = []
    c2 = carry
    for p in range(1, 9):
        ph, c2 = emit_phase(p, opts, c2)
        abody += ph
    abody += [Inst(f"s_sub_u32 {S_CNT}, {S_CNT}, 1"), Inst(f"s_cmp_lg_u32 {S_CNT}, 0"), Inst("s_cbranch_scc1 K_aloop")]
    if opts.get("wtouch", 1):
        opts = dict(opts)
        ta, tb_, tc = mk_touch()
        opts["extra"] = {58: [(3, ta)], 59: [(41, tb_), (50, tc[:1]), (54, tc[1:])]}
        opts["vmadj"] = {30: 2, 31: 2}
    tail = []
    c3 = c2
    for p in range(57, 65):
        ph, c3 = emit_phase(p, opts, c3)
        tail += ph
    tail += [c[1] if isinstance(c, tuple) else c for c in c3]
    post = Prog()
    T(post, 4)
    for qb in range(4):
        if qb >= 4 - NS:
            post(f"v_mov_b32 {L(qb)}, v{LREGS[qb - (4 - NS)]}")
            continue
        post(f"""
        v_mov_b32 v248, {L(qb)}
        v_permlane32_swap_b32 v248, {L(qb)}
        v_add_f32 {L(qb)}, {L(qb)}, v248
        v_mov_b32 v248, {L(qb)}
        v_permlane16_swap_b32 v248, {L(qb)}
        v_add_f32 {L(qb)}, {L(qb)}, v248
        """)
    post(f"""
    v_max3_f32 v248, {L(0)}, {L(1)}, {L(2)}
    v_max_f32 v248, v248, {L(3)}
    v_add_f32 v249, {L(0)}, {L(1)}
    v_add_f32 v250, {L(2)}, {L(3)}
    v_add_f32 v249, v249, v250
    s_mov_b32 s6, {f32hex(float(2**24))}
    v_cmp_nlt_f32 vcc, v248, s6
    v_cmp_u_f32 s[6:7], v249, v249
    s_or_b64 vcc, vcc, s[6:7]
    s_cmp_lg_u64 vcc, 0
    s_cselect_b32 s6, 1, 0
    v_mov_b32 v248, s6
    v_mov_b32 v249, 131072
    v_lshl_add_u32 v250, s3, 2, v249
    ds_write_b32 v250, v248
    s_waitcnt lgkmcnt(0)
    s_barrier
    ds_read_b128 v[248:251], v249
    s_waitcnt lgkmcnt(0)
    v_or3_b32 v248, v248, v249, v250
    v_or_b32 v248, v248, v251
    s_nop 0
    v_readfirstlane_b32 s6, v248
    s_xor_b32 s7, s27, 1
    s_and_b32 s6, s6, s7
    s_cmp_lg_u32 s6, 0
    s_cbranch_scc1 K_fallback
    """)
    for qb in range(4): post(f"v_rcp_f32 {L(qb)}, {L(qb)}")
    post(f"""
    s_lshl_b32 s6, s5, 1
    s_lshr_b32 s7, s3, 1
    s_add_u32 s6, s6, s7
    s_mul_i32 s6, s6, {92*16384 + opts.get("actpad", 4096)}
    s_lshl_b32 s7, s4, 15
    s_add_u32 s6, s6, s7
    s_and_b32 s7, s3, 1
    s_lshl_b32 s7, s7, 12
    s_add_u32 s6, s6, s7
    s_add_u32 s52, s6, {WS_ACT}
    s_add_u32 s53, s52, 16384
    """)
    act_lane_offset(post, "v2", "v3")
    for qb in range(4):
        lp = 226 + (qb & ~1)
        osel = "op_sel:[0,0] op_sel_hi:[1,0]" if qb % 2 == 0 else "op_sel:[0,1] op_sel_hi:[1,1]"
        for e in range(4):
            t0 = 16 + (e & 1) * 16
            for hh in range(2):
                for r in range(4):
                    post(f"v_accvgpr_read_b32 v{t0+hh*4+r}, {O(2*e+hh,qb,r)}")
            for j in range(0, 8, 2): post(f"v_pk_mul_f32 v[{t0+j}:{t0+j+1}], v[{t0+j}:{t0+j+1}], v[{lp}:{lp+1}] {osel}")
            for i in range(4): post(f"v_cvt_pk_bf16_f32 v{t0+8+i}, v{t0+2*i}, v{t0+2*i+1}")
            post(f"buffer_store_dwordx4 v[{t0+8}:{t0+11}], v{2+(e&1)}, {SRD_WS}, s{52+(e>>1)} offen offset:{qb*1024}")
    if opts.get("time"):
        post("s_waitcnt vmcnt(0)")
        T(post, 5)
        post(f"""
        s_waitcnt lgkmcnt(0)
        s_lshl_b32 s6, s2, 2
        s_add_u32 s6, s6, s3
        s_lshl_b32 s6, s6, 6
        s_add_u32 s6, s6, {WS_TIME}
        v_mov_b32 v3, s6
        """)
        for i in range(8):
            post(f"v_mov_b32 v2, s{SB(i)}\nbuffer_store_dword v2, v3, {SRD_WS}, 0 offen offset:{4*i}")
        for i in range(4):
            post(f"v_mov_b32 v2, s{64+2*i}\nbuffer_store_dword v2, v3, {SRD_WS}, 0 offen offset:{32+4*i}")
    post("KA_end:\ns_endpgm")
    fb = Prog()
    fb(f"""
    K_fallback:
    s_waitcnt vmcnt(0) lgkmcnt(0)
    s_barrier
    s_mov_b32 s27, 1
    v_and_b32 v2, 15, v1
    v_lshrrev_b32 v3, 4, v1
    v_lshlrev_b32 v2, 8, v2
    v_lshl_add_u32 v2, v3, 4, v2
    s_mov_b32 s6, 0
    """)
    for qb in range(4): fb(f"v_mov_b32 v{244+qb}, 0xff800000")
    fb("K_fb_loop:")
    for ds in range(4):
        fb(f"buffer_load_dwordx4 v[{16+4*ds}:{19+4*ds}], v2, {SRD_K0}, s6 offen offset:{64*ds}")
    fb("s_waitcnt vmcnt(0)")
    for qb in range(4):
        for ds in range(4):
            c = "0" if ds == 0 else f"v[{32+4*qb}:{35+4*qb}]"
            fb(f"v_mfma_f32_16x16x32_bf16 v[{32+4*qb}:{35+4*qb}], v[{16+4*ds}:{19+4*ds}], {Q(qb,ds)}, {c}")
    fb("s_nop 15")
    for qb in range(4):
        b = 32 + 4 * qb
        fb(f"v_max3_f32 v{244+qb}, v{244+qb}, v{b}, v{b+1}")
        fb(f"v_max3_f32 v{244+qb}, v{244+qb}, v{b+2}, v{b+3}")
    fb(f"""
    s_add_u32 s6, s6, 4096
    s_cmp_lt_u32 s6, 524288
    s_cbranch_scc1 K_fb_loop
    """)
    for qb in range(4):
        m = f"v{244+qb}"
        fb(f"""
        v_mov_b32 v248, {m}
        s_nop 1
        v_permlane32_swap_b32 v248, {m}
        v_max_f32 {m}, {m}, v248
        v_mov_b32 v248, {m}
        s_nop 1
        v_permlane16_swap_b32 v248, {m}
        v_max_f32 {m}, {m}, v248
        """)
    fb("s_mov_b32 s6, 0\ns_mov_b32 s7, 16384")
    issue_groups(fb, dma_k(3, SRD_K0, "0") + dma_v(0, "s6") + dma_k(0, SRD_K, "s6") + dma_v(1, "s7") + dma_k(1, SRD_K, "s7"))
    fb("s_branch K_astart")
    fb2 = check_hazards([Inst("s_nop 15")] + fb.insts, fix=True)[1:]
    a2, st = lin(seg_a, None, [])
    b2, st = auto_wait_loop(body, st); b2 = merge_adjacent_waits(b2)
    q1, st = lin(p2a.insts, st, b2[-40:])
    q2, st = lin(p2.insts, WaitState(), q1[-40:])
    q2 = q1 + q2
    ab2, st = auto_wait_loop(abody, st); ab2 = merge_adjacent_waits(ab2)
    t2, st = lin(tail, st, ab2[-40:])
    po2, st = lin(post.insts, st, t2[-40:])
    for nm, seq in (("gloop", a2[-60:] + b2 + b2 + q2[:80]), ("aloop", q2[-60:] + ab2 + ab2 + t2 + po2[:40])):
        for p_ in check_hazards(seq): print("HAZARD", nm, p_, file=sys.stderr)
    return a2 + [Inst("K_gloop:")] + b2 + q2 + [Inst("K_aloop:")] + ab2 + t2 + po2 + fb2

def gen_kb(opts):
    T = lambda pr, idx: stamp(pr, opts, idx)
    NCH = 24
    ACC = lambda st_, cb, tb, r=None: (f"v[{16+st_*64+(cb*2+tb)*4}:{16+st_*64+(cb*2+tb)*4+3}]" if r is None else f"v{16+st_*64+(cb*2+tb)*4+r}")
    def AF3(s, cb, u=None):
        b = (s * 8 + cb) * 4
        return f"a[{b}:{b+3}]" if u is None else f"a[{b+2*u}:{b+2*u+1}]"
    G2 = opts.get('kbG', 0)
    R = 8 if G2 else opts.get('kbR', 4); D = R - 1
    RB = (opts.get('kbRB', 4) if G2 else R); DB = (RB - 1 if G2 else D); DW = 5 if G2 else D
    def BF3(st, s, tb):
        b = 64 + st * 16 + (s * 2 + tb) * 4
        return f"a[{b}:{b+3}]"
    VA = lambda cb, hi=0: f"v{208+hi*8+cb}"
    VOW = lambda ii: f"v{224+ii}"; VOA = lambda s: f"v{228+s}"
    SRD_W = "s[8:11]"; SRD_A = "s[12:15]"
    S_GP = "s19"; S_OA = "s24"; S_OW = "s26"; S_MW = "s25"
    PART = "s48"; TM = "s49"; TN = "s50"
    def a_rd(s, cb, stage):
        return [Inst(f"ds_read_b64_tr_b16 {AF3(s,cb,u)}, {VA(cb, stage >> 2)} offset:{(stage & 3)*16384 + (32*s+16*u)*256}") for u in range(2)]
    def sel_w():
        return [Inst(f"s_cmp_lt_u32 {S_GP}, 64"), Inst("s_cselect_b32 s8, s40, s42"), Inst("s_cselect_b32 s9, s41, s43"), Inst(f"s_add_u32 {S_GP}, {S_GP}, {R}")]
    def dma_w(stage):
        r = [[Inst(f"s_add_u32 m0, {S_MW}, {stage*16384}"), Inst(f"buffer_load_dwordx4 {VOW(0)}, {SRD_W}, {S_OW} offen lds")]]
        for ii in range(1, 4):
            r.append([Inst(f"buffer_load_dwordx4 {VOW(ii)}, {SRD_W}, {S_OW} offen offset:{ii*1024} lds")])
        return r, [Inst(f"s_add_u32 {S_OW}, {S_OW}, 65536")]
    def ld_a(st):
        so = S_OA
        if opts.get("kbuniq"):
            so = f"s{60 + (st & 3)}"
        r = [[Inst(f"buffer_load_dwordx4 {BF3(st,s,tb)}, {VOA(s)}, {SRD_A}, {so} offen offset:{tb*1024}")] for s in range(2) for tb in range(2)]
        adv = [Inst(f"s_add_u32 {S_OA}, {S_OA}, 16384")]
        if opts.get("kbuniq"):
            adv = [Inst(f"s_add_u32 s{60+i}, s{60+i}, 16384") for i in range(4)]
        return r, adv
    def period(c, accset):
        st = c % RB
        NG = 32
        pre = [[] for _ in range(NG + 1)]; mem = [[] for _ in range(NG + 1)]; gaps = [[] for _ in range(NG + 1)]
        pre[0] += [Hint(*[BF3(st, s, t) for s in range(2) for t in range(2)])]
        if not G2: pre[0] += [Inst(f"s_waitcnt vmcnt({8*(D-2)})"), Inst("s_barrier")]
        elif c % 2 == 0: pre[0] += [Inst("s_waitcnt vmcnt(16)"), Inst("s_barrier")]
        ag, aadv = ld_a((c + DB) % RB)
        wg_, wadv = dma_w((c + DW) % R)
        for s in range(2):
            for cb in range(8):
                k = 2 * (s * 8 + cb) + 2
                rd = a_rd(s, cb, (c + 1) % R)
                if k < 31: mem[k].append(rd[0]); mem[k + 1].append(rd[1])
                else: mem[31].append(rd[0]); mem[31].append(rd[1])
        mem[0] += ag[0]; mem[1] += ag[1]
        if (c + DW) % R == 0: gaps[0] += sel_w()[:1]; gaps[1] += sel_w()[1:2]; gaps[2] += sel_w()[2:3]; gaps[3] += sel_w()[3:]
        mem[5] += ag[2]; mem[8] += ag[3]; gaps[9] += aadv
        gaps[11] += wg_[0][:-1]
        for gp, d in zip([12, 16, 20, 24], wg_): mem[gp] += d[-1:]
        gaps[26] += wadv
        out = []
        for s in range(2):
            for cb in range(8):
                if cb == 0 or (s == 0 and cb == 4): pre[2 * (s * 8 + cb)].insert(0, Hint(*[AF3(s, c_) for c_ in range(cb, 8 if s else cb + 4)] + ([AF3(0, c_) for c_ in range(4, 8)] if False else [])))
                for tb in range(2):
                    k = 2 * (s * 8 + cb) + tb
                    d = ACC(accset, cb, tb)
                    out += pre[k]
                    out.append(Inst(f"v_mfma_f32_16x16x32_bf16 {d}, {AF3(s,cb)}, {BF3(st,s,tb)}, {d}"))
                    out += mem[k]; out += gaps[k]
        return out
    post = Prog()
    post("s_cmp_ge_u32 s2, 256\ns_cbranch_scc1 KB_end")
    T(post, 0)
    post(f"""
    s_load_dwordx2 s[40:41], s[0:1], 32
    s_load_dwordx2 s[42:43], s[0:1], 64
    s_load_dwordx2 s[34:35], s[0:1], 88
    s_load_dwordx2 s[30:31], s[0:1], 0
    s_load_dwordx2 s[32:33], s[0:1], 72
    s_load_dwordx2 s[72:73], s[0:1], 80
    v_and_b32 v1, 63, v0
    v_lshrrev_b32 v2, 6, v0
    s_nop 0
    v_readfirstlane_b32 s3, v2
    s_and_b32 {PART}, s2, 3
    s_bfe_u32 {TM}, s2, 0x10002
    s_lshl_b32 {TM}, {TM}, 3
    s_bfe_u32 s6, s2, 0x30003
    s_add_u32 {TM}, {TM}, s6
    s_lshr_b32 {TN}, s2, 6
    s_mul_i32 {S_GP}, {PART}, {NCH}
    s_sub_u32 s14, 92, {S_GP}
    s_min_u32 s14, s14, {NCH}
    s_lshl_b32 s14, s14, 14
    s_mul_i32 s6, {TM}, {92*16384 + opts.get("actpad", 4096)}
    s_lshl_b32 s7, {S_GP}, 14
    s_add_u32 s6, s6, s7
    s_add_u32 s36, s6, {WS_ACT}
    s_lshl_b32 {S_OA}, s3, 11
    s_lshl_b32 {S_OW}, {S_GP}, 16
    s_lshl_b32 s7, {TN}, 8
    s_add_u32 {S_OW}, {S_OW}, s7
    s_lshl_b32 {S_MW}, s3, 12
    v_lshrrev_b32 v2, 4, v1
    v_and_b32 v3, 15, v1
    s_lshl_b32 s7, s3, 4
    """)
    for ii in range(4):
        post(f"""
        v_add_u32 v4, {4*(ii&1)}, v2
        v_lshlrev_b32 v4, 1, v4
        v_xor_b32 v4, v4, v3
        v_lshlrev_b32 v4, 4, v4
        v_add_u32 v5, s7, v2
        v_add_u32 v5, {4*ii}, v5
        v_lshl_add_u32 v4, v5, 10, v4
        v_subrev_u32 {VOW(ii)}, {1024*ii}, v4
        """)
    act_lane_offset(post, VOA(0), VOA(1))
    post(f"""
    s_waitcnt lgkmcnt(0)
    s_and_b32 s41, s41, 0xffff
    s_sub_u32 s42, s42, {64*65536}
    s_subb_u32 s43, s43, 0
    s_and_b32 s43, s43, 0xffff
    s_mov_b32 s10, {92*65536}
    s_mov_b32 s11, 0x20000
    s_mov_b32 s20, s34
    s_and_b32 s21, s35, 0xffff
    s_mov_b32 s22, 0x10000000
    s_mov_b32 s23, 0x20000
    s_add_u32 s12, s34, s36
    s_addc_u32 s13, s35, 0
    s_and_b32 s13, s13, 0xffff
    s_mov_b32 s15, 0x20000
    """)
    if opts.get("kbuniq"):
        for i in range(4):
            post(f"s_cmp_eq_u32 {TN}, {i}\ns_cselect_b32 s{60+i}, {S_OA}, 0xf0000000")
        if opts.get("kbuniq") == 2:
            post(f"s_and_b32 s6, {TM}, 7\ns_cmp_eq_u32 s6, 0\ns_cselect_b32 {S_OW}, {S_OW}, 0xf0000000")
    post.extend(sel_w())
    if G2:
        for c in range(3): gr, adv = dma_w(c); issue_groups(post, gr); post.extend(adv)
        for c in range(3): gr, adv = ld_a(c); issue_groups(post, gr); post.extend(adv)
        for c in range(3, 5): gr, adv = dma_w(c); issue_groups(post, gr); post.extend(adv)
        for c in range(3, DB): gr, adv = ld_a(c); issue_groups(post, gr); post.extend(adv)
    else:
        for c in range(D):
            gr, adv = dma_w(c); issue_groups(post, gr); post.extend(adv)
            gr, adv = ld_a(c); issue_groups(post, gr); post.extend(adv)
    NINI = 4 * DW + 4 * DB
    NT = 0
    if opts.get("ctouch", 0):
        post("s_and_b32 s6, s3, 1")
        code_touch(post, "oproj_kernel", "TEXT_END", "s6", 2, vt=(238, 239, 240))
        NT += 1
    if opts.get("kbtouch"):
        NT += 5
        post(f"""
        v_and_b32 v4, 31, v1
        v_lshlrev_b32 v4, 7, v4
        v_lshrrev_b32 v5, 5, v1
        v_lshl_add_u32 v4, v5, 16, v4
        s_lshl_b32 s6, {TN}, 14
        s_lshl_b32 s7, s3, 12
        s_add_u32 s6, s6, s7
        s_add_u32 s6, s6, {4*16384}
        buffer_load_dword v232, v4, {SRD_A}, s6 offen
        s_add_u32 s6, s6, {8*16384}
        buffer_load_dword v233, v4, {SRD_A}, s6 offen
        s_add_u32 s6, s6, {8*16384}
        buffer_load_dword v234, v4, {SRD_A}, s6 offen
        """)
        post(f"""
        s_and_b32 s58, {TM}, 7
        s_lshl_b32 s58, s58, 2
        s_add_u32 s58, s58, {TN}
        s_lshl_b32 s58, s58, 2
        s_add_u32 s58, s58, s3
        s_mul_i32 s58, s58, 10
        s_add_u32 s58, s58, 256
        s_mul_i32 s59, {PART}, {24*64}
        s_add_u32 s59, s59, s58
        s_cmp_lt_u32 s59, 4096
        s_cselect_b32 s44, s40, s42
        s_cselect_b32 s45, s41, s43
        s_cselect_b32 s46, {64*65536}, s10
        s_mov_b32 s47, 0x20000
        s_lshl_b32 s59, s59, 10
        v_lshlrev_b32 v4, 7, v1
        v_add_u32 v5, 8192, v4
        buffer_load_dword v235, v4, s[44:47], s59 offen
        v_cmp_gt_u32 vcc, 16, v1
        s_and_saveexec_b64 s[6:7], vcc
        buffer_load_dword v236, v5, s[44:47], s59 offen
        s_mov_b64 exec, s[6:7]
        """)
    post(f"""
    v_bfe_u32 v2, v1, 2, 2
    v_and_b32 v3, 3, v1
    v_lshrrev_b32 v4, 4, v1
    v_lshl_add_u32 v6, v4, 2, v2
    v_and_b32 v8, 7, v6
    v_lshlrev_b32 v8, 1, v8
    v_lshlrev_b32 v6, 8, v6
    v_and_b32 v7, 1, v3
    v_lshl_add_u32 v6, v7, 3, v6
    v_lshrrev_b32 v7, 1, v3
    """)
    for cb in range(8):
        post(f"""
        v_add_u32 v9, {2*cb}, v7
        v_xor_b32 v9, v9, v8
        v_lshl_add_u32 {VA(cb)}, v9, 4, v6
        v_add_u32 {VA(cb,1)}, 65536, {VA(cb)}
        """)
    for i in range(128): post(f"v_mov_b32 v{16+i}, 0")
    post(f"""
    s_mov_b32 s56, {24//R}
    s_mov_b32 s57, 0
    s_cmp_eq_u32 {PART}, 2
    s_cselect_b32 s56, {16//R}, s56
    s_cselect_b32 s57, {8//R}, s57
    s_cmp_eq_u32 {PART}, 3
    s_cselect_b32 s56, 0, s56
    s_cselect_b32 s57, {24//R if R == 8 else 5}, s57
    s_waitcnt vmcnt({NINI-4+NT})
    s_barrier
    """)
    T(post, 9)
    for s in range(2):
        for cb in range(8): post.extend(a_rd(s, cb, 0))
    post("s_cmp_eq_u32 s56, 0\ns_cbranch_scc1 K3_l1pre")
    body0 = []; body1 = []
    for c in range(R): body0 += period(c, 0); body1 += period(c, 1)
    body0 += [Inst("s_sub_u32 s56, s56, 1"), Inst("s_cmp_lg_u32 s56, 0"), Inst("s_cbranch_scc1 K3_loop0")]
    mid = [Inst("K3_l1pre:"), Inst("s_cmp_eq_u32 s57, 0"), Inst("s_cbranch_scc1 K3_post")]
    body1 += [Inst("s_sub_u32 s57, s57, 1"), Inst("s_cmp_lg_u32 s57, 0"), Inst("s_cbranch_scc1 K3_loop1")]
    fin = Prog()
    fin("K3_post:")
    fin("s_waitcnt lgkmcnt(0)\ns_nop 15")
    T(fin, 10)
    fin(f"""
    s_lshl_b32 s7, {TM}, 2
    s_add_u32 s7, s7, {TN}
    s_mul_i32 s58, s7, 5
    s_lshl_b32 s58, s58, 15
    s_add_u32 s58, s58, {WS_SLAB}
    s_lshl_b32 s59, s3, 13
    s_add_u32 s59, s59, s58
    s_lshl_b32 s6, {PART}, 15
    s_add_u32 s6, s6, s59
    v_lshlrev_b32 v2, 4, v1
    s_cmp_eq_u32 {PART}, 3
    s_cbranch_scc1 K3_st1
    """)
    def slab_store(base):
        for j in range(8):
            t0 = 144 + (j & 3) * 4
            for i in range(4): fin(f"v_cvt_pk_bf16_f32 v{t0+i}, v{16+base+j*8+2*i}, v{16+base+j*8+2*i+1}")
            if j == 4: fin("s_add_u32 s6, s6, 4096")
            fin(f"buffer_store_dwordx4 v[{t0}:{t0+3}], v2, {SRD_WS}, s6 offen offset:{(j%4)*1024} sc1")
    slab_store(0)
    fin(f"""
    K3_st1:
    s_cmp_lt_u32 {PART}, 2
    s_cbranch_scc1 K3_sync
    s_add_u32 s6, {PART}, 1
    s_lshl_b32 s6, s6, 15
    s_add_u32 s6, s6, s59
    """)
    slab_store(64)
    fin(f"""
    K3_sync:
    s_mov_b32 s8, s30
    s_and_b32 s9, s31, 0xffff
    s_mov_b32 s10, {2048*1024}
    s_mov_b32 s11, 0x20000
    s_mov_b32 s12, s32
    s_and_b32 s13, s33, 0xffff
    s_mov_b32 s14, {2048*1024}
    s_mov_b32 s15, 0x20000
    s_lshl_b32 s6, {TM}, 7
    s_lshl_b32 s74, {PART}, 5
    s_add_u32 s6, s6, s74
    s_lshl_b32 s6, s6, 10
    s_lshl_b32 s74, {TN}, 8
    s_add_u32 s6, s6, s74
    s_lshl_b32 s74, s3, 6
    s_add_u32 s37, s6, s74
    v_and_b32 v3, 15, v1
    v_lshrrev_b32 v4, 4, v1
    v_lshlrev_b32 v3, 10, v3
    v_lshl_add_u32 v3, v4, 3, v3
    v_add_u32 v4, 16384, v3
    """)
    for jj in range(2):
        for tb in range(2):
            b = 200 + (jj * 2 + tb) * 2
            fin(f"buffer_load_dwordx2 v[{b}:{b+1}], v{3+tb}, s[8:11], s37 offen offset:{jj*32}")
    fin(f"""
    s_lshl_b32 s59, {PART}, 13
    s_add_u32 s59, s59, s58
    s_lshl_b32 s6, s3, 11
    s_add_u32 s59, s59, s6
    s_waitcnt vmcnt(4)
    s_barrier
    s_cmp_lg_u32 s3, 0
    s_cbranch_scc1 K3_wait
    s_and_b32 s6, s7, 3
    s_lshl_b32 s6, s6, 6
    s_lshr_b32 s74, s7, 4
    s_lshl_b32 s74, s74, 2
    s_add_u32 s6, s6, s74
    s_bfe_u32 s74, s7, 0x20002
    s_lshl_b32 s74, s74, 3
    s_lshl_b32 s75, 1, s74
    v_mov_b32 v6, s6
    v_mov_b32 v7, s75
    s_mov_b64 exec, 1
    global_atomic_add v6, v7, {SRD_DBG} sc1
    """)
    poll(fin, "K3_spin", "v6", 4, shift="s74", sleep=1)
    fin(f"""
    s_mov_b64 exec, -1
    K3_wait:
    s_barrier
    """)
    T(fin, 11)
    for sl in range(5):
        fin(f"s_add_u32 s6, s59, {sl*32768}")
        for jj in range(2):
            b = 16 + (sl * 2 + jj) * 4
            fin(f"buffer_load_dwordx4 v[{b}:{b+3}], v2, {SRD_WS}, s6 offen offset:{jj*1024} sc1")
    fin(f"s_mov_b32 s7, {f32hex(-LOG2E)}")
    for jj in range(2):
        for tb in range(2):
            src = lambda sl, i: f"v{16+(sl*2+jj)*4+tb*2+i}"
            sv = [f"v{60+r}" for r in range(4)]; yv = [f"v{64+r}" for r in range(4)]; tv = [f"v{68+r}" for r in range(4)]
            def unp(dst, sl):
                fin(f"v_lshlrev_b32 {dst[0]}, 16, {src(sl,0)}\nv_and_b32 {dst[1]}, 0xffff0000, {src(sl,0)}")
                fin(f"v_lshlrev_b32 {dst[2]}, 16, {src(sl,1)}\nv_and_b32 {dst[3]}, 0xffff0000, {src(sl,1)}")
            unp(sv, 0); unp(tv, 1)
            for r in range(4): fin(f"v_add_f32 {sv[r]}, {sv[r]}, {tv[r]}")
            unp(tv, 2)
            for r in range(4): fin(f"v_add_f32 {sv[r]}, {sv[r]}, {tv[r]}")
            unp(yv, 3); unp(tv, 4)
            for r in range(4): fin(f"v_add_f32 {yv[r]}, {yv[r]}, {tv[r]}")
            for r in range(4): fin(f"v_mul_f32 {tv[r]}, s7, {yv[r]}")
            for r in range(4): fin(f"v_exp_f32 {tv[r]}, {tv[r]}")
            for r in range(4): fin(f"v_add_f32 {tv[r]}, 1.0, {tv[r]}")
            for r in range(4): fin(f"v_rcp_f32 {tv[r]}, {tv[r]}")
            for r in range(4): fin(f"v_mul_f32 {yv[r]}, {yv[r]}, {tv[r]}")
            xb = 200 + (jj * 2 + tb) * 2
            fin(f"v_lshlrev_b32 {tv[0]}, 16, v{xb}\nv_and_b32 {tv[1]}, 0xffff0000, v{xb}\nv_lshlrev_b32 {tv[2]}, 16, v{xb+1}\nv_and_b32 {tv[3]}, 0xffff0000, v{xb+1}")
            for r in range(4): fin(f"v_fma_f32 {sv[r]}, {sv[r]}, {yv[r]}, {tv[r]}")
            ob = 72 + 2 * ((jj * 2 + tb) & 1)
            fin(f"v_cvt_pk_bf16_f32 v{ob}, {sv[0]}, {sv[1]}\nv_cvt_pk_bf16_f32 v{ob+1}, {sv[2]}, {sv[3]}")
            fin(f"buffer_store_dwordx2 v[{ob}:{ob+1}], v{3+tb}, s[12:15], s37 offen offset:{jj*32}")
    if opts.get("time"):
        fin("s_waitcnt vmcnt(0)")
        T(fin, 8)
        fin(f"""
        s_waitcnt lgkmcnt(0)
        s_lshl_b32 s6, s2, 2
        s_add_u32 s6, s6, s3
        s_lshl_b32 s6, s6, 6
        s_add_u32 s6, s6, {WS_TIME + 65536}
        v_mov_b32 v3, s6
        """)
        for k_, i in enumerate((0, 9, 10, 11, 8)):
            fin(f"v_mov_b32 v2, s{SB(i)}\nbuffer_store_dword v2, v3, {SRD_WS}, 0 offen offset:{4*k_}")
        for i in range(2):
            fin(f"v_mov_b32 v2, s{64+2*i}\nbuffer_store_dword v2, v3, {SRD_WS}, 0 offen offset:{32+4*i}")
    if opts.get("dbgtime"):
        fin(f"""
        s_cmp_lg_u32 s2, {opts.get("dbgwg", 0)}
        s_cbranch_scc1 KB_end
        s_cmp_lg_u32 s3, 0
        s_cbranch_scc1 KB_end
        s_waitcnt vmcnt(0)
        v_lshlrev_b32 v2, 2, v1
        v_add_u32 v2, {WS_TIME + opts.get("dbgwg", 0) * 256}, v2
        buffer_load_dword v3, v2, {SRD_WS}, 0 offen sc1
        s_waitcnt vmcnt(0)
        v_readfirstlane_b32 s6, v3
        s_nop 1
        v_subrev_u32 v3, s6, v3
        v_mov_b32 v4, s{SB(0)}
        v_subrev_u32 v4, s6, v4
        v_mov_b32 v5, s{SB(8)}
        v_subrev_u32 v5, s6, v5
        v_mov_b32 v6, s{SB(9)}
        v_subrev_u32 v6, s6, v6
        v_mov_b32 v7, s{SB(10)}
        v_subrev_u32 v7, s6, v7
        v_cmp_eq_u32 vcc, 8, v1
        s_nop 1
        v_cndmask_b32 v3, v3, v4, vcc
        v_cmp_eq_u32 vcc, 9, v1
        s_nop 1
        v_cndmask_b32 v3, v3, v6, vcc
        v_cmp_eq_u32 vcc, 10, v1
        s_nop 1
        v_cndmask_b32 v3, v3, v7, vcc
        v_cmp_eq_u32 vcc, 11, v1
        s_nop 1
        v_cndmask_b32 v3, v3, v5, vcc
        v_lshlrev_b32 v2, 2, v1
        v_add_u32 v2, 16, v2
        v_cmp_gt_u32 vcc, 12, v1
        s_and_saveexec_b64 s[6:7], vcc
        global_store_dword v2, v3, {SRD_DBG}
        """)
    fin("KB_end:\ns_endpgm")
    po2, st = lin(post.insts, None, [])
    b0, st = auto_wait_loop(body0, st); b0 = merge_adjacent_waits(b0)
    b1, st = auto_wait_loop(body1, st); b1 = merge_adjacent_waits(b1)
    f2, st = lin(fin.insts, st, b1[-40:])
    for nm, seq in (("l3", po2[-40:] + b0 + b0 + b1 + b1 + f2[:30]),):
        for p_ in check_hazards(seq): print("HAZARD", nm, p_, file=sys.stderr)
    return po2 + [Inst("K3_loop0:")] + b0 + mid + [Inst("K3_loop1:")] + b1 + f2

def gen(opts):
    hdr = f"""; @launch kernel=attn_kernel grid=(256,1,1) block=(256,1,1) lds=131328
; @launch kernel=oproj_kernel grid=(256,1,1) block=(256,1,1) lds=131072
.amdgcn_target "amdgcn-amd-amdhsa--gfx950"
.text
"""
    return hdr + kernel_text("attn_kernel", gen_ka(opts), 512, 256) + kernel_text("oproj_kernel", gen_kb(opts) + [Inst("TEXT_END:")], 384, 256)

if __name__ == "__main__":
    opts = {}
    for a in sys.argv[2:]:
        k, _, v = a.partition("=")
        opts[k] = int(v) if v else 1
    open(sys.argv[1], "w").write(gen(opts))
```

```python
import sys, math
sys.path.insert(0, "dev")
from asmdsl import *
from gen import (NAME, WS_XN, WS_ACT, WS_SLAB, WS_TIME, LOG2E, QSCALE, f32hex, kernel_text, finish, rbf16,
                 S, P, NEGM, Qb, Q, VKA, VVA, VOFFK, VOFFV, L, O, KF, VF, SRD_K, SRD_V, SRD_K0, SRD_WS, S_OFF, S_WB, S_CNT,
                 SRD_WQ, SRD_G, SRD_U, k_read, v_reads, dma_k, dma_v, emit_phase)
from gen2 import ln_rows
from phase2 import emit_phase2, LACCN, ONES_A, LREGS
import gen as _g

SRD_DBG = "s[72:73]"
SB = lambda i: 80 + (i % 11) * 2 if i < 11 else 60 + (i - 11) * 2
CY = {1: 64, 2: 66, 3: 68, 4: 70, 9: 64, 10: 66}
def stamp(pr, opts, idx):
    if opts.get("time"):
        b = SB(idx)
        pr(f"s_memrealtime s[{b}:{b+1}]")
        if idx in CY: pr(f"s_memtime s[{CY[idx]}:{CY[idx]+1}]")

def poll(pr, label, addr_v, thresh, shift=None, sleep=2, cache="sc1"):
    pr(f"""
    {label}:
    global_load_dword v5, {addr_v}, {SRD_DBG} {cache}
    s_waitcnt vmcnt(0)
    v_readfirstlane_b32 s75, v5
    """)
    if shift is not None:
        pr(f"s_lshr_b32 s75, s75, {shift}\ns_and_b32 s75, s75, 0xff")
    pr(f"""
    s_cmp_ge_u32 s75, {thresh}
    s_cbranch_scc1 {label}_ok
    s_sleep {sleep}
    s_branch {label}
    {label}_ok:
    """)

def lin(insts, st, prev):
    a, st = auto_wait_linear(insts, st)
    a = merge_adjacent_waits(a)
    n = len(prev)
    return check_hazards(prev + a, fix=True)[n:], st

def issue_groups(pr, groups):
    for d in groups:
        pr.extend(d[:-1])
        if len(d) > 1: pr("s_nop 0")
        pr.extend(d[-1:])

def QACC(cb, tb, r=None):
    b = 16 + (cb * 4 + tb) * 4
    return f"v[{b}:{b+3}]" if r is None else f"v{b+r}"
def GACC(cb, tb, r=None):
    b = (cb * 4 + tb) * 4
    return f"a[{b}:{b+3}]" if r is None else f"a{b+r}"
def UACC(cb, tb, r=None):
    b = 64 + (cb * 4 + tb) * 4
    return f"a[{b}:{b+3}]" if r is None else f"a{b+r}"
def AF(cb, u=None):
    b = 128 + cb * 4
    if u is None: return f"a[{b}:{b+3}]"
    return f"a[{b+2*u}:{b+2*u+1}]"
def BF(st, tb):
    b = 144 + st * 16 + tb * 4
    return f"v[{b}:{b+3}]"
VA_Q = lambda ds: f"v{230+ds}"
VA_G = lambda cb: f"v{234+cb}"
VO_X = "v238"; VO_WQ = lambda ii: f"v{239+ii}"; VO_G = "v241"
S_OX = "s50"; S_OWQ = "s51"; S_OGU = "s52"
S_MWQ = "s55"; S_MG = "s56"; S_MU = "s57"
GW = 65536

def a_reads(cb, stage):
    if cb < 8:
        ds, h = cb >> 1, cb & 1
        return [Inst(f"ds_read_b64_tr_b16 {AF(cb,u)}, {VA_Q(ds)} offset:{stage*16384 + 8*h + 1024*u}") for u in range(2)]
    mat, c2 = (cb - 8) >> 2, (cb - 8) & 3
    return [Inst(f"ds_read_b64_tr_b16 {AF(cb,u)}, {VA_G(c2)} offset:{stage*16384 + 8192 + 4096*mat + 512*u}") for u in range(2)]
def w_dma(stage):
    r = []
    r.append([Inst(f"s_add_u32 m0, {S_MWQ}, {stage*16384}"), Inst(f"buffer_load_dwordx4 {VO_WQ(0)}, {SRD_WQ}, {S_OWQ} offen lds")])
    r.append([Inst(f"buffer_load_dwordx4 {VO_WQ(1)}, {SRD_WQ}, {S_OWQ} offen offset:1024 lds")])
    r.append([Inst(f"s_add_u32 m0, {S_MG}, {stage*16384}"), Inst(f"buffer_load_dwordx4 {VO_G}, {SRD_G}, {S_OGU} offen lds")])
    r.append([Inst(f"s_add_u32 m0, {S_MU}, {stage*16384}"), Inst(f"buffer_load_dwordx4 {VO_G}, {SRD_U}, {S_OGU} offen lds")])
    adv = [Inst(f"s_add_u32 {S_OWQ}, {S_OWQ}, {32*8192}"), Inst(f"s_add_u32 {S_OGU}, {S_OGU}, {32*3584}")]
    return r, adv
def x_loads(st):
    r = [[Inst(f"buffer_load_dwordx4 {BF(st,tb)}, {VO_X}, {SRD_WS}, {S_OX} offen offset:{tb*1024} sc1")] for tb in range(4)]
    return r, [Inst(f"s_add_u32 {S_OX}, {S_OX}, 16384")]

def gemm_period(c, groups, adv, read_next=True, extra=(), nvm=8):
    st = c & 3
    NG = 64
    pre = [[] for _ in range(NG + 1)]; mem = [[] for _ in range(NG + 1)]; gaps = [[] for _ in range(NG + 1)]
    pre[0].append(Hint(*[BF(st, t) for t in range(4)]))
    if nvm is not None: pre[0].append(Inst(f"s_waitcnt vmcnt({nvm})"))
    pre[0].append(Inst("s_barrier"))
    if read_next:
        for cb in range(16):
            rd = a_reads(cb, (c + 1) & 3)
            if cb < 15:
                mem[4 * cb + 4].append(rd[0]); mem[4 * cb + 5].append(rd[1])
            else:
                mem[63].append(rd[0]); mem[63].append(rd[1])
    pos = [2, 6, 10, 14, 18, 22, 26, 30, 34, 38, 42, 46]
    for gp, d in zip(pos, groups):
        gaps[gp - 1] += d[:-1]
        mem[gp] += d[-1:]
    for i, a in enumerate(adv): gaps[48 + i].append(a)
    for gp, lst in extra:
        for ins in lst:
            (mem if ins.kind in ("vmem", "dma", "lds") else gaps)[gp].append(ins)
    out = []
    for cb in range(16):
        if cb % 4 == 0:
            pre[4 * cb].insert(0, Hint(*[AF(c_) for c_ in range(cb, cb + 4)]))
        for tb in range(4):
            k = 4 * cb + tb
            d = QACC(cb, tb) if cb < 8 else GACC(cb - 8, tb) if cb < 12 else UACC(cb - 12, tb)
            out += pre[k]
            out.append(Inst(f"v_mfma_f32_16x16x32_bf16 {d}, {AF(cb)}, {BF(st,tb)}, {d}"))
            out += mem[k]; out += gaps[k]
    return out

def act_lane_offset(pr, dst0, dst1=None):
    pr(f"""
    v_and_b32 v2, 15, v1
    v_lshrrev_b32 v3, 4, v1
    v_bfe_u32 v4, v1, 2, 1
    v_lshlrev_b32 v4, 1, v4
    v_bfe_u32 v5, v1, 3, 1
    v_mul_u32_u24 v5, 3, v5
    v_xor_b32 v4, v4, v5
    v_xor_b32 v4, v4, v3
    v_lshlrev_b32 v4, 4, v4
    v_lshl_add_u32 {dst0}, v2, 6, v4
    """)
    if dst1: pr(f"v_add_u32 {dst1}, 8192, {dst0}")


def code_touch(pr, start_label, end_label, idx_sgpr, nblk, vt=(250, 251, 252)):
    a, b, d = vt
    pr(f"""
    s_getpc_b64 s[78:79]
    CT_{start_label}:
    s_sub_u32 s78, s78, CT_{start_label}-{start_label}
    s_subb_u32 s79, s79, 0
    s_lshl_b32 s77, {idx_sgpr}, 13
    v_lshlrev_b32 v{a}, 7, v1
    v_add_u32 v{a}, s77, v{a}
    v_min_u32 v{a}, {end_label}-{start_label}-4, v{a}
    v_mov_b32 v{b}, s79
    v_add_co_u32 v{a}, vcc, s78, v{a}
    v_addc_co_u32 v{b}, vcc, 0, v{b}, vcc
    global_load_dword v{d}, v[{a}:{b}], off
    """)

def gen_ka(opts):
    global emit_phase
    NS = opts.get('nsum', 2) if opts.get('ph2', 1) else 0
    emit_phase = emit_phase2 if opts.get('ph2', 1) else _g.emit_phase
    opts = dict(opts); opts['nsum'] = NS
    T = lambda pr, idx: stamp(pr, opts, idx)
    pr = Prog()
    pr("s_cmp_ge_u32 s2, 256\ns_cbranch_scc1 KA_end")
    T(pr, 0)
    pr(f"""
    s_load_dwordx2 s[76:77], s[0:1], 0
    s_load_dwordx2 s[34:35], s[0:1], 88
    s_load_dwordx4 s[28:31], s[0:1], 8
    s_load_dwordx2 s[32:33], s[0:1], 24
    s_load_dwordx4 s[40:43], s[0:1], 48
    s_load_dwordx2 s[72:73], s[0:1], 80
    v_and_b32 v1, 63, v0
    v_lshrrev_b32 v2, 6, v0
    s_nop 0
    v_readfirstlane_b32 s3, v2
    s_and_b32 s4, s2, 7
    s_lshl_b32 s4, s4, 2
    s_lshr_b32 s5, s2, 3
    s_and_b32 s6, s5, 3
    s_add_u32 s4, s4, s6
    s_lshr_b32 s5, s2, 5
    s_lshl_b32 {S_WB}, s3, 12
    s_lshl_b32 s16, s5, 8
    s_lshl_b32 s17, s4, 3
    s_add_u32 s16, s16, s17
    s_lshl_b32 s17, s3, 1
    s_add_u32 s16, s16, s17
    s_lshl_b32 s17, s16, 10
    v_lshlrev_b32 v2, 4, v1
    s_waitcnt lgkmcnt(0)
    s_mov_b32 s8, s76
    s_and_b32 s9, s77, 0xffff
    s_mov_b32 s10, {2048*1024}
    s_mov_b32 s11, 0x20000
    buffer_load_dwordx4 v[4:7], v2, s[8:11], s17 offen
    buffer_load_dwordx4 v[8:11], v2, s[8:11], s17 offen offset:1024
    s_mov_b32 s20, s34
    s_and_b32 s21, s35, 0xffff
    s_mov_b32 s22, 0x10000000
    s_mov_b32 s23, 0x20000
    s_mov_b32 s36, s32
    s_and_b32 s37, s33, 0xffff
    s_mov_b32 s38, {0 if opts.get("kanow") else 512*8192}
    s_mov_b32 s39, 0x20000
    s_mov_b32 s44, s42
    s_and_b32 s45, s43, 0xffff
    s_and_b32 s41, s41, 0xffff
    s_cmp_lt_u32 s4, 28
    s_cselect_b32 s42, {0 if opts.get("kanow") else 512*3584}, 0
    s_mov_b32 s46, s42
    s_mov_b32 s43, 0x20000
    s_mov_b32 s47, 0x20000
    s_lshl_b32 {S_OX}, s5, 18
    s_add_u32 {S_OX}, {S_OX}, {WS_XN}
    s_add_u32 {S_OX}, {S_OX}, {S_WB}
    {"s_mov_b32 s50, 0xf0000000" if opts.get("kanox") else ""}
    s_lshl_b32 {S_OWQ}, s4, 8
    s_lshl_b32 {S_OGU}, s4, 7
    s_lshl_b32 s6, s3, 11
    s_add_u32 {S_MWQ}, s6, {GW}
    s_lshl_b32 s6, s3, 10
    s_add_u32 {S_MG}, s6, {GW + 8192}
    s_add_u32 {S_MU}, s6, {GW + 12288}
    v_lshrrev_b32 v12, 4, v1
    v_and_b32 v13, 15, v1
    v_lshlrev_b32 v14, 2, v12
    v_xor_b32 v14, v14, v13
    v_lshlrev_b32 v14, 4, v14
    s_lshl_b32 s6, s3, 3
    v_add_u32 v15, s6, v12
    v_lshlrev_b32 v15, 13, v15
    v_add_u32 {VO_WQ(0)}, v15, v14
    v_add_u32 {VO_WQ(1)}, {4*8192-1024}, {VO_WQ(0)}
    v_lshrrev_b32 v12, 3, v1
    v_and_b32 v13, 7, v1
    v_bfe_u32 v14, v1, 4, 1
    s_and_b32 s7, s3, 1
    s_lshl_b32 s7, s7, 1
    v_or_b32 v14, s7, v14
    v_lshlrev_b32 v14, 1, v14
    v_xor_b32 v14, v14, v13
    v_add_u32 v15, s6, v12
    s_movk_i32 s7, 3584
    v_mul_lo_u32 v15, v15, s7
    v_lshl_add_u32 {VO_G}, v14, 4, v15
    """)
    for c in range(3):
        gr, adv = w_dma(c)
        issue_groups(pr, gr); pr.extend(adv)
    if opts.get("ctouch", 0):
        pr("""
        s_lshr_b32 s6, s2, 3
        s_lshl_b32 s6, s6, 2
        s_add_u32 s6, s6, s3
        s_mul_i32 s7, s6, 43
        s_lshr_b32 s7, s7, 8
        s_mul_i32 s7, s7, 6
        s_sub_u32 s6, s6, s7
        """)
        code_touch(pr, "attn_kernel", "TEXT_END", "s6", 6)
    pr(f"""
    v_bfe_u32 v3, v1, 2, 3
    v_lshlrev_b32 v3, 14, v3
    v_lshrrev_b32 v12, 5, v1
    v_lshl_add_u32 v3, v12, 6, v3
    v_and_b32 v12, 3, v1
    s_lshr_b32 s18, s16, 8
    s_lshl_b32 s18, s18, 18
    s_and_b32 s19, s16, 255
    s_lshl_b32 s6, s19, 6
    s_add_u32 s18, s18, s6
    s_add_u32 s18, s18, {WS_XN}
    s_lshr_b32 s6, s19, 2
    s_and_b32 s6, s6, 3
    s_and_b32 s7, s6, 1
    s_lshl_b32 s7, s7, 1
    s_lshr_b32 s6, s6, 1
    s_mul_i32 s6, s6, 3
    s_xor_b32 s7, s7, s6
    v_xor_b32 v12, s7, v12
    v_lshl_add_u32 v3, v12, 4, v3
    """)
    ln_rows(pr, opts)
    pr(f"""
    s_lshl_b32 s6, s4, 19
    s_add_u32 s16, s28, s6
    s_addc_u32 s17, s29, 0
    s_and_b32 s17, s17, 0xffff
    s_mov_b32 s18, 524288
    s_mov_b32 s19, 0x20000
    s_add_u32 s8, s16, 16384
    s_addc_u32 s9, s17, 0
    s_mov_b32 s10, {524288-16384}
    s_mov_b32 s11, 0x20000
    s_add_u32 s12, s30, s6
    s_addc_u32 s13, s31, 0
    s_and_b32 s13, s13, 0xffff
    s_mov_b32 s14, 524288
    s_mov_b32 s15, 0x20000
    """)
    pr("s_waitcnt vmcnt(0)\ns_barrier")
    T(pr, 6)
    pr(f"""
    s_and_b32 s6, s5, 3
    s_lshl_b32 s6, s6, 6
    s_lshr_b32 s7, s5, 2
    s_lshl_b32 s7, s7, 2
    s_add_u32 s74, s6, s7
    s_cmp_lg_u32 s3, 0
    s_cbranch_scc1 K_xn_skip
    v_mov_b32 v2, s74
    v_mov_b32 v4, 1
    s_mov_b64 exec, 1
    global_atomic_add v2, v4, {SRD_DBG} sc1
    s_mov_b64 exec, -1
    K_xn_skip:
    """)
    pr(f"""
    v_bfe_u32 v2, v1, 2, 2
    v_and_b32 v3, 3, v1
    v_lshrrev_b32 v4, 4, v1
    v_lshl_add_u32 v5, v4, 3, v2
    v_lshlrev_b32 v6, 8, v5
    v_add_u32 v6, {GW}, v6
    v_lshlrev_b32 v7, 2, v2
    """)
    for ds in range(4):
        pr(f"""
        v_add_u32 v8, {4*ds}, v3
        v_xor_b32 v8, v8, v7
        v_lshl_add_u32 {VA_Q(ds)}, v8, 4, v6
        """)
    pr(f"""
    v_lshlrev_b32 v6, 7, v5
    v_add_u32 v6, {GW}, v6
    v_and_b32 v7, 1, v3
    v_lshl_add_u32 v6, v7, 3, v6
    v_bfe_u32 v7, v1, 3, 1
    v_and_b32 v8, 1, v4
    v_lshl_or_b32 v7, v8, 1, v7
    v_lshlrev_b32 v7, 1, v7
    v_lshrrev_b32 v9, 1, v3
    """)
    for cb in range(4):
        pr(f"""
        v_add_u32 v8, {2*cb}, v9
        v_xor_b32 v8, v8, v7
        v_lshl_add_u32 {VA_G(cb)}, v8, 4, v6
        """)
    act_lane_offset(pr, VO_X)
    pr(f"""
    v_lshrrev_b32 v2, 4, v1
    v_and_b32 v3, 15, v1
    v_lshlrev_b32 v4, 8, v2
    v_add_u32 v4, {S_WB}, v4
    """)
    for ii in range(4):
        pr(f"""
        v_add_u32 v5, {4*ii}, v2
        v_xor_b32 v5, v5, v3
        v_lshl_add_u32 {VOFFK(ii)}, v5, 4, v4
        """)
    for par in range(2):
        pr(f"""
        v_add_u32 v5, {4*par}, v2
        v_lshlrev_b32 v5, 1, v5
        v_xor_b32 v5, v5, v3
        v_lshl_add_u32 {VOFFV(par)}, v5, 4, v4
        """)
    pr(f"""
    v_and_b32 v2, 15, v1
    v_lshrrev_b32 v3, 4, v1
    v_lshlrev_b32 v5, 8, v2
    """)
    for ds in range(4):
        pr(f"""
        v_add_u32 v6, {4*ds}, v3
        v_xor_b32 v6, v6, v2
        v_lshl_add_u32 {VKA(ds)}, v6, 4, v5
        """)
    pr(f"""
    v_bfe_u32 v2, v1, 2, 2
    v_and_b32 v3, 3, v1
    v_lshrrev_b32 v4, 4, v1
    v_lshl_add_u32 v6, v4, 2, v2
    v_and_b32 v8, 7, v6
    v_lshlrev_b32 v8, 1, v8
    v_lshlrev_b32 v6, 8, v6
    v_add_u32 v6, 65536, v6
    v_and_b32 v7, 1, v3
    v_lshl_add_u32 v6, v7, 3, v6
    v_lshrrev_b32 v7, 1, v3
    """)
    for db in range(8):
        pr(f"""
        v_add_u32 v9, {2*db}, v7
        v_xor_b32 v9, v9, v8
        v_lshl_add_u32 {VVA(db)}, v9, 4, v6
        """)
    for i in range(128): pr(f"v_mov_b32 v{16+i}, 0")
    for i in range(128): pr(f"v_accvgpr_write_b32 a{i}, 0")
    for cb in range(16): pr.extend(a_reads(cb, 0))
    pr(f"""
    s_cmp_lg_u32 s3, 0
    s_cbranch_scc1 K_xn_wait
    v_mov_b32 v2, s74
    s_mov_b64 exec, 1
    """)
    poll(pr, "K_xn_poll", "v2", 32)
    pr(f"""
    s_mov_b64 exec, -1
    K_xn_wait:
    s_barrier
    """)
    T(pr, 7)
    for c in range(3):
        gr, adv = x_loads(c)
        issue_groups(pr, gr); pr.extend(adv)
    T(pr, 1)
    pr(f"s_mov_b32 {S_CNT}, 3")
    seg_a = pr.insts
    def full(c):
        xg, xa = x_loads((c + 3) & 3); wg_, wa = w_dma((c + 3) & 3)
        return gemm_period(c, xg + wg_, xa + wa)
    body = []
    for c in range(4): body += full(c)
    body += [Inst(f"s_sub_u32 {S_CNT}, {S_CNT}, 1"), Inst(f"s_cmp_lg_u32 {S_CNT}, 0"), Inst("s_cbranch_scc1 K_gloop")]
    def mk_touch():
        tp = Prog()
        tp(f"""
        s_load_dwordx2 s[40:41], s[0:1], 32
        s_load_dwordx2 s[42:43], s[0:1], 64
        s_and_b32 s51, s2, 3
        s_bfe_u32 s58, s2, 0x30003
        s_lshl_b32 s58, s58, 2
        s_lshr_b32 s59, s2, 6
        s_add_u32 s58, s58, s59
        s_lshl_b32 s58, s58, 2
        s_add_u32 s58, s58, s3
        s_lshl_b32 s58, s58, 4
        s_mul_i32 s59, s51, {24*64}
        s_add_u32 s59, s59, s58
        v_lshlrev_b32 v242, 7, v1
        v_add_u32 v243, 8192, v242
        """)
        tp2 = Prog()
        tp2(f"""
        s_waitcnt lgkmcnt(0)
        s_and_b32 s41, s41, 0xffff
        s_sub_u32 s42, s42, {64*65536}
        s_subb_u32 s43, s43, 0
        s_and_b32 s43, s43, 0xffff
        s_cmp_lt_u32 s59, 4096
        s_cselect_b32 s44, s40, s42
        s_cselect_b32 s45, s41, s43
        s_mov_b32 s46, {92*65536}
        s_cselect_b32 s46, {64*65536}, s46
        s_mov_b32 s47, 0x20000
        s_lshl_b32 s59, s59, 10
        s_cmp_lt_u32 s58, {24*64}
        s_cselect_b32 s59, s59, 0xf0000000
        """)
        tp3 = [Inst("buffer_load_dword v240, v242, s[44:47], s59 offen"), Inst("buffer_load_dword v241, v243, s[44:47], s59 offen")]
        return tp.insts, tp2.insts, tp3
    p2 = Prog()
    p2.extend(full(12))
    p2(f"s_mov_b32 s6, 0\ns_mov_b32 s7, 16384")
    p2.extend(gemm_period(13, dma_k(3, SRD_K0, "0") + dma_v(0, "s6"), []))
    p2.extend(gemm_period(14, dma_k(0, SRD_K, "s6") + dma_v(1, "s7"), []))
    p2.extend(gemm_period(15, dma_k(1, SRD_K, "s7"), [], read_next=False, nvm=None))
    T(p2, 2)
    p2(f"s_mov_b32 s6, {f32hex(QSCALE)}\ns_mov_b32 s7, {f32hex(QSCALE)}\ns_nop 7")
    for tb in range(4):
        for ds in range(4):
            for h in range(2):
                b = 16 + ((2 * ds + h) * 4 + tb) * 4
                p2(f"v_pk_mul_f32 v[{b}:{b+1}], v[{b}:{b+1}], s[6:7]\nv_pk_mul_f32 v[{b+2}:{b+3}], v[{b+2}:{b+3}], s[6:7]")
            for h in range(2):
                cb = 2 * ds + h
                for i in range(2):
                    p2(f"v_cvt_pk_bf16_f32 v{Qb(tb,ds)+2*h+i}, {QACC(cb,tb,2*i)}, {QACC(cb,tb,2*i+1)}")
    p2("s_cmp_ge_u32 s4, 28\ns_cbranch_scc1 K_noh")
    p2(f"""
    s_lshl_b32 s6, s5, 1
    s_lshr_b32 s7, s3, 1
    s_add_u32 s6, s6, s7
    s_mul_i32 s6, s6, {92*16384 + opts.get("actpad", 4096)}
    s_add_u32 s7, s4, 64
    s_lshl_b32 s7, s7, 14
    s_add_u32 s6, s6, s7
    s_and_b32 s7, s3, 1
    s_lshl_b32 s7, s7, 12
    s_add_u32 s6, s6, s7
    s_add_u32 s6, s6, {WS_ACT}
    """)
    act_lane_offset(p2, "v2", "v3")
    p2(f"""
    s_mov_b32 s26, {f32hex(-LOG2E)}
    s_mov_b32 s27, {f32hex(-LOG2E)}
    s_mov_b32 s78, 1.0
    s_mov_b32 s79, 1.0
    """)
    for tb in range(4):
        for e in range(2):
            t0 = 16 + e * 32
            for hh in range(2):
                cb = 2 * e + hh
                for r in range(4):
                    j = hh * 4 + r
                    p2(f"v_accvgpr_read_b32 v{t0+j}, {GACC(cb,tb,r)}")
                    p2(f"v_accvgpr_read_b32 v{t0+8+j}, {UACC(cb,tb,r)}")
            pk = lambda op, d, a, b: p2(f"{op} v[{d}:{d+1}], v[{a}:{a+1}], {b}")
            for j in range(0, 8, 2): pk("v_pk_mul_f32", t0 + 16 + j, t0 + j, "s[26:27]")
            for j in range(8): p2(f"v_exp_f32 v{t0+16+j}, v{t0+16+j}")
            for j in range(0, 8, 2): pk("v_pk_mul_f32", t0 + j, t0 + j, f"v[{t0+8+j}:{t0+9+j}]")
            for j in range(0, 8, 2): pk("v_pk_add_f32", t0 + 16 + j, t0 + 16 + j, "s[78:79]")
            for j in range(8): p2(f"v_rcp_f32 v{t0+16+j}, v{t0+16+j}")
            for j in range(0, 8, 2): pk("v_pk_mul_f32", t0 + j, t0 + j, f"v[{t0+16+j}:{t0+17+j}]")
            for i in range(4): p2(f"v_cvt_pk_bf16_f32 v{t0+24+i}, v{t0+2*i}, v{t0+2*i+1}")
            p2(f"buffer_store_dwordx4 v[{t0+24}:{t0+27}], v{2+e}, {SRD_WS}, s6 offen offset:{tb*1024}")
    p2("K_noh:")
    p2("s_mov_b32 s27, 0")
    p3 = Prog()
    p3("K_astart:")
    for i in range(128): p3(f"v_accvgpr_write_b32 a{i}, 0")
    for qb in range(4): p3(f"v_mov_b32 {L(qb)}, 0")
    for i in range(4): p3(f"v_mov_b32 v{128+i}, 0x3f803f80")
    for j in range(NS):
        for i in range(4): p3(f"v_mov_b32 v{LREGS[j]+i}, 0")
    p3(f"s_mov_b32 {S_OFF}, 32768")
    if opts.get("kvtouch"):
        D = opts.get("kvdist", 2) * 16384
        p3(f"""
        s_cmp_lt_u32 s3, 2
        s_cselect_b32 s56, s8, s12
        s_cselect_b32 s57, s9, s13
        s_cselect_b32 s58, s10, s14
        s_add_u32 s56, s56, {D}
        s_addc_u32 s57, s57, 0
        s_sub_u32 s58, s58, {D}
        s_mov_b32 s59, 0x20000
        s_lshl_b32 s6, s5, 11
        s_and_b32 s7, s3, 1
        s_lshl_b32 s7, s7, 10
        s_add_u32 s6, s6, s7
        v_lshlrev_b32 v243, 4, v1
        v_add_u32 v243, s6, v243
        """)
    p3("s_waitcnt vmcnt(0) lgkmcnt(0)\ns_barrier")
    T(p3, 3)
    for f in range(4): p3.add(k_read(0, f))
    ph, carry = emit_phase(-1, opts, [])
    p3.extend(ph)
    p3("s_cmp_lg_u32 s27, 0\ns_cbranch_scc1 K_havemax")
    p3("s_nop 7")
    for qb in range(4):
        m = f"v{244+qb}"
        p3(f"v_max3_f32 {m}, {S(0,0,qb,0)}, {S(0,0,qb,1)}, {S(0,0,qb,2)}")
        p3(f"v_max3_f32 {m}, {m}, {S(0,0,qb,3)}, {S(0,1,qb,0)}")
        p3(f"v_max3_f32 {m}, {m}, {S(0,1,qb,1)}, {S(0,1,qb,2)}")
        p3(f"v_max_f32 {m}, {m}, {S(0,1,qb,3)}")
        p3(f"v_mov_b32 v248, {m}")
        p3(f"v_permlane32_swap_b32 v248, {m}")
        p3(f"v_max_f32 {m}, {m}, v248")
        p3(f"v_mov_b32 v248, {m}")
        p3(f"v_permlane16_swap_b32 v248, {m}")
        p3(f"v_max_f32 {m}, {m}, v248")
    p3("K_havemax:")
    p3("s_nop 7")
    for qb in range(4):
        m = f"v{244+qb}"
        for r in range(4): p3(f"v_sub_f32 {NEGM(qb,r)}, 0, {m}")
        for kb in range(2):
            for r in range(4): p3(f"v_sub_f32 {S(0,kb,qb,r)}, {S(0,kb,qb,r)}, {m}")
    p2 = (p2, p3); p2a, p2 = p2
    ph, carry = emit_phase(0, opts, carry)
    p2.extend(ph)
    p2(f"s_mov_b32 {S_CNT}, 7")
    abody = []
    c2 = carry
    for p in range(1, 9):
        ph, c2 = emit_phase(p, opts, c2)
        abody += ph
    abody += [Inst(f"s_sub_u32 {S_CNT}, {S_CNT}, 1"), Inst(f"s_cmp_lg_u32 {S_CNT}, 0"), Inst("s_cbranch_scc1 K_aloop")]
    if opts.get("wtouch", 1):
        opts = dict(opts)
        ta, tb_, tc = mk_touch()
        opts["extra"] = {58: [(3, ta)], 59: [(41, tb_), (50, tc[:1]), (54, tc[1:])]}
        opts["vmadj"] = {30: 2, 31: 2}
        if opts.get("kbcode", 1):
            cp = Prog()
            cp("""
            s_getpc_b64 s[78:79]
            CT_kb:
            s_add_u32 s78, s78, oproj_kernel-CT_kb
            s_addc_u32 s79, s79, 0
            s_and_b32 s77, s3, 1
            s_lshl_b32 s77, s77, 13
            v_lshlrev_b32 v236, 7, v1
            v_add_u32 v236, s77, v236
            v_min_u32 v236, TEXT_END-oproj_kernel-4, v236
            v_mov_b32 v237, s79
            v_add_co_u32 v236, vcc, s78, v236
            v_addc_co_u32 v237, vcc, 0, v237, vcc
            """)
            opts["extra"][58].append((40, cp.insts))
            opts["extra"][59].append((58, [Inst("global_load_dword v238, v[236:237], off")]))
            opts["vmadj"] = {30: 3, 31: 3}
    tail = []
    c3 = c2
    for p in range(57, 65):
        ph, c3 = emit_phase(p, opts, c3)
        tail += ph
    tail += [c[1] if isinstance(c, tuple) else c for c in c3]
    post = Prog()
    T(post, 4)
    for qb in range(4):
        if qb >= 4 - NS:
            post(f"v_mov_b32 {L(qb)}, v{LREGS[qb - (4 - NS)]}")
            continue
        post(f"""
        v_mov_b32 v248, {L(qb)}
        v_permlane32_swap_b32 v248, {L(qb)}
        v_add_f32 {L(qb)}, {L(qb)}, v248
        v_mov_b32 v248, {L(qb)}
        v_permlane16_swap_b32 v248, {L(qb)}
        v_add_f32 {L(qb)}, {L(qb)}, v248
        """)
    post(f"""
    v_max3_f32 v248, {L(0)}, {L(1)}, {L(2)}
    v_max_f32 v248, v248, {L(3)}
    v_add_f32 v249, {L(0)}, {L(1)}
    v_add_f32 v250, {L(2)}, {L(3)}
    v_add_f32 v249, v249, v250
    s_mov_b32 s6, {f32hex(float(2**24))}
    v_cmp_nlt_f32 vcc, v248, s6
    v_cmp_u_f32 s[6:7], v249, v249
    s_or_b64 vcc, vcc, s[6:7]
    s_cmp_lg_u64 vcc, 0
    s_cselect_b32 s6, 1, 0
    v_mov_b32 v248, s6
    v_mov_b32 v249, 131072
    v_lshl_add_u32 v250, s3, 2, v249
    ds_write_b32 v250, v248
    s_waitcnt lgkmcnt(0)
    s_barrier
    ds_read_b128 v[248:251], v249
    s_waitcnt lgkmcnt(0)
    v_or3_b32 v248, v248, v249, v250
    v_or_b32 v248, v248, v251
    s_nop 0
    v_readfirstlane_b32 s6, v248
    s_xor_b32 s7, s27, 1
    s_and_b32 s6, s6, s7
    s_cmp_lg_u32 s6, 0
    s_cbranch_scc1 K_fallback
    """)
    for qb in range(4): post(f"v_rcp_f32 {L(qb)}, {L(qb)}")
    post(f"""
    s_lshl_b32 s6, s5, 1
    s_lshr_b32 s7, s3, 1
    s_add_u32 s6, s6, s7
    s_mul_i32 s6, s6, {92*16384 + opts.get("actpad", 4096)}
    s_lshl_b32 s7, s4, 15
    s_add_u32 s6, s6, s7
    s_and_b32 s7, s3, 1
    s_lshl_b32 s7, s7, 12
    s_add_u32 s6, s6, s7
    s_add_u32 s52, s6, {WS_ACT}
    s_add_u32 s53, s52, 16384
    """)
    act_lane_offset(post, "v2", "v3")
    for qb in range(4):
        lp = 226 + (qb & ~1)
        osel = "op_sel:[0,0] op_sel_hi:[1,0]" if qb % 2 == 0 else "op_sel:[0,1] op_sel_hi:[1,1]"
        for e in range(4):
            t0 = 16 + (e & 1) * 16
            for hh in range(2):
                for r in range(4):
                    post(f"v_accvgpr_read_b32 v{t0+hh*4+r}, {O(2*e+hh,qb,r)}")
            for j in range(0, 8, 2): post(f"v_pk_mul_f32 v[{t0+j}:{t0+j+1}], v[{t0+j}:{t0+j+1}], v[{lp}:{lp+1}] {osel}")
            for i in range(4): post(f"v_cvt_pk_bf16_f32 v{t0+8+i}, v{t0+2*i}, v{t0+2*i+1}")
            post(f"buffer_store_dwordx4 v[{t0+8}:{t0+11}], v{2+(e&1)}, {SRD_WS}, s{52+(e>>1)} offen offset:{qb*1024}")
    if opts.get("time"):
        post("s_waitcnt vmcnt(0)")
        T(post, 5)
        post(f"""
        s_waitcnt lgkmcnt(0)
        s_lshl_b32 s6, s2, 2
        s_add_u32 s6, s6, s3
        s_lshl_b32 s6, s6, 6
        s_add_u32 s6, s6, {WS_TIME}
        v_mov_b32 v3, s6
        """)
        for i in range(8):
            post(f"v_mov_b32 v2, s{SB(i)}\nbuffer_store_dword v2, v3, {SRD_WS}, 0 offen offset:{4*i}")
        for i in range(4):
            post(f"v_mov_b32 v2, s{64+2*i}\nbuffer_store_dword v2, v3, {SRD_WS}, 0 offen offset:{32+4*i}")
    post("KA_end:\ns_endpgm")
    fb = Prog()
    fb(f"""
    K_fallback:
    s_waitcnt vmcnt(0) lgkmcnt(0)
    s_barrier
    s_mov_b32 s27, 1
    v_and_b32 v2, 15, v1
    v_lshrrev_b32 v3, 4, v1
    v_lshlrev_b32 v2, 8, v2
    v_lshl_add_u32 v2, v3, 4, v2
    s_mov_b32 s6, 0
    """)
    for qb in range(4): fb(f"v_mov_b32 v{244+qb}, 0xff800000")
    fb("K_fb_loop:")
    for ds in range(4):
        fb(f"buffer_load_dwordx4 v[{16+4*ds}:{19+4*ds}], v2, {SRD_K0}, s6 offen offset:{64*ds}")
    fb("s_waitcnt vmcnt(0)")
    for qb in range(4):
        for ds in range(4):
            c = "0" if ds == 0 else f"v[{32+4*qb}:{35+4*qb}]"
            fb(f"v_mfma_f32_16x16x32_bf16 v[{32+4*qb}:{35+4*qb}], v[{16+4*ds}:{19+4*ds}], {Q(qb,ds)}, {c}")
    fb("s_nop 15")
    for qb in range(4):
        b = 32 + 4 * qb
        fb(f"v_max3_f32 v{244+qb}, v{244+qb}, v{b}, v{b+1}")
        fb(f"v_max3_f32 v{244+qb}, v{244+qb}, v{b+2}, v{b+3}")
    fb(f"""
    s_add_u32 s6, s6, 4096
    s_cmp_lt_u32 s6, 524288
    s_cbranch_scc1 K_fb_loop
    """)
    for qb in range(4):
        m = f"v{244+qb}"
        fb(f"""
        v_mov_b32 v248, {m}
        s_nop 1
        v_permlane32_swap_b32 v248, {m}
        v_max_f32 {m}, {m}, v248
        v_mov_b32 v248, {m}
        s_nop 1
        v_permlane16_swap_b32 v248, {m}
        v_max_f32 {m}, {m}, v248
        """)
    fb("s_mov_b32 s6, 0\ns_mov_b32 s7, 16384")
    issue_groups(fb, dma_k(3, SRD_K0, "0") + dma_v(0, "s6") + dma_k(0, SRD_K, "s6") + dma_v(1, "s7") + dma_k(1, SRD_K, "s7"))
    fb("s_branch K_astart")
    fb2 = check_hazards([Inst("s_nop 15")] + fb.insts, fix=True)[1:]
    a2, st = lin(seg_a, None, [])
    b2, st = auto_wait_loop(body, st); b2 = merge_adjacent_waits(b2)
    q1, st = lin(p2a.insts, st, b2[-40:])
    q2, st = lin(p2.insts, WaitState(), q1[-40:])
    q2 = q1 + q2
    ab2, st = auto_wait_loop(abody, st); ab2 = merge_adjacent_waits(ab2)
    t2, st = lin(tail, st, ab2[-40:])
    po2, st = lin(post.insts, st, t2[-40:])
    for nm, seq in (("gloop", a2[-60:] + b2 + b2 + q2[:80]), ("aloop", q2[-60:] + ab2 + ab2 + t2 + po2[:40])):
        for p_ in check_hazards(seq): print("HAZARD", nm, p_, file=sys.stderr)
    return a2 + [Inst("K_gloop:")] + b2 + q2 + [Inst("K_aloop:")] + ab2 + t2 + po2 + fb2

def gen_kb(opts):
    T = lambda pr, idx: stamp(pr, opts, idx)
    NCH = 24
    ACC = lambda st_, cb, tb, r=None: (f"v[{16+st_*64+(cb*2+tb)*4}:{16+st_*64+(cb*2+tb)*4+3}]" if r is None else f"v{16+st_*64+(cb*2+tb)*4+r}")
    def AF3(s, cb, u=None):
        b = (s * 8 + cb) * 4
        return f"a[{b}:{b+3}]" if u is None else f"a[{b+2*u}:{b+2*u+1}]"
    G2 = opts.get('kbG', 0)
    R = 8 if G2 else opts.get('kbR', 4); D = R - 1
    RB = (opts.get('kbRB', 4) if G2 else R); DB = (RB - 1 if G2 else D); DW = 5 if G2 else D
    def BF3(st, s, tb):
        b = 64 + st * 16 + (s * 2 + tb) * 4
        return f"a[{b}:{b+3}]"
    VA = lambda cb, hi=0: f"v{208+hi*8+cb}"
    VOW = lambda ii: f"v{224+ii}"; VOA = lambda s: f"v{228+s}"
    SRD_W = "s[8:11]"; SRD_A = "s[12:15]"
    S_GP = "s19"; S_OA = "s24"; S_OW = "s26"; S_MW = "s25"
    PART = "s48"; TM = "s49"; TN = "s50"
    def a_rd(s, cb, stage):
        return [Inst(f"ds_read_b64_tr_b16 {AF3(s,cb,u)}, {VA(cb, stage >> 2)} offset:{(stage & 3)*16384 + (32*s+16*u)*256}") for u in range(2)]
    def sel_w():
        return [Inst(f"s_cmp_lt_u32 {S_GP}, 64"), Inst("s_cselect_b32 s8, s40, s42"), Inst("s_cselect_b32 s9, s41, s43"), Inst(f"s_add_u32 {S_GP}, {S_GP}, {R}")]
    def dma_w(stage):
        r = [[Inst(f"s_add_u32 m0, {S_MW}, {stage*16384}"), Inst(f"buffer_load_dwordx4 {VOW(0)}, {SRD_W}, {S_OW} offen lds")]]
        for ii in range(1, 4):
            r.append([Inst(f"buffer_load_dwordx4 {VOW(ii)}, {SRD_W}, {S_OW} offen offset:{ii*1024} lds")])
        return r, [Inst(f"s_add_u32 {S_OW}, {S_OW}, 65536")]
    def ld_a(st):
        so = S_OA
        if opts.get("kbuniq"):
            so = f"s{60 + (st & 3)}"
        r = [[Inst(f"buffer_load_dwordx4 {BF3(st,s,tb)}, {VOA(s)}, {SRD_A}, {so} offen offset:{tb*1024}")] for s in range(2) for tb in range(2)]
        adv = [Inst(f"s_add_u32 {S_OA}, {S_OA}, 16384")]
        if opts.get("kbuniq"):
            adv = [Inst(f"s_add_u32 s{60+i}, s{60+i}, 16384") for i in range(4)]
        return r, adv
    def period(c, accset):
        st = c % RB
        NG = 32
        pre = [[] for _ in range(NG + 1)]; mem = [[] for _ in range(NG + 1)]; gaps = [[] for _ in range(NG + 1)]
        pre[0] += [Hint(*[BF3(st, s, t) for s in range(2) for t in range(2)])]
        if not G2: pre[0] += [Inst(f"s_waitcnt vmcnt({8*(D-2)})"), Inst("s_barrier")]
        elif c % 2 == 0: pre[0] += [Inst("s_waitcnt vmcnt(16)"), Inst("s_barrier")]
        ag, aadv = ld_a((c + DB) % RB)
        wg_, wadv = dma_w((c + DW) % R)
        for s in range(2):
            for cb in range(8):
                k = 2 * (s * 8 + cb) + 2
                rd = a_rd(s, cb, (c + 1) % R)
                if k < 31: mem[k].append(rd[0]); mem[k + 1].append(rd[1])
                else: mem[31].append(rd[0]); mem[31].append(rd[1])
        mem[0] += ag[0]; mem[1] += ag[1]
        if (c + DW) % R == 0: gaps[0] += sel_w()[:1]; gaps[1] += sel_w()[1:2]; gaps[2] += sel_w()[2:3]; gaps[3] += sel_w()[3:]
        mem[5] += ag[2]; mem[8] += ag[3]; gaps[9] += aadv
        gaps[11] += wg_[0][:-1]
        for gp, d in zip([12, 16, 20, 24], wg_): mem[gp] += d[-1:]
        gaps[26] += wadv
        out = []
        for s in range(2):
            for cb in range(8):
                if cb == 0 or (s == 0 and cb == 4): pre[2 * (s * 8 + cb)].insert(0, Hint(*[AF3(s, c_) for c_ in range(cb, 8 if s else cb + 4)] + ([AF3(0, c_) for c_ in range(4, 8)] if False else [])))
                for tb in range(2):
                    k = 2 * (s * 8 + cb) + tb
                    d = ACC(accset, cb, tb)
                    out += pre[k]
                    out.append(Inst(f"v_mfma_f32_16x16x32_bf16 {d}, {AF3(s,cb)}, {BF3(st,s,tb)}, {d}"))
                    out += mem[k]; out += gaps[k]
        return out
    post = Prog()
    post("s_cmp_ge_u32 s2, 256\ns_cbranch_scc1 KB_end")
    T(post, 0)
    post(f"""
    s_load_dwordx2 s[40:41], s[0:1], 32
    s_load_dwordx2 s[42:43], s[0:1], 64
    s_load_dwordx2 s[34:35], s[0:1], 88
    s_load_dwordx2 s[30:31], s[0:1], 0
    s_load_dwordx2 s[32:33], s[0:1], 72
    s_load_dwordx2 s[72:73], s[0:1], 80
    v_and_b32 v1, 63, v0
    v_lshrrev_b32 v2, 6, v0
    s_nop 0
    v_readfirstlane_b32 s3, v2
    s_and_b32 {PART}, s2, 3
    s_bfe_u32 {TM}, s2, 0x10002
    s_lshl_b32 {TM}, {TM}, 3
    s_bfe_u32 s6, s2, 0x30003
    s_add_u32 {TM}, {TM}, s6
    s_lshr_b32 {TN}, s2, 6
    s_mul_i32 {S_GP}, {PART}, {NCH}
    s_sub_u32 s14, 92, {S_GP}
    s_min_u32 s14, s14, {NCH}
    s_lshl_b32 s14, s14, 14
    s_mul_i32 s6, {TM}, {92*16384 + opts.get("actpad", 4096)}
    s_lshl_b32 s7, {S_GP}, 14
    s_add_u32 s6, s6, s7
    s_add_u32 s36, s6, {WS_ACT}
    s_lshl_b32 {S_OA}, s3, 11
    s_lshl_b32 {S_OW}, {S_GP}, 16
    s_lshl_b32 s7, {TN}, 8
    s_add_u32 {S_OW}, {S_OW}, s7
    s_lshl_b32 {S_MW}, s3, 12
    v_lshrrev_b32 v2, 4, v1
    v_and_b32 v3, 15, v1
    s_lshl_b32 s7, s3, 4
    """)
    for ii in range(4):
        post(f"""
        v_add_u32 v4, {4*(ii&1)}, v2
        v_lshlrev_b32 v4, 1, v4
        v_xor_b32 v4, v4, v3
        v_lshlrev_b32 v4, 4, v4
        v_add_u32 v5, s7, v2
        v_add_u32 v5, {4*ii}, v5
        v_lshl_add_u32 v4, v5, 10, v4
        v_subrev_u32 {VOW(ii)}, {1024*ii}, v4
        """)
    act_lane_offset(post, VOA(0), VOA(1))
    post(f"""
    s_waitcnt lgkmcnt(0)
    s_and_b32 s41, s41, 0xffff
    s_sub_u32 s42, s42, {64*65536}
    s_subb_u32 s43, s43, 0
    s_and_b32 s43, s43, 0xffff
    s_mov_b32 s10, {92*65536}
    s_mov_b32 s11, 0x20000
    s_mov_b32 s20, s34
    s_and_b32 s21, s35, 0xffff
    s_mov_b32 s22, 0x10000000
    s_mov_b32 s23, 0x20000
    s_add_u32 s12, s34, s36
    s_addc_u32 s13, s35, 0
    s_and_b32 s13, s13, 0xffff
    s_mov_b32 s15, 0x20000
    """)
    if opts.get("kbuniq"):
        for i in range(4):
            post(f"s_cmp_eq_u32 {TN}, {i}\ns_cselect_b32 s{60+i}, {S_OA}, 0xf0000000")
        if opts.get("kbuniq") == 2:
            post(f"s_and_b32 s6, {TM}, 7\ns_cmp_eq_u32 s6, 0\ns_cselect_b32 {S_OW}, {S_OW}, 0xf0000000")
    post.extend(sel_w())
    if G2:
        for c in range(3): gr, adv = dma_w(c); issue_groups(post, gr); post.extend(adv)
        for c in range(3): gr, adv = ld_a(c); issue_groups(post, gr); post.extend(adv)
        for c in range(3, 5): gr, adv = dma_w(c); issue_groups(post, gr); post.extend(adv)
        for c in range(3, DB): gr, adv = ld_a(c); issue_groups(post, gr); post.extend(adv)
    else:
        for c in range(D):
            gr, adv = dma_w(c); issue_groups(post, gr); post.extend(adv)
            gr, adv = ld_a(c); issue_groups(post, gr); post.extend(adv)
    NINI = 4 * DW + 4 * DB
    NT = 0
    if opts.get("ctouch", 0):
        post("s_and_b32 s6, s3, 1")
        code_touch(post, "oproj_kernel", "TEXT_END", "s6", 2, vt=(238, 239, 240))
        NT += 1
    if opts.get("kbtouch"):
        NT += 5
        post(f"""
        v_and_b32 v4, 31, v1
        v_lshlrev_b32 v4, 7, v4
        v_lshrrev_b32 v5, 5, v1
        v_lshl_add_u32 v4, v5, 16, v4
        s_lshl_b32 s6, {TN}, 14
        s_lshl_b32 s7, s3, 12
        s_add_u32 s6, s6, s7
        s_add_u32 s6, s6, {4*16384}
        buffer_load_dword v232, v4, {SRD_A}, s6 offen
        s_add_u32 s6, s6, {8*16384}
        buffer_load_dword v233, v4, {SRD_A}, s6 offen
        s_add_u32 s6, s6, {8*16384}
        buffer_load_dword v234, v4, {SRD_A}, s6 offen
        """)
        post(f"""
        s_and_b32 s58, {TM}, 7
        s_lshl_b32 s58, s58, 2
        s_add_u32 s58, s58, {TN}
        s_lshl_b32 s58, s58, 2
        s_add_u32 s58, s58, s3
        s_mul_i32 s58, s58, 10
        s_add_u32 s58, s58, 256
        s_mul_i32 s59, {PART}, {24*64}
        s_add_u32 s59, s59, s58
        s_cmp_lt_u32 s59, 4096
        s_cselect_b32 s44, s40, s42
        s_cselect_b32 s45, s41, s43
        s_cselect_b32 s46, {64*65536}, s10
        s_mov_b32 s47, 0x20000
        s_lshl_b32 s59, s59, 10
        v_lshlrev_b32 v4, 7, v1
        v_add_u32 v5, 8192, v4
        buffer_load_dword v235, v4, s[44:47], s59 offen
        v_cmp_gt_u32 vcc, 16, v1
        s_and_saveexec_b64 s[6:7], vcc
        buffer_load_dword v236, v5, s[44:47], s59 offen
        s_mov_b64 exec, s[6:7]
        """)
    post(f"""
    v_bfe_u32 v2, v1, 2, 2
    v_and_b32 v3, 3, v1
    v_lshrrev_b32 v4, 4, v1
    v_lshl_add_u32 v6, v4, 2, v2
    v_and_b32 v8, 7, v6
    v_lshlrev_b32 v8, 1, v8
    v_lshlrev_b32 v6, 8, v6
    v_and_b32 v7, 1, v3
    v_lshl_add_u32 v6, v7, 3, v6
    v_lshrrev_b32 v7, 1, v3
    """)
    for cb in range(8):
        post(f"""
        v_add_u32 v9, {2*cb}, v7
        v_xor_b32 v9, v9, v8
        v_lshl_add_u32 {VA(cb)}, v9, 4, v6
        v_add_u32 {VA(cb,1)}, 65536, {VA(cb)}
        """)
    for i in range(128): post(f"v_mov_b32 v{16+i}, 0")
    post(f"""
    s_mov_b32 s56, {24//R}
    s_mov_b32 s57, 0
    s_cmp_eq_u32 {PART}, 2
    s_cselect_b32 s56, {16//R}, s56
    s_cselect_b32 s57, {8//R}, s57
    s_cmp_eq_u32 {PART}, 3
    s_cselect_b32 s56, 0, s56
    s_cselect_b32 s57, {24//R if R == 8 else 5}, s57
    s_waitcnt vmcnt({NINI-4+NT})
    s_barrier
    """)
    T(post, 9)
    for s in range(2):
        for cb in range(8): post.extend(a_rd(s, cb, 0))
    post("s_cmp_eq_u32 s56, 0\ns_cbranch_scc1 K3_l1pre")
    body0 = []; body1 = []
    for c in range(R): body0 += period(c, 0); body1 += period(c, 1)
    body0 += [Inst("s_sub_u32 s56, s56, 1"), Inst("s_cmp_lg_u32 s56, 0"), Inst("s_cbranch_scc1 K3_loop0")]
    mid = [Inst("K3_l1pre:"), Inst("s_cmp_eq_u32 s57, 0"), Inst("s_cbranch_scc1 K3_post")]
    body1 += [Inst("s_sub_u32 s57, s57, 1"), Inst("s_cmp_lg_u32 s57, 0"), Inst("s_cbranch_scc1 K3_loop1")]
    fin = Prog()
    fin("K3_post:")
    fin("s_waitcnt lgkmcnt(0)\ns_nop 15")
    T(fin, 10)
    fin(f"""
    s_lshl_b32 s7, {TM}, 2
    s_add_u32 s7, s7, {TN}
    s_mul_i32 s58, s7, 5
    s_lshl_b32 s58, s58, 15
    s_add_u32 s58, s58, {WS_SLAB}
    s_lshl_b32 s59, s3, 13
    s_add_u32 s59, s59, s58
    s_lshl_b32 s6, {PART}, 15
    s_add_u32 s6, s6, s59
    v_lshlrev_b32 v2, 4, v1
    s_cmp_eq_u32 {PART}, 3
    s_cbranch_scc1 K3_st1
    """)
    def slab_store(base):
        for j in range(8):
            t0 = 144 + (j & 3) * 4
            for i in range(4): fin(f"v_cvt_pk_bf16_f32 v{t0+i}, v{16+base+j*8+2*i}, v{16+base+j*8+2*i+1}")
            if j == 4: fin("s_add_u32 s6, s6, 4096")
            fin(f"buffer_store_dwordx4 v[{t0}:{t0+3}], v2, {SRD_WS}, s6 offen offset:{(j%4)*1024} sc1")
    slab_store(0)
    fin(f"""
    K3_st1:
    s_cmp_lt_u32 {PART}, 2
    s_cbranch_scc1 K3_sync
    s_add_u32 s6, {PART}, 1
    s_lshl_b32 s6, s6, 15
    s_add_u32 s6, s6, s59
    """)
    slab_store(64)
    fin(f"""
    K3_sync:
    s_mov_b32 s8, s30
    s_and_b32 s9, s31, 0xffff
    s_mov_b32 s10, {2048*1024}
    s_mov_b32 s11, 0x20000
    s_mov_b32 s12, s32
    s_and_b32 s13, s33, 0xffff
    s_mov_b32 s14, {2048*1024}
    s_mov_b32 s15, 0x20000
    s_lshl_b32 s6, {TM}, 7
    s_lshl_b32 s74, {PART}, 5
    s_add_u32 s6, s6, s74
    s_lshl_b32 s6, s6, 10
    s_lshl_b32 s74, {TN}, 8
    s_add_u32 s6, s6, s74
    s_lshl_b32 s74, s3, 6
    s_add_u32 s37, s6, s74
    v_and_b32 v3, 15, v1
    v_lshrrev_b32 v4, 4, v1
    v_lshlrev_b32 v3, 10, v3
    v_lshl_add_u32 v3, v4, 3, v3
    v_add_u32 v4, 16384, v3
    """)
    for jj in range(2):
        for tb in range(2):
            b = 200 + (jj * 2 + tb) * 2
            fin(f"buffer_load_dwordx2 v[{b}:{b+1}], v{3+tb}, s[8:11], s37 offen offset:{jj*32}")
    fin(f"""
    s_lshl_b32 s59, {PART}, 13
    s_add_u32 s59, s59, s58
    s_lshl_b32 s6, s3, 11
    s_add_u32 s59, s59, s6
    s_waitcnt vmcnt(4)
    s_barrier
    s_cmp_lg_u32 s3, 0
    s_cbranch_scc1 K3_wait
    s_and_b32 s6, s7, 3
    s_lshl_b32 s6, s6, 6
    s_lshr_b32 s74, s7, 4
    s_lshl_b32 s74, s74, 2
    s_add_u32 s6, s6, s74
    s_bfe_u32 s74, s7, 0x20002
    s_lshl_b32 s74, s74, 3
    s_lshl_b32 s75, 1, s74
    v_mov_b32 v6, s6
    v_mov_b32 v7, s75
    s_mov_b64 exec, 1
    global_atomic_add v6, v7, {SRD_DBG} sc1
    """)
    poll(fin, "K3_spin", "v6", 4, shift="s74", sleep=1)
    fin(f"""
    s_mov_b64 exec, -1
    K3_wait:
    s_barrier
    """)
    T(fin, 11)
    for sl in range(5):
        fin(f"s_add_u32 s6, s59, {sl*32768}")
        for jj in range(2):
            b = 16 + (sl * 2 + jj) * 4
            fin(f"buffer_load_dwordx4 v[{b}:{b+3}], v2, {SRD_WS}, s6 offen offset:{jj*1024} sc1")
    fin(f"s_mov_b32 s7, {f32hex(-LOG2E)}")
    for jj in range(2):
        for tb in range(2):
            src = lambda sl, i: f"v{16+(sl*2+jj)*4+tb*2+i}"
            sv = [f"v{60+r}" for r in range(4)]; yv = [f"v{64+r}" for r in range(4)]; tv = [f"v{68+r}" for r in range(4)]
            def unp(dst, sl):
                fin(f"v_lshlrev_b32 {dst[0]}, 16, {src(sl,0)}\nv_and_b32 {dst[1]}, 0xffff0000, {src(sl,0)}")
                fin(f"v_lshlrev_b32 {dst[2]}, 16, {src(sl,1)}\nv_and_b32 {dst[3]}, 0xffff0000, {src(sl,1)}")
            unp(sv, 0); unp(tv, 1)
            for r in range(4): fin(f"v_add_f32 {sv[r]}, {sv[r]}, {tv[r]}")
            unp(tv, 2)
            for r in range(4): fin(f"v_add_f32 {sv[r]}, {sv[r]}, {tv[r]}")
            unp(yv, 3); unp(tv, 4)
            for r in range(4): fin(f"v_add_f32 {yv[r]}, {yv[r]}, {tv[r]}")
            for r in range(4): fin(f"v_mul_f32 {tv[r]}, s7, {yv[r]}")
            for r in range(4): fin(f"v_exp_f32 {tv[r]}, {tv[r]}")
            for r in range(4): fin(f"v_add_f32 {tv[r]}, 1.0, {tv[r]}")
            for r in range(4): fin(f"v_rcp_f32 {tv[r]}, {tv[r]}")
            for r in range(4): fin(f"v_mul_f32 {yv[r]}, {yv[r]}, {tv[r]}")
            xb = 200 + (jj * 2 + tb) * 2
            fin(f"v_lshlrev_b32 {tv[0]}, 16, v{xb}\nv_and_b32 {tv[1]}, 0xffff0000, v{xb}\nv_lshlrev_b32 {tv[2]}, 16, v{xb+1}\nv_and_b32 {tv[3]}, 0xffff0000, v{xb+1}")
            for r in range(4): fin(f"v_fma_f32 {sv[r]}, {sv[r]}, {yv[r]}, {tv[r]}")
            ob = 72 + 2 * ((jj * 2 + tb) & 1)
            fin(f"v_cvt_pk_bf16_f32 v{ob}, {sv[0]}, {sv[1]}\nv_cvt_pk_bf16_f32 v{ob+1}, {sv[2]}, {sv[3]}")
            fin(f"buffer_store_dwordx2 v[{ob}:{ob+1}], v{3+tb}, s[12:15], s37 offen offset:{jj*32}")
    if opts.get("time"):
        fin("s_waitcnt vmcnt(0)")
        T(fin, 8)
        fin(f"""
        s_waitcnt lgkmcnt(0)
        s_lshl_b32 s6, s2, 2
        s_add_u32 s6, s6, s3
        s_lshl_b32 s6, s6, 6
        s_add_u32 s6, s6, {WS_TIME + 65536}
        v_mov_b32 v3, s6
        """)
        for k_, i in enumerate((0, 9, 10, 11, 8)):
            fin(f"v_mov_b32 v2, s{SB(i)}\nbuffer_store_dword v2, v3, {SRD_WS}, 0 offen offset:{4*k_}")
        for i in range(2):
            fin(f"v_mov_b32 v2, s{64+2*i}\nbuffer_store_dword v2, v3, {SRD_WS}, 0 offen offset:{32+4*i}")
    if opts.get("dbgtime"):
        fin(f"""
        s_cmp_lg_u32 s2, {opts.get("dbgwg", 0)}
        s_cbranch_scc1 KB_end
        s_cmp_lg_u32 s3, 0
        s_cbranch_scc1 KB_end
        s_waitcnt vmcnt(0)
        v_lshlrev_b32 v2, 2, v1
        v_add_u32 v2, {WS_TIME + opts.get("dbgwg", 0) * 256}, v2
        buffer_load_dword v3, v2, {SRD_WS}, 0 offen sc1
        s_waitcnt vmcnt(0)
        v_readfirstlane_b32 s6, v3
        s_nop 1
        v_subrev_u32 v3, s6, v3
        v_mov_b32 v4, s{SB(0)}
        v_subrev_u32 v4, s6, v4
        v_mov_b32 v5, s{SB(8)}
        v_subrev_u32 v5, s6, v5
        v_mov_b32 v6, s{SB(9)}
        v_subrev_u32 v6, s6, v6
        v_mov_b32 v7, s{SB(10)}
        v_subrev_u32 v7, s6, v7
        v_cmp_eq_u32 vcc, 8, v1
        s_nop 1
        v_cndmask_b32 v3, v3, v4, vcc
        v_cmp_eq_u32 vcc, 9, v1
        s_nop 1
        v_cndmask_b32 v3, v3, v6, vcc
        v_cmp_eq_u32 vcc, 10, v1
        s_nop 1
        v_cndmask_b32 v3, v3, v7, vcc
        v_cmp_eq_u32 vcc, 11, v1
        s_nop 1
        v_cndmask_b32 v3, v3, v5, vcc
        v_lshlrev_b32 v2, 2, v1
        v_add_u32 v2, 16, v2
        v_cmp_gt_u32 vcc, 12, v1
        s_and_saveexec_b64 s[6:7], vcc
        global_store_dword v2, v3, {SRD_DBG}
        """)
    fin("KB_end:\ns_endpgm")
    po2, st = lin(post.insts, None, [])
    b0, st = auto_wait_loop(body0, st); b0 = merge_adjacent_waits(b0)
    b1, st = auto_wait_loop(body1, st); b1 = merge_adjacent_waits(b1)
    f2, st = lin(fin.insts, st, b1[-40:])
    for nm, seq in (("l3", po2[-40:] + b0 + b0 + b1 + b1 + f2[:30]),):
        for p_ in check_hazards(seq): print("HAZARD", nm, p_, file=sys.stderr)
    return po2 + [Inst("K3_loop0:")] + b0 + mid + [Inst("K3_loop1:")] + b1 + f2

def gen(opts):
    hdr = f"""; @launch kernel=attn_kernel grid=(256,1,1) block=(256,1,1) lds=131328
; @launch kernel=oproj_kernel grid=(256,1,1) block=(256,1,1) lds=131072
.amdgcn_target "amdgcn-amd-amdhsa--gfx950"
.text
"""
    return hdr + kernel_text("attn_kernel", gen_ka(opts), 512, 256) + kernel_text("oproj_kernel", gen_kb(opts) + [Inst("TEXT_END:")], 384, 256)

if __name__ == "__main__":
    opts = {}
    for a in sys.argv[2:]:
        k, _, v = a.partition("=")
        opts[k] = int(v) if v else 1
    open(sys.argv[1], "w").write(gen(opts))
```

```python
import sys, math
sys.path.insert(0, "dev")
from asmdsl import *
from gen import (NAME, WS_XN, WS_ACT, WS_SLAB, WS_TIME, LOG2E, QSCALE, f32hex, kernel_text, finish, rbf16,
                 S, P, NEGM, Qb, Q, VKA, VVA, VOFFK, VOFFV, L, O, KF, VF, SRD_K, SRD_V, SRD_K0, SRD_WS, S_OFF, S_WB, S_CNT,
                 SRD_WQ, SRD_G, SRD_U, k_read, v_reads, dma_k, dma_v, emit_phase)
from gen2 import ln_rows
from phase2 import emit_phase2, LACCN, ONES_A, LREGS
import gen as _g

SRD_DBG = "s[72:73]"
SB = lambda i: 80 + (i % 11) * 2 if i < 11 else 60 + (i - 11) * 2
CY = {1: 64, 2: 66, 3: 68, 4: 70, 9: 64, 10: 66}
def stamp(pr, opts, idx):
    if opts.get("time"):
        b = SB(idx)
        pr(f"s_memrealtime s[{b}:{b+1}]")
        if idx in CY: pr(f"s_memtime s[{CY[idx]}:{CY[idx]+1}]")

def poll(pr, label, addr_v, thresh, shift=None, sleep=2, cache="sc1"):
    pr(f"""
    {label}:
    global_load_dword v5, {addr_v}, {SRD_DBG} {cache}
    s_waitcnt vmcnt(0)
    v_readfirstlane_b32 s75, v5
    """)
    if shift is not None:
        pr(f"s_lshr_b32 s75, s75, {shift}\ns_and_b32 s75, s75, 0xff")
    pr(f"""
    s_cmp_ge_u32 s75, {thresh}
    s_cbranch_scc1 {label}_ok
    s_sleep {sleep}
    s_branch {label}
    {label}_ok:
    """)

def lin(insts, st, prev):
    a, st = auto_wait_linear(insts, st)
    a = merge_adjacent_waits(a)
    n = len(prev)
    return check_hazards(prev + a, fix=True)[n:], st

def issue_groups(pr, groups):
    for d in groups:
        pr.extend(d[:-1])
        if len(d) > 1: pr("s_nop 0")
        pr.extend(d[-1:])

def QACC(cb, tb, r=None):
    b = 16 + (cb * 4 + tb) * 4
    return f"v[{b}:{b+3}]" if r is None else f"v{b+r}"
def GACC(cb, tb, r=None):
    b = (cb * 4 + tb) * 4
    return f"a[{b}:{b+3}]" if r is None else f"a{b+r}"
def UACC(cb, tb, r=None):
    b = 64 + (cb * 4 + tb) * 4
    return f"a[{b}:{b+3}]" if r is None else f"a{b+r}"
def AF(cb, u=None):
    b = 128 + cb * 4
    if u is None: return f"a[{b}:{b+3}]"
    return f"a[{b+2*u}:{b+2*u+1}]"
def BF(st, tb):
    b = 144 + st * 16 + tb * 4
    return f"v[{b}:{b+3}]"
VA_Q = lambda ds: f"v{230+ds}"
VA_G = lambda cb: f"v{234+cb}"
VO_X = "v238"; VO_WQ = lambda ii: f"v{239+ii}"; VO_G = "v241"
S_OX = "s50"; S_OWQ = "s51"; S_OGU = "s52"
S_MWQ = "s55"; S_MG = "s56"; S_MU = "s57"
GW = 65536

def a_reads(cb, stage):
    if cb < 8:
        ds, h = cb >> 1, cb & 1
        return [Inst(f"ds_read_b64_tr_b16 {AF(cb,u)}, {VA_Q(ds)} offset:{stage*16384 + 8*h + 1024*u}") for u in range(2)]
    mat, c2 = (cb - 8) >> 2, (cb - 8) & 3
    return [Inst(f"ds_read_b64_tr_b16 {AF(cb,u)}, {VA_G(c2)} offset:{stage*16384 + 8192 + 4096*mat + 512*u}") for u in range(2)]
def w_dma(stage):
    r = []
    r.append([Inst(f"s_add_u32 m0, {S_MWQ}, {stage*16384}"), Inst(f"buffer_load_dwordx4 {VO_WQ(0)}, {SRD_WQ}, {S_OWQ} offen lds")])
    r.append([Inst(f"buffer_load_dwordx4 {VO_WQ(1)}, {SRD_WQ}, {S_OWQ} offen offset:1024 lds")])
    r.append([Inst(f"s_add_u32 m0, {S_MG}, {stage*16384}"), Inst(f"buffer_load_dwordx4 {VO_G}, {SRD_G}, {S_OGU} offen lds")])
    r.append([Inst(f"s_add_u32 m0, {S_MU}, {stage*16384}"), Inst(f"buffer_load_dwordx4 {VO_G}, {SRD_U}, {S_OGU} offen lds")])
    adv = [Inst(f"s_add_u32 {S_OWQ}, {S_OWQ}, {32*8192}"), Inst(f"s_add_u32 {S_OGU}, {S_OGU}, {32*3584}")]
    return r, adv
def x_loads(st):
    r = [[Inst(f"buffer_load_dwordx4 {BF(st,tb)}, {VO_X}, {SRD_WS}, {S_OX} offen offset:{tb*1024} sc1")] for tb in range(4)]
    return r, [Inst(f"s_add_u32 {S_OX}, {S_OX}, 16384")]

def gemm_period(c, groups, adv, read_next=True, extra=(), nvm=8):
    st = c & 3
    NG = 64
    pre = [[] for _ in range(NG + 1)]; mem = [[] for _ in range(NG + 1)]; gaps = [[] for _ in range(NG + 1)]
    pre[0].append(Hint(*[BF(st, t) for t in range(4)]))
    if nvm is not None: pre[0].append(Inst(f"s_waitcnt vmcnt({nvm})"))
    pre[0].append(Inst("s_barrier"))
    if read_next:
        for cb in range(16):
            rd = a_reads(cb, (c + 1) & 3)
            if cb < 15:
                mem[4 * cb + 4].append(rd[0]); mem[4 * cb + 5].append(rd[1])
            else:
                mem[63].append(rd[0]); mem[63].append(rd[1])
    pos = [2, 6, 10, 14, 18, 22, 26, 30, 34, 38, 42, 46]
    for gp, d in zip(pos, groups):
        gaps[gp - 1] += d[:-1]
        mem[gp] += d[-1:]
    for i, a in enumerate(adv): gaps[48 + i].append(a)
    for gp, lst in extra:
        for ins in lst:
            (mem if ins.kind in ("vmem", "dma", "lds") else gaps)[gp].append(ins)
    out = []
    for cb in range(16):
        if cb % 4 == 0:
            pre[4 * cb].insert(0, Hint(*[AF(c_) for c_ in range(cb, cb + 4)]))
        for tb in range(4):
            k = 4 * cb + tb
            d = QACC(cb, tb) if cb < 8 else GACC(cb - 8, tb) if cb < 12 else UACC(cb - 12, tb)
            out += pre[k]
            out.append(Inst(f"v_mfma_f32_16x16x32_bf16 {d}, {AF(cb)}, {BF(st,tb)}, {d}"))
            out += mem[k]; out += gaps[k]
    return out

def act_lane_offset(pr, dst0, dst1=None):
    pr(f"""
    v_and_b32 v2, 15, v1
    v_lshrrev_b32 v3, 4, v1
    v_bfe_u32 v4, v1, 2, 1
    v_lshlrev_b32 v4, 1, v4
    v_bfe_u32 v5, v1, 3, 1
    v_mul_u32_u24 v5, 3, v5
    v_xor_b32 v4, v4, v5
    v_xor_b32 v4, v4, v3
    v_lshlrev_b32 v4, 4, v4
    v_lshl_add_u32 {dst0}, v2, 6, v4
    """)
    if dst1: pr(f"v_add_u32 {dst1}, 8192, {dst0}")


def code_touch(pr, start_label, end_label, idx_sgpr, nblk, vt=(250, 251, 252)):
    a, b, d = vt
    pr(f"""
    s_getpc_b64 s[78:79]
    CT_{start_label}:
    s_sub_u32 s78, s78, CT_{start_label}-{start_label}
    s_subb_u32 s79, s79, 0
    s_lshl_b32 s77, {idx_sgpr}, 13
    v_lshlrev_b32 v{a}, 7, v1
    v_add_u32 v{a}, s77, v{a}
    v_min_u32 v{a}, {end_label}-{start_label}-4, v{a}
    v_mov_b32 v{b}, s79
    v_add_co_u32 v{a}, vcc, s78, v{a}
    v_addc_co_u32 v{b}, vcc, 0, v{b}, vcc
    global_load_dword v{d}, v[{a}:{b}], off
    """)

def gen_ka(opts):
    global emit_phase
    NS = opts.get('nsum', 2) if opts.get('ph2', 1) else 0
    emit_phase = emit_phase2 if opts.get('ph2', 1) else _g.emit_phase
    opts = dict(opts); opts['nsum'] = NS
    T = lambda pr, idx: stamp(pr, opts, idx)
    pr = Prog()
    pr("s_cmp_ge_u32 s2, 256\ns_cbranch_scc1 KA_end")
    T(pr, 0)
    pr(f"""
    s_load_dwordx2 s[76:77], s[0:1], 0
    s_load_dwordx2 s[34:35], s[0:1], 88
    s_load_dwordx4 s[28:31], s[0:1], 8
    s_load_dwordx2 s[32:33], s[0:1], 24
    s_load_dwordx4 s[40:43], s[0:1], 48
    s_load_dwordx2 s[72:73], s[0:1], 80
    v_and_b32 v1, 63, v0
    v_lshrrev_b32 v2, 6, v0
    s_nop 0
    v_readfirstlane_b32 s3, v2
    s_and_b32 s4, s2, 7
    s_lshl_b32 s4, s4, 2
    s_lshr_b32 s5, s2, 3
    s_and_b32 s6, s5, 3
    s_add_u32 s4, s4, s6
    s_lshr_b32 s5, s2, 5
    s_lshl_b32 {S_WB}, s3, 12
    s_lshl_b32 s16, s5, 8
    s_lshl_b32 s17, s4, 3
    s_add_u32 s16, s16, s17
    s_lshl_b32 s17, s3, 1
    s_add_u32 s16, s16, s17
    s_lshl_b32 s17, s16, 10
    v_lshlrev_b32 v2, 4, v1
    s_waitcnt lgkmcnt(0)
    s_mov_b32 s8, s76
    s_and_b32 s9, s77, 0xffff
    s_mov_b32 s10, {2048*1024}
    s_mov_b32 s11, 0x20000
    buffer_load_dwordx4 v[4:7], v2, s[8:11], s17 offen
    buffer_load_dwordx4 v[8:11], v2, s[8:11], s17 offen offset:1024
    s_mov_b32 s20, s34
    s_and_b32 s21, s35, 0xffff
    s_mov_b32 s22, 0x10000000
    s_mov_b32 s23, 0x20000
    s_mov_b32 s36, s32
    s_and_b32 s37, s33, 0xffff
    s_mov_b32 s38, {0 if opts.get("kanow") else 512*8192}
    s_mov_b32 s39, 0x20000
    s_mov_b32 s44, s42
    s_and_b32 s45, s43, 0xffff
    s_and_b32 s41, s41, 0xffff
    s_cmp_lt_u32 s4, 28
    s_cselect_b32 s42, {0 if opts.get("kanow") else 512*3584}, 0
    s_mov_b32 s46, s42
    s_mov_b32 s43, 0x20000
    s_mov_b32 s47, 0x20000
    s_lshl_b32 {S_OX}, s5, 18
    s_add_u32 {S_OX}, {S_OX}, {WS_XN}
    s_add_u32 {S_OX}, {S_OX}, {S_WB}
    {"s_mov_b32 s50, 0xf0000000" if opts.get("kanox") else ""}
    s_lshl_b32 {S_OWQ}, s4, 8
    s_lshl_b32 {S_OGU}, s4, 7
    s_lshl_b32 s6, s3, 11
    s_add_u32 {S_MWQ}, s6, {GW}
    s_lshl_b32 s6, s3, 10
    s_add_u32 {S_MG}, s6, {GW + 8192}
    s_add_u32 {S_MU}, s6, {GW + 12288}
    v_lshrrev_b32 v12, 4, v1
    v_and_b32 v13, 15, v1
    v_lshlrev_b32 v14, 2, v12
    v_xor_b32 v14, v14, v13
    v_lshlrev_b32 v14, 4, v14
    s_lshl_b32 s6, s3, 3
    v_add_u32 v15, s6, v12
    v_lshlrev_b32 v15, 13, v15
    v_add_u32 {VO_WQ(0)}, v15, v14
    v_add_u32 {VO_WQ(1)}, {4*8192-1024}, {VO_WQ(0)}
    v_lshrrev_b32 v12, 3, v1
    v_and_b32 v13, 7, v1
    v_bfe_u32 v14, v1, 4, 1
    s_and_b32 s7, s3, 1
    s_lshl_b32 s7, s7, 1
    v_or_b32 v14, s7, v14
    v_lshlrev_b32 v14, 1, v14
    v_xor_b32 v14, v14, v13
    v_add_u32 v15, s6, v12
    s_movk_i32 s7, 3584
    v_mul_lo_u32 v15, v15, s7
    v_lshl_add_u32 {VO_G}, v14, 4, v15
    """)
    for c in range(3):
        gr, adv = w_dma(c)
        issue_groups(pr, gr); pr.extend(adv)
    if opts.get("wearly", 1):
        pr(f"""
        s_cmp_lt_u32 s3, 2
        s_cbranch_scc0 K_we_gu
        s_mov_b32 s64, s36
        s_mov_b32 s65, s37
        s_mov_b32 s66, s38
        v_lshrrev_b32 v12, 1, v1
        s_and_b32 s6, s3, 1
        s_lshl_b32 s6, s6, 5
        s_lshl_b32 s7, s5, 6
        s_add_u32 s6, s6, s7
        v_add_u32 v12, s6, v12
        v_lshlrev_b32 v12, 13, v12
        v_and_b32 v13, 1, v1
        v_lshl_add_u32 v12, v13, 7, v12
        s_lshl_b32 s6, s4, 8
        s_branch K_we_go
        K_we_gu:
        s_cmp_eq_u32 s3, 2
        s_cselect_b32 s64, s40, s44
        s_cselect_b32 s65, s41, s45
        s_mov_b32 s66, s42
        s_lshl_b32 s7, s5, 6
        v_add_u32 v12, s7, v1
        s_movk_i32 s7, 3584
        v_mul_lo_u32 v12, v12, s7
        s_lshl_b32 s6, s4, 7
        K_we_go:
        s_mov_b32 s67, 0x20000
        buffer_load_dword v249, v12, s[64:67], s6 offen
        """)
    if opts.get("ctouch", 0):
        pr("""
        s_lshr_b32 s6, s2, 3
        s_lshl_b32 s6, s6, 2
        s_add_u32 s6, s6, s3
        s_mul_i32 s7, s6, 43
        s_lshr_b32 s7, s7, 8
        s_mul_i32 s7, s7, 6
        s_sub_u32 s6, s6, s7
        """)
        code_touch(pr, "attn_kernel", "TEXT_END", "s6", 6)
    pr(f"""
    v_bfe_u32 v3, v1, 2, 3
    v_lshlrev_b32 v3, 14, v3
    v_lshrrev_b32 v12, 5, v1
    v_lshl_add_u32 v3, v12, 6, v3
    v_and_b32 v12, 3, v1
    s_lshr_b32 s18, s16, 8
    s_lshl_b32 s18, s18, 18
    s_and_b32 s19, s16, 255
    s_lshl_b32 s6, s19, 6
    s_add_u32 s18, s18, s6
    s_add_u32 s18, s18, {WS_XN}
    s_lshr_b32 s6, s19, 2
    s_and_b32 s6, s6, 3
    s_and_b32 s7, s6, 1
    s_lshl_b32 s7, s7, 1
    s_lshr_b32 s6, s6, 1
    s_mul_i32 s6, s6, 3
    s_xor_b32 s7, s7, s6
    v_xor_b32 v12, s7, v12
    v_lshl_add_u32 v3, v12, 4, v3
    """)
    ln_rows(pr, opts)
    pr(f"""
    s_lshl_b32 s6, s4, 19
    s_add_u32 s16, s28, s6
    s_addc_u32 s17, s29, 0
    s_and_b32 s17, s17, 0xffff
    s_mov_b32 s18, 524288
    s_mov_b32 s19, 0x20000
    s_add_u32 s8, s16, 16384
    s_addc_u32 s9, s17, 0
    s_mov_b32 s10, {524288-16384}
    s_mov_b32 s11, 0x20000
    s_add_u32 s12, s30, s6
    s_addc_u32 s13, s31, 0
    s_and_b32 s13, s13, 0xffff
    s_mov_b32 s14, 524288
    s_mov_b32 s15, 0x20000
    """)
    pr("s_waitcnt vmcnt(0)\ns_barrier")
    T(pr, 6)
    pr(f"""
    s_and_b32 s6, s5, 3
    s_lshl_b32 s6, s6, 6
    s_lshr_b32 s7, s5, 2
    s_lshl_b32 s7, s7, 2
    s_add_u32 s74, s6, s7
    s_cmp_lg_u32 s3, 0
    s_cbranch_scc1 K_xn_skip
    v_mov_b32 v2, s74
    v_mov_b32 v4, 1
    s_mov_b64 exec, 1
    global_atomic_add v2, v4, {SRD_DBG} sc1
    s_mov_b64 exec, -1
    K_xn_skip:
    """)
    pr(f"""
    v_bfe_u32 v2, v1, 2, 2
    v_and_b32 v3, 3, v1
    v_lshrrev_b32 v4, 4, v1
    v_lshl_add_u32 v5, v4, 3, v2
    v_lshlrev_b32 v6, 8, v5
    v_add_u32 v6, {GW}, v6
    v_lshlrev_b32 v7, 2, v2
    """)
    for ds in range(4):
        pr(f"""
        v_add_u32 v8, {4*ds}, v3
        v_xor_b32 v8, v8, v7
        v_lshl_add_u32 {VA_Q(ds)}, v8, 4, v6
        """)
    pr(f"""
    v_lshlrev_b32 v6, 7, v5
    v_add_u32 v6, {GW}, v6
    v_and_b32 v7, 1, v3
    v_lshl_add_u32 v6, v7, 3, v6
    v_bfe_u32 v7, v1, 3, 1
    v_and_b32 v8, 1, v4
    v_lshl_or_b32 v7, v8, 1, v7
    v_lshlrev_b32 v7, 1, v7
    v_lshrrev_b32 v9, 1, v3
    """)
    for cb in range(4):
        pr(f"""
        v_add_u32 v8, {2*cb}, v9
        v_xor_b32 v8, v8, v7
        v_lshl_add_u32 {VA_G(cb)}, v8, 4, v6
        """)
    act_lane_offset(pr, VO_X)
    pr(f"""
    v_lshrrev_b32 v2, 4, v1
    v_and_b32 v3, 15, v1
    v_lshlrev_b32 v4, 8, v2
    v_add_u32 v4, {S_WB}, v4
    """)
    for ii in range(4):
        pr(f"""
        v_add_u32 v5, {4*ii}, v2
        v_xor_b32 v5, v5, v3
        v_lshl_add_u32 {VOFFK(ii)}, v5, 4, v4
        """)
    for par in range(2):
        pr(f"""
        v_add_u32 v5, {4*par}, v2
        v_lshlrev_b32 v5, 1, v5
        v_xor_b32 v5, v5, v3
        v_lshl_add_u32 {VOFFV(par)}, v5, 4, v4
        """)
    pr(f"""
    v_and_b32 v2, 15, v1
    v_lshrrev_b32 v3, 4, v1
    v_lshlrev_b32 v5, 8, v2
    """)
    for ds in range(4):
        pr(f"""
        v_add_u32 v6, {4*ds}, v3
        v_xor_b32 v6, v6, v2
        v_lshl_add_u32 {VKA(ds)}, v6, 4, v5
        """)
    pr(f"""
    v_bfe_u32 v2, v1, 2, 2
    v_and_b32 v3, 3, v1
    v_lshrrev_b32 v4, 4, v1
    v_lshl_add_u32 v6, v4, 2, v2
    v_and_b32 v8, 7, v6
    v_lshlrev_b32 v8, 1, v8
    v_lshlrev_b32 v6, 8, v6
    v_add_u32 v6, 65536, v6
    v_and_b32 v7, 1, v3
    v_lshl_add_u32 v6, v7, 3, v6
    v_lshrrev_b32 v7, 1, v3
    """)
    for db in range(8):
        pr(f"""
        v_add_u32 v9, {2*db}, v7
        v_xor_b32 v9, v9, v8
        v_lshl_add_u32 {VVA(db)}, v9, 4, v6
        """)
    for i in range(128): pr(f"v_mov_b32 v{16+i}, 0")
    for i in range(128): pr(f"v_accvgpr_write_b32 a{i}, 0")
    for cb in range(16): pr.extend(a_reads(cb, 0))
    pr(f"""
    s_cmp_lg_u32 s3, 0
    s_cbranch_scc1 K_xn_wait
    v_mov_b32 v2, s74
    s_mov_b64 exec, 1
    """)
    poll(pr, "K_xn_poll", "v2", 32)
    pr(f"""
    s_mov_b64 exec, -1
    K_xn_wait:
    s_barrier
    """)
    T(pr, 7)
    for c in range(3):
        gr, adv = x_loads(c)
        issue_groups(pr, gr); pr.extend(adv)
    T(pr, 1)
    pr(f"s_mov_b32 {S_CNT}, 3")
    seg_a = pr.insts
    def full(c):
        xg, xa = x_loads((c + 3) & 3); wg_, wa = w_dma((c + 3) & 3)
        return gemm_period(c, xg + wg_, xa + wa)
    body = []
    for c in range(4): body += full(c)
    body += [Inst(f"s_sub_u32 {S_CNT}, {S_CNT}, 1"), Inst(f"s_cmp_lg_u32 {S_CNT}, 0"), Inst("s_cbranch_scc1 K_gloop")]
    def mk_touch():
        tp = Prog()
        tp(f"""
        s_load_dwordx2 s[40:41], s[0:1], 32
        s_load_dwordx2 s[42:43], s[0:1], 64
        s_and_b32 s51, s2, 3
        s_bfe_u32 s58, s2, 0x30003
        s_lshl_b32 s58, s58, 2
        s_lshr_b32 s59, s2, 6
        s_add_u32 s58, s58, s59
        s_lshl_b32 s58, s58, 2
        s_add_u32 s58, s58, s3
        s_lshl_b32 s58, s58, 4
        s_mul_i32 s59, s51, {24*64}
        s_add_u32 s59, s59, s58
        v_lshlrev_b32 v242, 7, v1
        v_add_u32 v243, 8192, v242
        """)
        tp2 = Prog()
        tp2(f"""
        s_waitcnt lgkmcnt(0)
        s_and_b32 s41, s41, 0xffff
        s_sub_u32 s42, s42, {64*65536}
        s_subb_u32 s43, s43, 0
        s_and_b32 s43, s43, 0xffff
        s_cmp_lt_u32 s59, 4096
        s_cselect_b32 s44, s40, s42
        s_cselect_b32 s45, s41, s43
        s_mov_b32 s46, {92*65536}
        s_cselect_b32 s46, {64*65536}, s46
        s_mov_b32 s47, 0x20000
        s_lshl_b32 s59, s59, 10
        s_cmp_lt_u32 s58, {24*64}
        s_cselect_b32 s59, s59, 0xf0000000
        """)
        tp3 = [Inst("buffer_load_dword v240, v242, s[44:47], s59 offen"), Inst("buffer_load_dword v241, v243, s[44:47], s59 offen")]
        return tp.insts, tp2.insts, tp3
    p2 = Prog()
    p2.extend(full(12))
    p2(f"s_mov_b32 s6, 0\ns_mov_b32 s7, 16384")
    p2.extend(gemm_period(13, dma_k(3, SRD_K0, "0") + dma_v(0, "s6"), []))
    p2.extend(gemm_period(14, dma_k(0, SRD_K, "s6") + dma_v(1, "s7"), []))
    p2.extend(gemm_period(15, dma_k(1, SRD_K, "s7"), [], read_next=False, nvm=None))
    T(p2, 2)
    p2(f"s_mov_b32 s6, {f32hex(QSCALE)}\ns_mov_b32 s7, {f32hex(QSCALE)}\ns_nop 7")
    for tb in range(4):
        for ds in range(4):
            for h in range(2):
                b = 16 + ((2 * ds + h) * 4 + tb) * 4
                p2(f"v_pk_mul_f32 v[{b}:{b+1}], v[{b}:{b+1}], s[6:7]\nv_pk_mul_f32 v[{b+2}:{b+3}], v[{b+2}:{b+3}], s[6:7]")
            for h in range(2):
                cb = 2 * ds + h
                for i in range(2):
                    p2(f"v_cvt_pk_bf16_f32 v{Qb(tb,ds)+2*h+i}, {QACC(cb,tb,2*i)}, {QACC(cb,tb,2*i+1)}")
    p2("s_cmp_ge_u32 s4, 28\ns_cbranch_scc1 K_noh")
    p2(f"""
    s_lshl_b32 s6, s5, 1
    s_lshr_b32 s7, s3, 1
    s_add_u32 s6, s6, s7
    s_mul_i32 s6, s6, {92*16384 + opts.get("actpad", 4096)}
    s_add_u32 s7, s4, 64
    s_lshl_b32 s7, s7, 14
    s_add_u32 s6, s6, s7
    s_and_b32 s7, s3, 1
    s_lshl_b32 s7, s7, 12
    s_add_u32 s6, s6, s7
    s_add_u32 s6, s6, {WS_ACT}
    """)
    act_lane_offset(p2, "v2", "v3")
    p2(f"""
    s_mov_b32 s26, {f32hex(-LOG2E)}
    s_mov_b32 s27, {f32hex(-LOG2E)}
    s_mov_b32 s78, 1.0
    s_mov_b32 s79, 1.0
    """)
    for tb in range(4):
        for e in range(2):
            t0 = 16 + e * 32
            for hh in range(2):
                cb = 2 * e + hh
                for r in range(4):
                    j = hh * 4 + r
                    p2(f"v_accvgpr_read_b32 v{t0+j}, {GACC(cb,tb,r)}")
                    p2(f"v_accvgpr_read_b32 v{t0+8+j}, {UACC(cb,tb,r)}")
            pk = lambda op, d, a, b: p2(f"{op} v[{d}:{d+1}], v[{a}:{a+1}], {b}")
            for j in range(0, 8, 2): pk("v_pk_mul_f32", t0 + 16 + j, t0 + j, "s[26:27]")
            for j in range(8): p2(f"v_exp_f32 v{t0+16+j}, v{t0+16+j}")
            for j in range(0, 8, 2): pk("v_pk_mul_f32", t0 + j, t0 + j, f"v[{t0+8+j}:{t0+9+j}]")
            for j in range(0, 8, 2): pk("v_pk_add_f32", t0 + 16 + j, t0 + 16 + j, "s[78:79]")
            for j in range(8): p2(f"v_rcp_f32 v{t0+16+j}, v{t0+16+j}")
            for j in range(0, 8, 2): pk("v_pk_mul_f32", t0 + j, t0 + j, f"v[{t0+16+j}:{t0+17+j}]")
            for i in range(4): p2(f"v_cvt_pk_bf16_f32 v{t0+24+i}, v{t0+2*i}, v{t0+2*i+1}")
            p2(f"buffer_store_dwordx4 v[{t0+24}:{t0+27}], v{2+e}, {SRD_WS}, s6 offen offset:{tb*1024}")
    p2("K_noh:")
    p2("s_mov_b32 s27, 0")
    p3 = Prog()
    p3("K_astart:")
    for i in range(128): p3(f"v_accvgpr_write_b32 a{i}, 0")
    for qb in range(4): p3(f"v_mov_b32 {L(qb)}, 0")
    for i in range(4): p3(f"v_mov_b32 v{128+i}, 0x3f803f80")
    for j in range(NS):
        for i in range(4): p3(f"v_mov_b32 v{LREGS[j]+i}, 0")
    p3(f"s_mov_b32 {S_OFF}, 32768")
    if opts.get("kvtouch"):
        D = opts.get("kvdist", 2) * 16384
        p3(f"""
        s_cmp_lt_u32 s3, 2
        s_cselect_b32 s56, s8, s12
        s_cselect_b32 s57, s9, s13
        s_cselect_b32 s58, s10, s14
        s_add_u32 s56, s56, {D}
        s_addc_u32 s57, s57, 0
        s_sub_u32 s58, s58, {D}
        s_mov_b32 s59, 0x20000
        s_lshl_b32 s6, s5, 11
        s_and_b32 s7, s3, 1
        s_lshl_b32 s7, s7, 10
        s_add_u32 s6, s6, s7
        v_lshlrev_b32 v243, 4, v1
        v_add_u32 v243, s6, v243
        """)
    p3("s_waitcnt vmcnt(0) lgkmcnt(0)\ns_barrier")
    T(p3, 3)
    for f in range(4): p3.add(k_read(0, f))
    ph, carry = emit_phase(-1, opts, [])
    p3.extend(ph)
    p3("s_cmp_lg_u32 s27, 0\ns_cbranch_scc1 K_havemax")
    p3("s_nop 7")
    for qb in range(4):
        m = f"v{244+qb}"
        p3(f"v_max3_f32 {m}, {S(0,0,qb,0)}, {S(0,0,qb,1)}, {S(0,0,qb,2)}")
        p3(f"v_max3_f32 {m}, {m}, {S(0,0,qb,3)}, {S(0,1,qb,0)}")
        p3(f"v_max3_f32 {m}, {m}, {S(0,1,qb,1)}, {S(0,1,qb,2)}")
        p3(f"v_max_f32 {m}, {m}, {S(0,1,qb,3)}")
        p3(f"v_mov_b32 v248, {m}")
        p3(f"v_permlane32_swap_b32 v248, {m}")
        p3(f"v_max_f32 {m}, {m}, v248")
        p3(f"v_mov_b32 v248, {m}")
        p3(f"v_permlane16_swap_b32 v248, {m}")
        p3(f"v_max_f32 {m}, {m}, v248")
    p3("K_havemax:")
    p3("s_nop 7")
    for qb in range(4):
        m = f"v{244+qb}"
        for r in range(4): p3(f"v_sub_f32 {NEGM(qb,r)}, 0, {m}")
        for kb in range(2):
            for r in range(4): p3(f"v_sub_f32 {S(0,kb,qb,r)}, {S(0,kb,qb,r)}, {m}")
    p2 = (p2, p3); p2a, p2 = p2
    ph, carry = emit_phase(0, opts, carry)
    p2.extend(ph)
    p2(f"s_mov_b32 {S_CNT}, 7")
    abody = []
    c2 = carry
    for p in range(1, 9):
        ph, c2 = emit_phase(p, opts, c2)
        abody += ph
    abody += [Inst(f"s_sub_u32 {S_CNT}, {S_CNT}, 1"), Inst(f"s_cmp_lg_u32 {S_CNT}, 0"), Inst("s_cbranch_scc1 K_aloop")]
    if opts.get("wtouch", 1):
        opts = dict(opts)
        ta, tb_, tc = mk_touch()
        opts["extra"] = {58: [(3, ta)], 59: [(41, tb_), (50, tc[:1]), (54, tc[1:])]}
        opts["vmadj"] = {30: 2, 31: 2}
        if opts.get("kbcode", 1):
            cp = Prog()
            cp("""
            s_getpc_b64 s[78:79]
            CT_kb:
            s_add_u32 s78, s78, oproj_kernel-CT_kb
            s_addc_u32 s79, s79, 0
            s_and_b32 s77, s3, 1
            s_lshl_b32 s77, s77, 13
            v_lshlrev_b32 v236, 7, v1
            v_add_u32 v236, s77, v236
            v_min_u32 v236, TEXT_END-oproj_kernel-4, v236
            v_mov_b32 v237, s79
            v_add_co_u32 v236, vcc, s78, v236
            v_addc_co_u32 v237, vcc, 0, v237, vcc
            """)
            opts["extra"][58].append((40, cp.insts))
            opts["extra"][59].append((58, [Inst("global_load_dword v238, v[236:237], off")]))
            opts["vmadj"] = {30: 3, 31: 3}
    tail = []
    c3 = c2
    for p in range(57, 65):
        ph, c3 = emit_phase(p, opts, c3)
        tail += ph
    tail += [c[1] if isinstance(c, tuple) else c for c in c3]
    post = Prog()
    T(post, 4)
    for qb in range(4):
        if qb >= 4 - NS:
            post(f"v_mov_b32 {L(qb)}, v{LREGS[qb - (4 - NS)]}")
            continue
        post(f"""
        v_mov_b32 v248, {L(qb)}
        v_permlane32_swap_b32 v248, {L(qb)}
        v_add_f32 {L(qb)}, {L(qb)}, v248
        v_mov_b32 v248, {L(qb)}
        v_permlane16_swap_b32 v248, {L(qb)}
        v_add_f32 {L(qb)}, {L(qb)}, v248
        """)
    post(f"""
    v_max3_f32 v248, {L(0)}, {L(1)}, {L(2)}
    v_max_f32 v248, v248, {L(3)}
    v_add_f32 v249, {L(0)}, {L(1)}
    v_add_f32 v250, {L(2)}, {L(3)}
    v_add_f32 v249, v249, v250
    s_mov_b32 s6, {f32hex(float(2**24))}
    v_cmp_nlt_f32 vcc, v248, s6
    v_cmp_u_f32 s[6:7], v249, v249
    s_or_b64 vcc, vcc, s[6:7]
    s_cmp_lg_u64 vcc, 0
    s_cselect_b32 s6, 1, 0
    v_mov_b32 v248, s6
    v_mov_b32 v249, 131072
    v_lshl_add_u32 v250, s3, 2, v249
    ds_write_b32 v250, v248
    s_waitcnt lgkmcnt(0)
    s_barrier
    ds_read_b128 v[248:251], v249
    s_waitcnt lgkmcnt(0)
    v_or3_b32 v248, v248, v249, v250
    v_or_b32 v248, v248, v251
    s_nop 0
    v_readfirstlane_b32 s6, v248
    s_xor_b32 s7, s27, 1
    s_and_b32 s6, s6, s7
    s_cmp_lg_u32 s6, 0
    s_cbranch_scc1 K_fallback
    """)
    for qb in range(4): post(f"v_rcp_f32 {L(qb)}, {L(qb)}")
    post(f"""
    s_lshl_b32 s6, s5, 1
    s_lshr_b32 s7, s3, 1
    s_add_u32 s6, s6, s7
    s_mul_i32 s6, s6, {92*16384 + opts.get("actpad", 4096)}
    s_lshl_b32 s7, s4, 15
    s_add_u32 s6, s6, s7
    s_and_b32 s7, s3, 1
    s_lshl_b32 s7, s7, 12
    s_add_u32 s6, s6, s7
    s_add_u32 s52, s6, {WS_ACT}
    s_add_u32 s53, s52, 16384
    """)
    act_lane_offset(post, "v2", "v3")
    for qb in range(4):
        lp = 226 + (qb & ~1)
        osel = "op_sel:[0,0] op_sel_hi:[1,0]" if qb % 2 == 0 else "op_sel:[0,1] op_sel_hi:[1,1]"
        for e in range(4):
            t0 = 16 + (e & 1) * 16
            for hh in range(2):
                for r in range(4):
                    post(f"v_accvgpr_read_b32 v{t0+hh*4+r}, {O(2*e+hh,qb,r)}")
            for j in range(0, 8, 2): post(f"v_pk_mul_f32 v[{t0+j}:{t0+j+1}], v[{t0+j}:{t0+j+1}], v[{lp}:{lp+1}] {osel}")
            for i in range(4): post(f"v_cvt_pk_bf16_f32 v{t0+8+i}, v{t0+2*i}, v{t0+2*i+1}")
            post(f"buffer_store_dwordx4 v[{t0+8}:{t0+11}], v{2+(e&1)}, {SRD_WS}, s{52+(e>>1)} offen offset:{qb*1024}")
    if opts.get("time"):
        post("s_waitcnt vmcnt(0)")
        T(post, 5)
        post(f"""
        s_waitcnt lgkmcnt(0)
        s_lshl_b32 s6, s2, 2
        s_add_u32 s6, s6, s3
        s_lshl_b32 s6, s6, 6
        s_add_u32 s6, s6, {WS_TIME}
        v_mov_b32 v3, s6
        """)
        for i in range(8):
            post(f"v_mov_b32 v2, s{SB(i)}\nbuffer_store_dword v2, v3, {SRD_WS}, 0 offen offset:{4*i}")
        for i in range(4):
            post(f"v_mov_b32 v2, s{64+2*i}\nbuffer_store_dword v2, v3, {SRD_WS}, 0 offen offset:{32+4*i}")
    post("KA_end:\ns_endpgm")
    fb = Prog()
    fb(f"""
    K_fallback:
    s_waitcnt vmcnt(0) lgkmcnt(0)
    s_barrier
    s_mov_b32 s27, 1
    v_and_b32 v2, 15, v1
    v_lshrrev_b32 v3, 4, v1
    v_lshlrev_b32 v2, 8, v2
    v_lshl_add_u32 v2, v3, 4, v2
    s_mov_b32 s6, 0
    """)
    for qb in range(4): fb(f"v_mov_b32 v{244+qb}, 0xff800000")
    fb("K_fb_loop:")
    for ds in range(4):
        fb(f"buffer_load_dwordx4 v[{16+4*ds}:{19+4*ds}], v2, {SRD_K0}, s6 offen offset:{64*ds}")
    fb("s_waitcnt vmcnt(0)")
    for qb in range(4):
        for ds in range(4):
            c = "0" if ds == 0 else f"v[{32+4*qb}:{35+4*qb}]"
            fb(f"v_mfma_f32_16x16x32_bf16 v[{32+4*qb}:{35+4*qb}], v[{16+4*ds}:{19+4*ds}], {Q(qb,ds)}, {c}")
    fb("s_nop 15")
    for qb in range(4):
        b = 32 + 4 * qb
        fb(f"v_max3_f32 v{244+qb}, v{244+qb}, v{b}, v{b+1}")
        fb(f"v_max3_f32 v{244+qb}, v{244+qb}, v{b+2}, v{b+3}")
    fb(f"""
    s_add_u32 s6, s6, 4096
    s_cmp_lt_u32 s6, 524288
    s_cbranch_scc1 K_fb_loop
    """)
    for qb in range(4):
        m = f"v{244+qb}"
        fb(f"""
        v_mov_b32 v248, {m}
        s_nop 1
        v_permlane32_swap_b32 v248, {m}
        v_max_f32 {m}, {m}, v248
        v_mov_b32 v248, {m}
        s_nop 1
        v_permlane16_swap_b32 v248, {m}
        v_max_f32 {m}, {m}, v248
        """)
    fb("s_mov_b32 s6, 0\ns_mov_b32 s7, 16384")
    issue_groups(fb, dma_k(3, SRD_K0, "0") + dma_v(0, "s6") + dma_k(0, SRD_K, "s6") + dma_v(1, "s7") + dma_k(1, SRD_K, "s7"))
    fb("s_branch K_astart")
    fb2 = check_hazards([Inst("s_nop 15")] + fb.insts, fix=True)[1:]
    a2, st = lin(seg_a, None, [])
    b2, st = auto_wait_loop(body, st); b2 = merge_adjacent_waits(b2)
    q1, st = lin(p2a.insts, st, b2[-40:])
    q2, st = lin(p2.insts, WaitState(), q1[-40:])
    q2 = q1 + q2
    ab2, st = auto_wait_loop(abody, st); ab2 = merge_adjacent_waits(ab2)
    t2, st = lin(tail, st, ab2[-40:])
    po2, st = lin(post.insts, st, t2[-40:])
    for nm, seq in (("gloop", a2[-60:] + b2 + b2 + q2[:80]), ("aloop", q2[-60:] + ab2 + ab2 + t2 + po2[:40])):
        for p_ in check_hazards(seq): print("HAZARD", nm, p_, file=sys.stderr)
    return a2 + [Inst("K_gloop:")] + b2 + q2 + [Inst("K_aloop:")] + ab2 + t2 + po2 + fb2

def gen_kb(opts):
    T = lambda pr, idx: stamp(pr, opts, idx)
    NCH = 24
    ACC = lambda st_, cb, tb, r=None: (f"v[{16+st_*64+(cb*2+tb)*4}:{16+st_*64+(cb*2+tb)*4+3}]" if r is None else f"v{16+st_*64+(cb*2+tb)*4+r}")
    def AF3(s, cb, u=None):
        b = (s * 8 + cb) * 4
        return f"a[{b}:{b+3}]" if u is None else f"a[{b+2*u}:{b+2*u+1}]"
    G2 = opts.get('kbG', 0)
    R = 8 if G2 else opts.get('kbR', 4); D = R - 1
    RB = (opts.get('kbRB', 4) if G2 else R); DB = (RB - 1 if G2 else D); DW = 5 if G2 else D
    def BF3(st, s, tb):
        b = 64 + st * 16 + (s * 2 + tb) * 4
        return f"a[{b}:{b+3}]"
    VA = lambda cb, hi=0: f"v{208+hi*8+cb}"
    VOW = lambda ii: f"v{224+ii}"; VOA = lambda s: f"v{228+s}"
    SRD_W = "s[8:11]"; SRD_A = "s[12:15]"
    S_GP = "s19"; S_OA = "s24"; S_OW = "s26"; S_MW = "s25"
    PART = "s48"; TM = "s49"; TN = "s50"
    def a_rd(s, cb, stage):
        return [Inst(f"ds_read_b64_tr_b16 {AF3(s,cb,u)}, {VA(cb, stage >> 2)} offset:{(stage & 3)*16384 + (32*s+16*u)*256}") for u in range(2)]
    def sel_w():
        return [Inst(f"s_cmp_lt_u32 {S_GP}, 64"), Inst("s_cselect_b32 s8, s40, s42"), Inst("s_cselect_b32 s9, s41, s43"), Inst(f"s_add_u32 {S_GP}, {S_GP}, {R}")]
    def dma_w(stage):
        r = [[Inst(f"s_add_u32 m0, {S_MW}, {stage*16384}"), Inst(f"buffer_load_dwordx4 {VOW(0)}, {SRD_W}, {S_OW} offen lds")]]
        for ii in range(1, 4):
            r.append([Inst(f"buffer_load_dwordx4 {VOW(ii)}, {SRD_W}, {S_OW} offen offset:{ii*1024} lds")])
        return r, [Inst(f"s_add_u32 {S_OW}, {S_OW}, 65536")]
    def ld_a(st):
        so = S_OA
        if opts.get("kbuniq"):
            so = f"s{60 + (st & 3)}"
        r = [[Inst(f"buffer_load_dwordx4 {BF3(st,s,tb)}, {VOA(s)}, {SRD_A}, {so} offen offset:{tb*1024}")] for s in range(2) for tb in range(2)]
        adv = [Inst(f"s_add_u32 {S_OA}, {S_OA}, 16384")]
        if opts.get("kbuniq"):
            adv = [Inst(f"s_add_u32 s{60+i}, s{60+i}, 16384") for i in range(4)]
        return r, adv
    def period(c, accset):
        st = c % RB
        NG = 32
        pre = [[] for _ in range(NG + 1)]; mem = [[] for _ in range(NG + 1)]; gaps = [[] for _ in range(NG + 1)]
        pre[0] += [Hint(*[BF3(st, s, t) for s in range(2) for t in range(2)])]
        if not G2: pre[0] += [Inst(f"s_waitcnt vmcnt({8*(D-2)})"), Inst("s_barrier")]
        elif c % 2 == 0: pre[0] += [Inst("s_waitcnt vmcnt(16)"), Inst("s_barrier")]
        ag, aadv = ld_a((c + DB) % RB)
        wg_, wadv = dma_w((c + DW) % R)
        for s in range(2):
            for cb in range(8):
                k = 2 * (s * 8 + cb) + 2
                rd = a_rd(s, cb, (c + 1) % R)
                if k < 31: mem[k].append(rd[0]); mem[k + 1].append(rd[1])
                else: mem[31].append(rd[0]); mem[31].append(rd[1])
        mem[0] += ag[0]; mem[1] += ag[1]
        if (c + DW) % R == 0: gaps[0] += sel_w()[:1]; gaps[1] += sel_w()[1:2]; gaps[2] += sel_w()[2:3]; gaps[3] += sel_w()[3:]
        mem[5] += ag[2]; mem[8] += ag[3]; gaps[9] += aadv
        gaps[11] += wg_[0][:-1]
        for gp, d in zip([12, 16, 20, 24], wg_): mem[gp] += d[-1:]
        gaps[26] += wadv
        out = []
        for s in range(2):
            for cb in range(8):
                if cb == 0 or (s == 0 and cb == 4): pre[2 * (s * 8 + cb)].insert(0, Hint(*[AF3(s, c_) for c_ in range(cb, 8 if s else cb + 4)] + ([AF3(0, c_) for c_ in range(4, 8)] if False else [])))
                for tb in range(2):
                    k = 2 * (s * 8 + cb) + tb
                    d = ACC(accset, cb, tb)
                    out += pre[k]
                    out.append(Inst(f"v_mfma_f32_16x16x32_bf16 {d}, {AF3(s,cb)}, {BF3(st,s,tb)}, {d}"))
                    out += mem[k]; out += gaps[k]
        return out
    post = Prog()
    post("s_cmp_ge_u32 s2, 256\ns_cbranch_scc1 KB_end")
    T(post, 0)
    post(f"""
    s_load_dwordx2 s[40:41], s[0:1], 32
    s_load_dwordx2 s[42:43], s[0:1], 64
    s_load_dwordx2 s[34:35], s[0:1], 88
    s_load_dwordx2 s[30:31], s[0:1], 0
    s_load_dwordx2 s[32:33], s[0:1], 72
    s_load_dwordx2 s[72:73], s[0:1], 80
    v_and_b32 v1, 63, v0
    v_lshrrev_b32 v2, 6, v0
    s_nop 0
    v_readfirstlane_b32 s3, v2
    s_and_b32 {PART}, s2, 3
    s_bfe_u32 {TM}, s2, 0x10002
    s_lshl_b32 {TM}, {TM}, 3
    s_bfe_u32 s6, s2, 0x30003
    s_add_u32 {TM}, {TM}, s6
    s_lshr_b32 {TN}, s2, 6
    s_mul_i32 {S_GP}, {PART}, {NCH}
    s_sub_u32 s14, 92, {S_GP}
    s_min_u32 s14, s14, {NCH}
    s_lshl_b32 s14, s14, 14
    s_mul_i32 s6, {TM}, {92*16384 + opts.get("actpad", 4096)}
    s_lshl_b32 s7, {S_GP}, 14
    s_add_u32 s6, s6, s7
    s_add_u32 s36, s6, {WS_ACT}
    s_lshl_b32 {S_OA}, s3, 11
    s_lshl_b32 {S_OW}, {S_GP}, 16
    s_lshl_b32 s7, {TN}, 8
    s_add_u32 {S_OW}, {S_OW}, s7
    s_lshl_b32 {S_MW}, s3, 12
    v_lshrrev_b32 v2, 4, v1
    v_and_b32 v3, 15, v1
    s_lshl_b32 s7, s3, 4
    """)
    for ii in range(4):
        post(f"""
        v_add_u32 v4, {4*(ii&1)}, v2
        v_lshlrev_b32 v4, 1, v4
        v_xor_b32 v4, v4, v3
        v_lshlrev_b32 v4, 4, v4
        v_add_u32 v5, s7, v2
        v_add_u32 v5, {4*ii}, v5
        v_lshl_add_u32 v4, v5, 10, v4
        v_subrev_u32 {VOW(ii)}, {1024*ii}, v4
        """)
    act_lane_offset(post, VOA(0), VOA(1))
    post(f"""
    s_waitcnt lgkmcnt(0)
    s_and_b32 s41, s41, 0xffff
    s_sub_u32 s42, s42, {64*65536}
    s_subb_u32 s43, s43, 0
    s_and_b32 s43, s43, 0xffff
    s_mov_b32 s10, {92*65536}
    s_mov_b32 s11, 0x20000
    s_mov_b32 s20, s34
    s_and_b32 s21, s35, 0xffff
    s_mov_b32 s22, 0x10000000
    s_mov_b32 s23, 0x20000
    s_add_u32 s12, s34, s36
    s_addc_u32 s13, s35, 0
    s_and_b32 s13, s13, 0xffff
    s_mov_b32 s15, 0x20000
    """)
    if opts.get("kbuniq"):
        for i in range(4):
            post(f"s_cmp_eq_u32 {TN}, {i}\ns_cselect_b32 s{60+i}, {S_OA}, 0xf0000000")
        if opts.get("kbuniq") == 2:
            post(f"s_and_b32 s6, {TM}, 7\ns_cmp_eq_u32 s6, 0\ns_cselect_b32 {S_OW}, {S_OW}, 0xf0000000")
    post.extend(sel_w())
    if G2:
        for c in range(3): gr, adv = dma_w(c); issue_groups(post, gr); post.extend(adv)
        for c in range(3): gr, adv = ld_a(c); issue_groups(post, gr); post.extend(adv)
        for c in range(3, 5): gr, adv = dma_w(c); issue_groups(post, gr); post.extend(adv)
        for c in range(3, DB): gr, adv = ld_a(c); issue_groups(post, gr); post.extend(adv)
    else:
        for c in range(D):
            gr, adv = dma_w(c); issue_groups(post, gr); post.extend(adv)
            gr, adv = ld_a(c); issue_groups(post, gr); post.extend(adv)
    NINI = 4 * DW + 4 * DB
    NT = 0
    if opts.get("ctouch", 0):
        post("s_and_b32 s6, s3, 1")
        code_touch(post, "oproj_kernel", "TEXT_END", "s6", 2, vt=(238, 239, 240))
        NT += 1
    if opts.get("kbtouch"):
        NT += 5
        post(f"""
        v_and_b32 v4, 31, v1
        v_lshlrev_b32 v4, 7, v4
        v_lshrrev_b32 v5, 5, v1
        v_lshl_add_u32 v4, v5, 16, v4
        s_lshl_b32 s6, {TN}, 14
        s_lshl_b32 s7, s3, 12
        s_add_u32 s6, s6, s7
        s_add_u32 s6, s6, {4*16384}
        buffer_load_dword v232, v4, {SRD_A}, s6 offen
        s_add_u32 s6, s6, {8*16384}
        buffer_load_dword v233, v4, {SRD_A}, s6 offen
        s_add_u32 s6, s6, {8*16384}
        buffer_load_dword v234, v4, {SRD_A}, s6 offen
        """)
        post(f"""
        s_and_b32 s58, {TM}, 7
        s_lshl_b32 s58, s58, 2
        s_add_u32 s58, s58, {TN}
        s_lshl_b32 s58, s58, 2
        s_add_u32 s58, s58, s3
        s_mul_i32 s58, s58, 10
        s_add_u32 s58, s58, 256
        s_mul_i32 s59, {PART}, {24*64}
        s_add_u32 s59, s59, s58
        s_cmp_lt_u32 s59, 4096
        s_cselect_b32 s44, s40, s42
        s_cselect_b32 s45, s41, s43
        s_cselect_b32 s46, {64*65536}, s10
        s_mov_b32 s47, 0x20000
        s_lshl_b32 s59, s59, 10
        v_lshlrev_b32 v4, 7, v1
        v_add_u32 v5, 8192, v4
        buffer_load_dword v235, v4, s[44:47], s59 offen
        v_cmp_gt_u32 vcc, 16, v1
        s_and_saveexec_b64 s[6:7], vcc
        buffer_load_dword v236, v5, s[44:47], s59 offen
        s_mov_b64 exec, s[6:7]
        """)
    post(f"""
    v_bfe_u32 v2, v1, 2, 2
    v_and_b32 v3, 3, v1
    v_lshrrev_b32 v4, 4, v1
    v_lshl_add_u32 v6, v4, 2, v2
    v_and_b32 v8, 7, v6
    v_lshlrev_b32 v8, 1, v8
    v_lshlrev_b32 v6, 8, v6
    v_and_b32 v7, 1, v3
    v_lshl_add_u32 v6, v7, 3, v6
    v_lshrrev_b32 v7, 1, v3
    """)
    for cb in range(8):
        post(f"""
        v_add_u32 v9, {2*cb}, v7
        v_xor_b32 v9, v9, v8
        v_lshl_add_u32 {VA(cb)}, v9, 4, v6
        v_add_u32 {VA(cb,1)}, 65536, {VA(cb)}
        """)
    for i in range(128): post(f"v_mov_b32 v{16+i}, 0")
    post(f"""
    s_mov_b32 s56, {24//R}
    s_mov_b32 s57, 0
    s_cmp_eq_u32 {PART}, 2
    s_cselect_b32 s56, {16//R}, s56
    s_cselect_b32 s57, {8//R}, s57
    s_cmp_eq_u32 {PART}, 3
    s_cselect_b32 s56, 0, s56
    s_cselect_b32 s57, {24//R if R == 8 else 5}, s57
    s_waitcnt vmcnt({NINI-4+NT})
    s_barrier
    """)
    T(post, 9)
    for s in range(2):
        for cb in range(8): post.extend(a_rd(s, cb, 0))
    post("s_cmp_eq_u32 s56, 0\ns_cbranch_scc1 K3_l1pre")
    body0 = []; body1 = []
    for c in range(R): body0 += period(c, 0); body1 += period(c, 1)
    body0 += [Inst("s_sub_u32 s56, s56, 1"), Inst("s_cmp_lg_u32 s56, 0"), Inst("s_cbranch_scc1 K3_loop0")]
    mid = [Inst("K3_l1pre:"), Inst("s_cmp_eq_u32 s57, 0"), Inst("s_cbranch_scc1 K3_post")]
    body1 += [Inst("s_sub_u32 s57, s57, 1"), Inst("s_cmp_lg_u32 s57, 0"), Inst("s_cbranch_scc1 K3_loop1")]
    fin = Prog()
    fin("K3_post:")
    fin("s_waitcnt lgkmcnt(0)\ns_nop 15")
    T(fin, 10)
    fin(f"""
    s_lshl_b32 s7, {TM}, 2
    s_add_u32 s7, s7, {TN}
    s_mul_i32 s58, s7, 5
    s_lshl_b32 s58, s58, 15
    s_add_u32 s58, s58, {WS_SLAB}
    s_lshl_b32 s59, s3, 13
    s_add_u32 s59, s59, s58
    s_lshl_b32 s6, {PART}, 15
    s_add_u32 s6, s6, s59
    v_lshlrev_b32 v2, 4, v1
    s_cmp_eq_u32 {PART}, 3
    s_cbranch_scc1 K3_st1
    """)
    def slab_store(base):
        for j in range(8):
            t0 = 144 + (j & 3) * 4
            for i in range(4): fin(f"v_cvt_pk_bf16_f32 v{t0+i}, v{16+base+j*8+2*i}, v{16+base+j*8+2*i+1}")
            if j == 4: fin("s_add_u32 s6, s6, 4096")
            fin(f"buffer_store_dwordx4 v[{t0}:{t0+3}], v2, {SRD_WS}, s6 offen offset:{(j%4)*1024} sc1")
    slab_store(0)
    fin(f"""
    K3_st1:
    s_cmp_lt_u32 {PART}, 2
    s_cbranch_scc1 K3_sync
    s_add_u32 s6, {PART}, 1
    s_lshl_b32 s6, s6, 15
    s_add_u32 s6, s6, s59
    """)
    slab_store(64)
    fin(f"""
    K3_sync:
    s_mov_b32 s8, s30
    s_and_b32 s9, s31, 0xffff
    s_mov_b32 s10, {2048*1024}
    s_mov_b32 s11, 0x20000
    s_mov_b32 s12, s32
    s_and_b32 s13, s33, 0xffff
    s_mov_b32 s14, {2048*1024}
    s_mov_b32 s15, 0x20000
    s_lshl_b32 s6, {TM}, 7
    s_lshl_b32 s74, {PART}, 5
    s_add_u32 s6, s6, s74
    s_lshl_b32 s6, s6, 10
    s_lshl_b32 s74, {TN}, 8
    s_add_u32 s6, s6, s74
    s_lshl_b32 s74, s3, 6
    s_add_u32 s37, s6, s74
    v_and_b32 v3, 15, v1
    v_lshrrev_b32 v4, 4, v1
    v_lshlrev_b32 v3, 10, v3
    v_lshl_add_u32 v3, v4, 3, v3
    v_add_u32 v4, 16384, v3
    """)
    for jj in range(2):
        for tb in range(2):
            b = 200 + (jj * 2 + tb) * 2
            fin(f"buffer_load_dwordx2 v[{b}:{b+1}], v{3+tb}, s[8:11], s37 offen offset:{jj*32}")
    fin(f"""
    s_lshl_b32 s59, {PART}, 13
    s_add_u32 s59, s59, s58
    s_lshl_b32 s6, s3, 11
    s_add_u32 s59, s59, s6
    s_waitcnt vmcnt(4)
    s_barrier
    s_cmp_lg_u32 s3, 0
    s_cbranch_scc1 K3_wait
    s_and_b32 s6, s7, 3
    s_lshl_b32 s6, s6, 6
    s_lshr_b32 s74, s7, 4
    s_lshl_b32 s74, s74, 2
    s_add_u32 s6, s6, s74
    s_bfe_u32 s74, s7, 0x20002
    s_lshl_b32 s74, s74, 3
    s_lshl_b32 s75, 1, s74
    v_mov_b32 v6, s6
    v_mov_b32 v7, s75
    s_mov_b64 exec, 1
    global_atomic_add v6, v7, {SRD_DBG} sc1
    """)
    poll(fin, "K3_spin", "v6", 4, shift="s74", sleep=1)
    fin(f"""
    s_mov_b64 exec, -1
    K3_wait:
    s_barrier
    """)
    T(fin, 11)
    for sl in range(5):
        fin(f"s_add_u32 s6, s59, {sl*32768}")
        for jj in range(2):
            b = 16 + (sl * 2 + jj) * 4
            fin(f"buffer_load_dwordx4 v[{b}:{b+3}], v2, {SRD_WS}, s6 offen offset:{jj*1024} sc1")
    fin(f"s_mov_b32 s7, {f32hex(-LOG2E)}")
    for jj in range(2):
        for tb in range(2):
            src = lambda sl, i: f"v{16+(sl*2+jj)*4+tb*2+i}"
            sv = [f"v{60+r}" for r in range(4)]; yv = [f"v{64+r}" for r in range(4)]; tv = [f"v{68+r}" for r in range(4)]
            def unp(dst, sl):
                fin(f"v_lshlrev_b32 {dst[0]}, 16, {src(sl,0)}\nv_and_b32 {dst[1]}, 0xffff0000, {src(sl,0)}")
                fin(f"v_lshlrev_b32 {dst[2]}, 16, {src(sl,1)}\nv_and_b32 {dst[3]}, 0xffff0000, {src(sl,1)}")
            unp(sv, 0); unp(tv, 1)
            for r in range(4): fin(f"v_add_f32 {sv[r]}, {sv[r]}, {tv[r]}")
            unp(tv, 2)
            for r in range(4): fin(f"v_add_f32 {sv[r]}, {sv[r]}, {tv[r]}")
            unp(yv, 3); unp(tv, 4)
            for r in range(4): fin(f"v_add_f32 {yv[r]}, {yv[r]}, {tv[r]}")
            for r in range(4): fin(f"v_mul_f32 {tv[r]}, s7, {yv[r]}")
            for r in range(4): fin(f"v_exp_f32 {tv[r]}, {tv[r]}")
            for r in range(4): fin(f"v_add_f32 {tv[r]}, 1.0, {tv[r]}")
            for r in range(4): fin(f"v_rcp_f32 {tv[r]}, {tv[r]}")
            for r in range(4): fin(f"v_mul_f32 {yv[r]}, {yv[r]}, {tv[r]}")
            xb = 200 + (jj * 2 + tb) * 2
            fin(f"v_lshlrev_b32 {tv[0]}, 16, v{xb}\nv_and_b32 {tv[1]}, 0xffff0000, v{xb}\nv_lshlrev_b32 {tv[2]}, 16, v{xb+1}\nv_and_b32 {tv[3]}, 0xffff0000, v{xb+1}")
            for r in range(4): fin(f"v_fma_f32 {sv[r]}, {sv[r]}, {yv[r]}, {tv[r]}")
            ob = 72 + 2 * ((jj * 2 + tb) & 1)
            fin(f"v_cvt_pk_bf16_f32 v{ob}, {sv[0]}, {sv[1]}\nv_cvt_pk_bf16_f32 v{ob+1}, {sv[2]}, {sv[3]}")
            fin(f"buffer_store_dwordx2 v[{ob}:{ob+1}], v{3+tb}, s[12:15], s37 offen offset:{jj*32}")
    if opts.get("time"):
        fin("s_waitcnt vmcnt(0)")
        T(fin, 8)
        fin(f"""
        s_waitcnt lgkmcnt(0)
        s_lshl_b32 s6, s2, 2
        s_add_u32 s6, s6, s3
        s_lshl_b32 s6, s6, 6
        s_add_u32 s6, s6, {WS_TIME + 65536}
        v_mov_b32 v3, s6
        """)
        for k_, i in enumerate((0, 9, 10, 11, 8)):
            fin(f"v_mov_b32 v2, s{SB(i)}\nbuffer_store_dword v2, v3, {SRD_WS}, 0 offen offset:{4*k_}")
        for i in range(2):
            fin(f"v_mov_b32 v2, s{64+2*i}\nbuffer_store_dword v2, v3, {SRD_WS}, 0 offen offset:{32+4*i}")
    if opts.get("dbgtime"):
        fin(f"""
        s_cmp_lg_u32 s2, {opts.get("dbgwg", 0)}
        s_cbranch_scc1 KB_end
        s_cmp_lg_u32 s3, 0
        s_cbranch_scc1 KB_end
        s_waitcnt vmcnt(0)
        v_lshlrev_b32 v2, 2, v1
        v_add_u32 v2, {WS_TIME + opts.get("dbgwg", 0) * 256}, v2
        buffer_load_dword v3, v2, {SRD_WS}, 0 offen sc1
        s_waitcnt vmcnt(0)
        v_readfirstlane_b32 s6, v3
        s_nop 1
        v_subrev_u32 v3, s6, v3
        v_mov_b32 v4, s{SB(0)}
        v_subrev_u32 v4, s6, v4
        v_mov_b32 v5, s{SB(8)}
        v_subrev_u32 v5, s6, v5
        v_mov_b32 v6, s{SB(9)}
        v_subrev_u32 v6, s6, v6
        v_mov_b32 v7, s{SB(10)}
        v_subrev_u32 v7, s6, v7
        v_cmp_eq_u32 vcc, 8, v1
        s_nop 1
        v_cndmask_b32 v3, v3, v4, vcc
        v_cmp_eq_u32 vcc, 9, v1
        s_nop 1
        v_cndmask_b32 v3, v3, v6, vcc
        v_cmp_eq_u32 vcc, 10, v1
        s_nop 1
        v_cndmask_b32 v3, v3, v7, vcc
        v_cmp_eq_u32 vcc, 11, v1
        s_nop 1
        v_cndmask_b32 v3, v3, v5, vcc
        v_lshlrev_b32 v2, 2, v1
        v_add_u32 v2, 16, v2
        v_cmp_gt_u32 vcc, 12, v1
        s_and_saveexec_b64 s[6:7], vcc
        global_store_dword v2, v3, {SRD_DBG}
        """)
    fin("KB_end:\ns_endpgm")
    po2, st = lin(post.insts, None, [])
    b0, st = auto_wait_loop(body0, st); b0 = merge_adjacent_waits(b0)
    b1, st = auto_wait_loop(body1, st); b1 = merge_adjacent_waits(b1)
    f2, st = lin(fin.insts, st, b1[-40:])
    for nm, seq in (("l3", po2[-40:] + b0 + b0 + b1 + b1 + f2[:30]),):
        for p_ in check_hazards(seq): print("HAZARD", nm, p_, file=sys.stderr)
    return po2 + [Inst("K3_loop0:")] + b0 + mid + [Inst("K3_loop1:")] + b1 + f2

def gen(opts):
    hdr = f"""; @launch kernel=attn_kernel grid=(256,1,1) block=(256,1,1) lds=131328
; @launch kernel=oproj_kernel grid=(256,1,1) block=(256,1,1) lds=131072
.amdgcn_target "amdgcn-amd-amdhsa--gfx950"
.text
"""
    return hdr + kernel_text("attn_kernel", gen_ka(opts), 512, 256) + kernel_text("oproj_kernel", gen_kb(opts) + [Inst("TEXT_END:")], 384, 256)

if __name__ == "__main__":
    opts = {}
    for a in sys.argv[2:]:
        k, _, v = a.partition("=")
        opts[k] = int(v) if v else 1
    open(sys.argv[1], "w").write(gen(opts))
```

```python
import sys, math
sys.path.insert(0, "dev")
from asmdsl import *
from gen import (NAME, WS_XN, WS_ACT, WS_SLAB, WS_TIME, LOG2E, QSCALE, f32hex, kernel_text, finish, rbf16,
                 S, P, NEGM, Qb, Q, VKA, VVA, VOFFK, VOFFV, L, O, KF, VF, SRD_K, SRD_V, SRD_K0, SRD_WS, S_OFF, S_WB, S_CNT,
                 SRD_WQ, SRD_G, SRD_U, k_read, v_reads, dma_k, dma_v, emit_phase)
from gen2 import ln_rows
from phase2 import emit_phase2, LACCN, ONES_A, LREGS
import gen as _g

SRD_DBG = "s[72:73]"
SB = lambda i: 80 + (i % 11) * 2 if i < 11 else 60 + (i - 11) * 2
CY = {1: 64, 2: 66, 3: 68, 4: 70, 9: 64, 10: 66}
def stamp(pr, opts, idx):
    if opts.get("time"):
        b = SB(idx)
        pr(f"s_memrealtime s[{b}:{b+1}]")
        if idx in CY: pr(f"s_memtime s[{CY[idx]}:{CY[idx]+1}]")

def poll(pr, label, addr_v, thresh, shift=None, sleep=2, cache="sc1"):
    pr(f"""
    {label}:
    global_load_dword v5, {addr_v}, {SRD_DBG} {cache}
    s_waitcnt vmcnt(0)
    v_readfirstlane_b32 s75, v5
    """)
    if shift is not None:
        pr(f"s_lshr_b32 s75, s75, {shift}\ns_and_b32 s75, s75, 0xff")
    pr(f"""
    s_cmp_ge_u32 s75, {thresh}
    s_cbranch_scc1 {label}_ok
    s_sleep {sleep}
    s_branch {label}
    {label}_ok:
    """)

def lin(insts, st, prev):
    a, st = auto_wait_linear(insts, st)
    a = merge_adjacent_waits(a)
    n = len(prev)
    return check_hazards(prev + a, fix=True)[n:], st

def issue_groups(pr, groups):
    for d in groups:
        pr.extend(d[:-1])
        if len(d) > 1: pr("s_nop 0")
        pr.extend(d[-1:])

def QACC(cb, tb, r=None):
    b = 16 + (cb * 4 + tb) * 4
    return f"v[{b}:{b+3}]" if r is None else f"v{b+r}"
def GACC(cb, tb, r=None):
    b = (cb * 4 + tb) * 4
    return f"a[{b}:{b+3}]" if r is None else f"a{b+r}"
def UACC(cb, tb, r=None):
    b = 64 + (cb * 4 + tb) * 4
    return f"a[{b}:{b+3}]" if r is None else f"a{b+r}"
def AF(cb, u=None):
    b = 128 + cb * 4
    if u is None: return f"a[{b}:{b+3}]"
    return f"a[{b+2*u}:{b+2*u+1}]"
def BF(st, tb):
    b = 144 + st * 16 + tb * 4
    return f"v[{b}:{b+3}]"
VA_Q = lambda ds: f"v{230+ds}"
VA_G = lambda cb: f"v{234+cb}"
VO_X = "v238"; VO_WQ = lambda ii: f"v{239+ii}"; VO_G = "v241"
S_OX = "s50"; S_OWQ = "s51"; S_OGU = "s52"
S_MWQ = "s55"; S_MG = "s56"; S_MU = "s57"
GW = 65536

def a_reads(cb, stage):
    if cb < 8:
        ds, h = cb >> 1, cb & 1
        return [Inst(f"ds_read_b64_tr_b16 {AF(cb,u)}, {VA_Q(ds)} offset:{stage*16384 + 8*h + 1024*u}") for u in range(2)]
    mat, c2 = (cb - 8) >> 2, (cb - 8) & 3
    return [Inst(f"ds_read_b64_tr_b16 {AF(cb,u)}, {VA_G(c2)} offset:{stage*16384 + 8192 + 4096*mat + 512*u}") for u in range(2)]
def w_dma(stage):
    r = []
    r.append([Inst(f"s_add_u32 m0, {S_MWQ}, {stage*16384}"), Inst(f"buffer_load_dwordx4 {VO_WQ(0)}, {SRD_WQ}, {S_OWQ} offen lds")])
    r.append([Inst(f"buffer_load_dwordx4 {VO_WQ(1)}, {SRD_WQ}, {S_OWQ} offen offset:1024 lds")])
    r.append([Inst(f"s_add_u32 m0, {S_MG}, {stage*16384}"), Inst(f"buffer_load_dwordx4 {VO_G}, {SRD_G}, {S_OGU} offen lds")])
    r.append([Inst(f"s_add_u32 m0, {S_MU}, {stage*16384}"), Inst(f"buffer_load_dwordx4 {VO_G}, {SRD_U}, {S_OGU} offen lds")])
    adv = [Inst(f"s_add_u32 {S_OWQ}, {S_OWQ}, {32*8192}"), Inst(f"s_add_u32 {S_OGU}, {S_OGU}, {32*3584}")]
    return r, adv
def x_loads(st):
    r = [[Inst(f"buffer_load_dwordx4 {BF(st,tb)}, {VO_X}, {SRD_WS}, {S_OX} offen offset:{tb*1024} sc1")] for tb in range(4)]
    return r, [Inst(f"s_add_u32 {S_OX}, {S_OX}, 16384")]

def gemm_period(c, groups, adv, read_next=True, extra=(), nvm=8):
    st = c & 3
    NG = 64
    pre = [[] for _ in range(NG + 1)]; mem = [[] for _ in range(NG + 1)]; gaps = [[] for _ in range(NG + 1)]
    pre[0].append(Hint(*[BF(st, t) for t in range(4)]))
    if nvm is not None: pre[0].append(Inst(f"s_waitcnt vmcnt({nvm})"))
    pre[0].append(Inst("s_barrier"))
    if read_next:
        for cb in range(16):
            rd = a_reads(cb, (c + 1) & 3)
            if cb < 15:
                mem[4 * cb + 4].append(rd[0]); mem[4 * cb + 5].append(rd[1])
            else:
                mem[63].append(rd[0]); mem[63].append(rd[1])
    pos = [2, 6, 10, 14, 18, 22, 26, 30, 34, 38, 42, 46]
    for gp, d in zip(pos, groups):
        gaps[gp - 1] += d[:-1]
        mem[gp] += d[-1:]
    for i, a in enumerate(adv): gaps[48 + i].append(a)
    for gp, lst in extra:
        for ins in lst:
            (mem if ins.kind in ("vmem", "dma", "lds") else gaps)[gp].append(ins)
    out = []
    for cb in range(16):
        if cb % 4 == 0:
            pre[4 * cb].insert(0, Hint(*[AF(c_) for c_ in range(cb, cb + 4)]))
        for tb in range(4):
            k = 4 * cb + tb
            d = QACC(cb, tb) if cb < 8 else GACC(cb - 8, tb) if cb < 12 else UACC(cb - 12, tb)
            out += pre[k]
            out.append(Inst(f"v_mfma_f32_16x16x32_bf16 {d}, {AF(cb)}, {BF(st,tb)}, {d}"))
            out += mem[k]; out += gaps[k]
    return out

def act_lane_offset(pr, dst0, dst1=None):
    pr(f"""
    v_and_b32 v2, 15, v1
    v_lshrrev_b32 v3, 4, v1
    v_bfe_u32 v4, v1, 2, 1
    v_lshlrev_b32 v4, 1, v4
    v_bfe_u32 v5, v1, 3, 1
    v_mul_u32_u24 v5, 3, v5
    v_xor_b32 v4, v4, v5
    v_xor_b32 v4, v4, v3
    v_lshlrev_b32 v4, 4, v4
    v_lshl_add_u32 {dst0}, v2, 6, v4
    """)
    if dst1: pr(f"v_add_u32 {dst1}, 8192, {dst0}")


def code_touch(pr, start_label, end_label, idx_sgpr, nblk, vt=(250, 251, 252)):
    a, b, d = vt
    pr(f"""
    s_getpc_b64 s[78:79]
    CT_{start_label}:
    s_sub_u32 s78, s78, CT_{start_label}-{start_label}
    s_subb_u32 s79, s79, 0
    s_lshl_b32 s77, {idx_sgpr}, 13
    v_lshlrev_b32 v{a}, 7, v1
    v_add_u32 v{a}, s77, v{a}
    v_min_u32 v{a}, {end_label}-{start_label}-4, v{a}
    v_mov_b32 v{b}, s79
    v_add_co_u32 v{a}, vcc, s78, v{a}
    v_addc_co_u32 v{b}, vcc, 0, v{b}, vcc
    global_load_dword v{d}, v[{a}:{b}], off
    """)

def gen_ka(opts):
    global emit_phase
    NS = opts.get('nsum', 2) if opts.get('ph2', 1) else 0
    emit_phase = emit_phase2 if opts.get('ph2', 1) else _g.emit_phase
    opts = dict(opts); opts['nsum'] = NS
    T = lambda pr, idx: stamp(pr, opts, idx)
    pr = Prog()
    pr("s_cmp_ge_u32 s2, 256\ns_cbranch_scc1 KA_end")
    T(pr, 0)
    pr(f"""
    s_load_dwordx2 s[76:77], s[0:1], 0
    s_load_dwordx2 s[34:35], s[0:1], 88
    s_load_dwordx4 s[28:31], s[0:1], 8
    s_load_dwordx2 s[32:33], s[0:1], 24
    s_load_dwordx4 s[40:43], s[0:1], 48
    s_load_dwordx2 s[72:73], s[0:1], 80
    v_and_b32 v1, 63, v0
    v_lshrrev_b32 v2, 6, v0
    s_nop 0
    v_readfirstlane_b32 s3, v2
    s_and_b32 s4, s2, 7
    s_lshl_b32 s4, s4, 2
    s_lshr_b32 s5, s2, 3
    s_and_b32 s6, s5, 3
    s_add_u32 s4, s4, s6
    s_lshr_b32 s5, s2, 5
    s_lshl_b32 {S_WB}, s3, 12
    s_lshl_b32 s16, s5, 8
    s_lshl_b32 s17, s4, 3
    s_add_u32 s16, s16, s17
    s_lshl_b32 s17, s3, 1
    s_add_u32 s16, s16, s17
    s_lshl_b32 s17, s16, 10
    v_lshlrev_b32 v2, 4, v1
    s_waitcnt lgkmcnt(0)
    s_mov_b32 s8, s76
    s_and_b32 s9, s77, 0xffff
    s_mov_b32 s10, {2048*1024}
    s_mov_b32 s11, 0x20000
    buffer_load_dwordx4 v[4:7], v2, s[8:11], s17 offen
    buffer_load_dwordx4 v[8:11], v2, s[8:11], s17 offen offset:1024
    s_mov_b32 s20, s34
    s_and_b32 s21, s35, 0xffff
    s_mov_b32 s22, 0x10000000
    s_mov_b32 s23, 0x20000
    s_mov_b32 s36, s32
    s_and_b32 s37, s33, 0xffff
    s_mov_b32 s38, {0 if opts.get("kanow") else 512*8192}
    s_mov_b32 s39, 0x20000
    s_mov_b32 s44, s42
    s_and_b32 s45, s43, 0xffff
    s_and_b32 s41, s41, 0xffff
    s_cmp_lt_u32 s4, 28
    s_cselect_b32 s42, {0 if opts.get("kanow") else 512*3584}, 0
    s_mov_b32 s46, s42
    s_mov_b32 s43, 0x20000
    s_mov_b32 s47, 0x20000
    s_lshl_b32 {S_OX}, s5, 18
    s_add_u32 {S_OX}, {S_OX}, {WS_XN}
    s_add_u32 {S_OX}, {S_OX}, {S_WB}
    {"s_mov_b32 s50, 0xf0000000" if opts.get("kanox") else ""}
    s_lshl_b32 {S_OWQ}, s4, 8
    s_lshl_b32 {S_OGU}, s4, 7
    s_lshl_b32 s6, s3, 11
    s_add_u32 {S_MWQ}, s6, {GW}
    s_lshl_b32 s6, s3, 10
    s_add_u32 {S_MG}, s6, {GW + 8192}
    s_add_u32 {S_MU}, s6, {GW + 12288}
    v_lshrrev_b32 v12, 4, v1
    v_and_b32 v13, 15, v1
    v_lshlrev_b32 v14, 2, v12
    v_xor_b32 v14, v14, v13
    v_lshlrev_b32 v14, 4, v14
    s_lshl_b32 s6, s3, 3
    v_add_u32 v15, s6, v12
    v_lshlrev_b32 v15, 13, v15
    v_add_u32 {VO_WQ(0)}, v15, v14
    v_add_u32 {VO_WQ(1)}, {4*8192-1024}, {VO_WQ(0)}
    v_lshrrev_b32 v12, 3, v1
    v_and_b32 v13, 7, v1
    v_bfe_u32 v14, v1, 4, 1
    s_and_b32 s7, s3, 1
    s_lshl_b32 s7, s7, 1
    v_or_b32 v14, s7, v14
    v_lshlrev_b32 v14, 1, v14
    v_xor_b32 v14, v14, v13
    v_add_u32 v15, s6, v12
    s_movk_i32 s7, 3584
    v_mul_lo_u32 v15, v15, s7
    v_lshl_add_u32 {VO_G}, v14, 4, v15
    """)
    for c in range(3):
        gr, adv = w_dma(c)
        issue_groups(pr, gr); pr.extend(adv)
    if opts.get("wearly", 0):
        pr(f"""
        s_cmp_lt_u32 s3, 2
        s_cbranch_scc0 K_we_gu
        s_mov_b32 s64, s36
        s_mov_b32 s65, s37
        s_mov_b32 s66, s38
        v_lshrrev_b32 v12, 1, v1
        s_and_b32 s6, s3, 1
        s_lshl_b32 s6, s6, 5
        s_lshl_b32 s7, s5, 6
        s_add_u32 s6, s6, s7
        v_add_u32 v12, s6, v12
        v_lshlrev_b32 v12, 13, v12
        v_and_b32 v13, 1, v1
        v_lshl_add_u32 v12, v13, 7, v12
        s_lshl_b32 s6, s4, 8
        s_branch K_we_go
        K_we_gu:
        s_cmp_eq_u32 s3, 2
        s_cselect_b32 s64, s40, s44
        s_cselect_b32 s65, s41, s45
        s_mov_b32 s66, s42
        s_lshl_b32 s7, s5, 6
        v_add_u32 v12, s7, v1
        s_movk_i32 s7, 3584
        v_mul_lo_u32 v12, v12, s7
        s_lshl_b32 s6, s4, 7
        K_we_go:
        s_mov_b32 s67, 0x20000
        buffer_load_dword v249, v12, s[64:67], s6 offen
        """)
    if opts.get("ctouch", 0):
        pr("""
        s_lshr_b32 s6, s2, 3
        s_lshl_b32 s6, s6, 2
        s_add_u32 s6, s6, s3
        s_mul_i32 s7, s6, 43
        s_lshr_b32 s7, s7, 8
        s_mul_i32 s7, s7, 6
        s_sub_u32 s6, s6, s7
        """)
        code_touch(pr, "attn_kernel", "TEXT_END", "s6", 6)
    pr(f"""
    v_bfe_u32 v3, v1, 2, 3
    v_lshlrev_b32 v3, 14, v3
    v_lshrrev_b32 v12, 5, v1
    v_lshl_add_u32 v3, v12, 6, v3
    v_and_b32 v12, 3, v1
    s_lshr_b32 s18, s16, 8
    s_lshl_b32 s18, s18, 18
    s_and_b32 s19, s16, 255
    s_lshl_b32 s6, s19, 6
    s_add_u32 s18, s18, s6
    s_add_u32 s18, s18, {WS_XN}
    s_lshr_b32 s6, s19, 2
    s_and_b32 s6, s6, 3
    s_and_b32 s7, s6, 1
    s_lshl_b32 s7, s7, 1
    s_lshr_b32 s6, s6, 1
    s_mul_i32 s6, s6, 3
    s_xor_b32 s7, s7, s6
    v_xor_b32 v12, s7, v12
    v_lshl_add_u32 v3, v12, 4, v3
    """)
    ln_rows(pr, opts)
    pr(f"""
    s_lshl_b32 s6, s4, 19
    s_add_u32 s16, s28, s6
    s_addc_u32 s17, s29, 0
    s_and_b32 s17, s17, 0xffff
    s_mov_b32 s18, 524288
    s_mov_b32 s19, 0x20000
    s_add_u32 s8, s16, 16384
    s_addc_u32 s9, s17, 0
    s_mov_b32 s10, {524288-16384}
    s_mov_b32 s11, 0x20000
    s_add_u32 s12, s30, s6
    s_addc_u32 s13, s31, 0
    s_and_b32 s13, s13, 0xffff
    s_mov_b32 s14, 524288
    s_mov_b32 s15, 0x20000
    """)
    pr("s_waitcnt vmcnt(0)\ns_barrier")
    T(pr, 6)
    pr(f"""
    s_and_b32 s6, s5, 3
    s_lshl_b32 s6, s6, 6
    s_lshr_b32 s7, s5, 2
    s_lshl_b32 s7, s7, 2
    s_add_u32 s74, s6, s7
    s_cmp_lg_u32 s3, 0
    s_cbranch_scc1 K_xn_skip
    v_mov_b32 v2, s74
    v_mov_b32 v4, 1
    s_mov_b64 exec, 1
    global_atomic_add v2, v4, {SRD_DBG} sc1
    s_mov_b64 exec, -1
    K_xn_skip:
    """)
    pr(f"""
    v_bfe_u32 v2, v1, 2, 2
    v_and_b32 v3, 3, v1
    v_lshrrev_b32 v4, 4, v1
    v_lshl_add_u32 v5, v4, 3, v2
    v_lshlrev_b32 v6, 8, v5
    v_add_u32 v6, {GW}, v6
    v_lshlrev_b32 v7, 2, v2
    """)
    for ds in range(4):
        pr(f"""
        v_add_u32 v8, {4*ds}, v3
        v_xor_b32 v8, v8, v7
        v_lshl_add_u32 {VA_Q(ds)}, v8, 4, v6
        """)
    pr(f"""
    v_lshlrev_b32 v6, 7, v5
    v_add_u32 v6, {GW}, v6
    v_and_b32 v7, 1, v3
    v_lshl_add_u32 v6, v7, 3, v6
    v_bfe_u32 v7, v1, 3, 1
    v_and_b32 v8, 1, v4
    v_lshl_or_b32 v7, v8, 1, v7
    v_lshlrev_b32 v7, 1, v7
    v_lshrrev_b32 v9, 1, v3
    """)
    for cb in range(4):
        pr(f"""
        v_add_u32 v8, {2*cb}, v9
        v_xor_b32 v8, v8, v7
        v_lshl_add_u32 {VA_G(cb)}, v8, 4, v6
        """)
    act_lane_offset(pr, VO_X)
    pr(f"""
    v_lshrrev_b32 v2, 4, v1
    v_and_b32 v3, 15, v1
    v_lshlrev_b32 v4, 8, v2
    v_add_u32 v4, {S_WB}, v4
    """)
    for ii in range(4):
        pr(f"""
        v_add_u32 v5, {4*ii}, v2
        v_xor_b32 v5, v5, v3
        v_lshl_add_u32 {VOFFK(ii)}, v5, 4, v4
        """)
    for par in range(2):
        pr(f"""
        v_add_u32 v5, {4*par}, v2
        v_lshlrev_b32 v5, 1, v5
        v_xor_b32 v5, v5, v3
        v_lshl_add_u32 {VOFFV(par)}, v5, 4, v4
        """)
    pr(f"""
    v_and_b32 v2, 15, v1
    v_lshrrev_b32 v3, 4, v1
    v_lshlrev_b32 v5, 8, v2
    """)
    for ds in range(4):
        pr(f"""
        v_add_u32 v6, {4*ds}, v3
        v_xor_b32 v6, v6, v2
        v_lshl_add_u32 {VKA(ds)}, v6, 4, v5
        """)
    pr(f"""
    v_bfe_u32 v2, v1, 2, 2
    v_and_b32 v3, 3, v1
    v_lshrrev_b32 v4, 4, v1
    v_lshl_add_u32 v6, v4, 2, v2
    v_and_b32 v8, 7, v6
    v_lshlrev_b32 v8, 1, v8
    v_lshlrev_b32 v6, 8, v6
    v_add_u32 v6, 65536, v6
    v_and_b32 v7, 1, v3
    v_lshl_add_u32 v6, v7, 3, v6
    v_lshrrev_b32 v7, 1, v3
    """)
    for db in range(8):
        pr(f"""
        v_add_u32 v9, {2*db}, v7
        v_xor_b32 v9, v9, v8
        v_lshl_add_u32 {VVA(db)}, v9, 4, v6
        """)
    for i in range(128): pr(f"v_mov_b32 v{16+i}, 0")
    for i in range(128): pr(f"v_accvgpr_write_b32 a{i}, 0")
    for cb in range(16): pr.extend(a_reads(cb, 0))
    pr(f"""
    s_cmp_lg_u32 s3, 0
    s_cbranch_scc1 K_xn_wait
    v_mov_b32 v2, s74
    s_mov_b64 exec, 1
    """)
    poll(pr, "K_xn_poll", "v2", 32)
    pr(f"""
    s_mov_b64 exec, -1
    K_xn_wait:
    s_barrier
    """)
    T(pr, 7)
    for c in range(3):
        gr, adv = x_loads(c)
        issue_groups(pr, gr); pr.extend(adv)
    T(pr, 1)
    pr(f"s_mov_b32 {S_CNT}, 3")
    seg_a = pr.insts
    def full(c):
        xg, xa = x_loads((c + 3) & 3); wg_, wa = w_dma((c + 3) & 3)
        return gemm_period(c, xg + wg_, xa + wa)
    body = []
    for c in range(4): body += full(c)
    body += [Inst(f"s_sub_u32 {S_CNT}, {S_CNT}, 1"), Inst(f"s_cmp_lg_u32 {S_CNT}, 0"), Inst("s_cbranch_scc1 K_gloop")]
    def mk_touch():
        tp = Prog()
        tp(f"""
        s_load_dwordx2 s[40:41], s[0:1], 32
        s_load_dwordx2 s[42:43], s[0:1], 64
        s_and_b32 s51, s2, 3
        s_bfe_u32 s58, s2, 0x30003
        s_lshl_b32 s58, s58, 2
        s_lshr_b32 s59, s2, 6
        s_add_u32 s58, s58, s59
        s_lshl_b32 s58, s58, 2
        s_add_u32 s58, s58, s3
        s_lshl_b32 s58, s58, 4
        s_mul_i32 s59, s51, {24*64}
        s_add_u32 s59, s59, s58
        v_lshlrev_b32 v242, 7, v1
        v_add_u32 v243, 8192, v242
        """)
        tp2 = Prog()
        tp2(f"""
        s_waitcnt lgkmcnt(0)
        s_and_b32 s41, s41, 0xffff
        s_sub_u32 s42, s42, {64*65536}
        s_subb_u32 s43, s43, 0
        s_and_b32 s43, s43, 0xffff
        s_cmp_lt_u32 s59, 4096
        s_cselect_b32 s44, s40, s42
        s_cselect_b32 s45, s41, s43
        s_mov_b32 s46, {92*65536}
        s_cselect_b32 s46, {64*65536}, s46
        s_mov_b32 s47, 0x20000
        s_lshl_b32 s59, s59, 10
        s_cmp_lt_u32 s58, {24*64}
        s_cselect_b32 s59, s59, 0xf0000000
        """)
        tp3 = [Inst("buffer_load_dword v240, v242, s[44:47], s59 offen"), Inst("buffer_load_dword v241, v243, s[44:47], s59 offen")]
        return tp.insts, tp2.insts, tp3
    p2 = Prog()
    p2.extend(full(12))
    p2(f"s_mov_b32 s6, 0\ns_mov_b32 s7, 16384")
    p2.extend(gemm_period(13, dma_k(3, SRD_K0, "0") + dma_v(0, "s6"), []))
    p2.extend(gemm_period(14, dma_k(0, SRD_K, "s6") + dma_v(1, "s7"), []))
    p2.extend(gemm_period(15, dma_k(1, SRD_K, "s7"), [], read_next=False, nvm=None))
    T(p2, 2)
    p2(f"s_mov_b32 s6, {f32hex(QSCALE)}\ns_mov_b32 s7, {f32hex(QSCALE)}\ns_nop 7")
    for tb in range(4):
        for ds in range(4):
            for h in range(2):
                b = 16 + ((2 * ds + h) * 4 + tb) * 4
                p2(f"v_pk_mul_f32 v[{b}:{b+1}], v[{b}:{b+1}], s[6:7]\nv_pk_mul_f32 v[{b+2}:{b+3}], v[{b+2}:{b+3}], s[6:7]")
            for h in range(2):
                cb = 2 * ds + h
                for i in range(2):
                    p2(f"v_cvt_pk_bf16_f32 v{Qb(tb,ds)+2*h+i}, {QACC(cb,tb,2*i)}, {QACC(cb,tb,2*i+1)}")
    p2("s_cmp_ge_u32 s4, 28\ns_cbranch_scc1 K_noh")
    p2(f"""
    s_lshl_b32 s6, s5, 1
    s_lshr_b32 s7, s3, 1
    s_add_u32 s6, s6, s7
    s_mul_i32 s6, s6, {92*16384 + opts.get("actpad", 4096)}
    s_add_u32 s7, s4, 64
    s_lshl_b32 s7, s7, 14
    s_add_u32 s6, s6, s7
    s_and_b32 s7, s3, 1
    s_lshl_b32 s7, s7, 12
    s_add_u32 s6, s6, s7
    s_add_u32 s6, s6, {WS_ACT}
    """)
    act_lane_offset(p2, "v2", "v3")
    p2(f"""
    s_mov_b32 s26, {f32hex(-LOG2E)}
    s_mov_b32 s27, {f32hex(-LOG2E)}
    s_mov_b32 s78, 1.0
    s_mov_b32 s79, 1.0
    """)
    for tb in range(4):
        for e in range(2):
            t0 = 16 + e * 32
            for hh in range(2):
                cb = 2 * e + hh
                for r in range(4):
                    j = hh * 4 + r
                    p2(f"v_accvgpr_read_b32 v{t0+j}, {GACC(cb,tb,r)}")
                    p2(f"v_accvgpr_read_b32 v{t0+8+j}, {UACC(cb,tb,r)}")
            pk = lambda op, d, a, b: p2(f"{op} v[{d}:{d+1}], v[{a}:{a+1}], {b}")
            for j in range(0, 8, 2): pk("v_pk_mul_f32", t0 + 16 + j, t0 + j, "s[26:27]")
            for j in range(8): p2(f"v_exp_f32 v{t0+16+j}, v{t0+16+j}")
            for j in range(0, 8, 2): pk("v_pk_mul_f32", t0 + j, t0 + j, f"v[{t0+8+j}:{t0+9+j}]")
            for j in range(0, 8, 2): pk("v_pk_add_f32", t0 + 16 + j, t0 + 16 + j, "s[78:79]")
            for j in range(8): p2(f"v_rcp_f32 v{t0+16+j}, v{t0+16+j}")
            for j in range(0, 8, 2): pk("v_pk_mul_f32", t0 + j, t0 + j, f"v[{t0+16+j}:{t0+17+j}]")
            for i in range(4): p2(f"v_cvt_pk_bf16_f32 v{t0+24+i}, v{t0+2*i}, v{t0+2*i+1}")
            p2(f"buffer_store_dwordx4 v[{t0+24}:{t0+27}], v{2+e}, {SRD_WS}, s6 offen offset:{tb*1024}")
    p2("K_noh:")
    p2("s_mov_b32 s27, 0")
    p3 = Prog()
    p3("K_astart:")
    for i in range(128): p3(f"v_accvgpr_write_b32 a{i}, 0")
    for qb in range(4): p3(f"v_mov_b32 {L(qb)}, 0")
    for i in range(4): p3(f"v_mov_b32 v{128+i}, 0x3f803f80")
    for j in range(NS):
        for i in range(4): p3(f"v_mov_b32 v{LREGS[j]+i}, 0")
    p3(f"s_mov_b32 {S_OFF}, 32768")
    if opts.get("kvtouch"):
        D = opts.get("kvdist", 2) * 16384
        p3(f"""
        s_cmp_lt_u32 s3, 2
        s_cselect_b32 s56, s8, s12
        s_cselect_b32 s57, s9, s13
        s_cselect_b32 s58, s10, s14
        s_add_u32 s56, s56, {D}
        s_addc_u32 s57, s57, 0
        s_sub_u32 s58, s58, {D}
        s_mov_b32 s59, 0x20000
        s_lshl_b32 s6, s5, 11
        s_and_b32 s7, s3, 1
        s_lshl_b32 s7, s7, 10
        s_add_u32 s6, s6, s7
        v_lshlrev_b32 v243, 4, v1
        v_add_u32 v243, s6, v243
        """)
    p3("s_waitcnt vmcnt(0) lgkmcnt(0)\ns_barrier")
    T(p3, 3)
    for f in range(4): p3.add(k_read(0, f))
    ph, carry = emit_phase(-1, opts, [])
    p3.extend(ph)
    p3("s_cmp_lg_u32 s27, 0\ns_cbranch_scc1 K_havemax")
    p3("s_nop 7")
    for qb in range(4):
        m = f"v{244+qb}"
        p3(f"v_max3_f32 {m}, {S(0,0,qb,0)}, {S(0,0,qb,1)}, {S(0,0,qb,2)}")
        p3(f"v_max3_f32 {m}, {m}, {S(0,0,qb,3)}, {S(0,1,qb,0)}")
        p3(f"v_max3_f32 {m}, {m}, {S(0,1,qb,1)}, {S(0,1,qb,2)}")
        p3(f"v_max_f32 {m}, {m}, {S(0,1,qb,3)}")
        p3(f"v_mov_b32 v248, {m}")
        p3(f"v_permlane32_swap_b32 v248, {m}")
        p3(f"v_max_f32 {m}, {m}, v248")
        p3(f"v_mov_b32 v248, {m}")
        p3(f"v_permlane16_swap_b32 v248, {m}")
        p3(f"v_max_f32 {m}, {m}, v248")
    p3("K_havemax:")
    p3("s_nop 7")
    for qb in range(4):
        m = f"v{244+qb}"
        for r in range(4): p3(f"v_sub_f32 {NEGM(qb,r)}, 0, {m}")
        for kb in range(2):
            for r in range(4): p3(f"v_sub_f32 {S(0,kb,qb,r)}, {S(0,kb,qb,r)}, {m}")
    p2 = (p2, p3); p2a, p2 = p2
    ph, carry = emit_phase(0, opts, carry)
    p2.extend(ph)
    p2(f"s_mov_b32 {S_CNT}, 7")
    abody = []
    c2 = carry
    for p in range(1, 9):
        ph, c2 = emit_phase(p, opts, c2)
        abody += ph
    abody += [Inst(f"s_sub_u32 {S_CNT}, {S_CNT}, 1"), Inst(f"s_cmp_lg_u32 {S_CNT}, 0"), Inst("s_cbranch_scc1 K_aloop")]
    if opts.get("wtouch", 1):
        opts = dict(opts)
        ta, tb_, tc = mk_touch()
        opts["extra"] = {58: [(3, ta)], 59: [(41, tb_), (50, tc[:1]), (54, tc[1:])]}
        opts["vmadj"] = {30: 2, 31: 2}
        if opts.get("kbcode", 0):
            cp = Prog()
            cp("""
            s_getpc_b64 s[78:79]
            CT_kb:
            s_add_u32 s78, s78, oproj_kernel-CT_kb
            s_addc_u32 s79, s79, 0
            s_and_b32 s77, s3, 1
            s_lshl_b32 s77, s77, 13
            v_lshlrev_b32 v236, 7, v1
            v_add_u32 v236, s77, v236
            v_min_u32 v236, TEXT_END-oproj_kernel-4, v236
            v_mov_b32 v237, s79
            v_add_co_u32 v236, vcc, s78, v236
            v_addc_co_u32 v237, vcc, 0, v237, vcc
            """)
            opts["extra"][58].append((40, cp.insts))
            opts["extra"][59].append((58, [Inst("global_load_dword v238, v[236:237], off")]))
            opts["vmadj"] = {30: 3, 31: 3}
    tail = []
    c3 = c2
    for p in range(57, 65):
        ph, c3 = emit_phase(p, opts, c3)
        tail += ph
    tail += [c[1] if isinstance(c, tuple) else c for c in c3]
    post = Prog()
    T(post, 4)
    for qb in range(4):
        if qb >= 4 - NS:
            post(f"v_mov_b32 {L(qb)}, v{LREGS[qb - (4 - NS)]}")
            continue
        post(f"""
        v_mov_b32 v248, {L(qb)}
        v_permlane32_swap_b32 v248, {L(qb)}
        v_add_f32 {L(qb)}, {L(qb)}, v248
        v_mov_b32 v248, {L(qb)}
        v_permlane16_swap_b32 v248, {L(qb)}
        v_add_f32 {L(qb)}, {L(qb)}, v248
        """)
    post(f"""
    v_max3_f32 v248, {L(0)}, {L(1)}, {L(2)}
    v_max_f32 v248, v248, {L(3)}
    v_add_f32 v249, {L(0)}, {L(1)}
    v_add_f32 v250, {L(2)}, {L(3)}
    v_add_f32 v249, v249, v250
    s_mov_b32 s6, {f32hex(float(2**24))}
    v_cmp_nlt_f32 vcc, v248, s6
    v_cmp_u_f32 s[6:7], v249, v249
    s_or_b64 vcc, vcc, s[6:7]
    s_cmp_lg_u64 vcc, 0
    s_cselect_b32 s6, 1, 0
    v_mov_b32 v248, s6
    v_mov_b32 v249, 131072
    v_lshl_add_u32 v250, s3, 2, v249
    ds_write_b32 v250, v248
    s_waitcnt lgkmcnt(0)
    s_barrier
    ds_read_b128 v[248:251], v249
    s_waitcnt lgkmcnt(0)
    v_or3_b32 v248, v248, v249, v250
    v_or_b32 v248, v248, v251
    s_nop 0
    v_readfirstlane_b32 s6, v248
    s_xor_b32 s7, s27, 1
    s_and_b32 s6, s6, s7
    s_cmp_lg_u32 s6, 0
    s_cbranch_scc1 K_fallback
    """)
    for qb in range(4): post(f"v_rcp_f32 {L(qb)}, {L(qb)}")
    post(f"""
    s_lshl_b32 s6, s5, 1
    s_lshr_b32 s7, s3, 1
    s_add_u32 s6, s6, s7
    s_mul_i32 s6, s6, {92*16384 + opts.get("actpad", 4096)}
    s_lshl_b32 s7, s4, 15
    s_add_u32 s6, s6, s7
    s_and_b32 s7, s3, 1
    s_lshl_b32 s7, s7, 12
    s_add_u32 s6, s6, s7
    s_add_u32 s52, s6, {WS_ACT}
    s_add_u32 s53, s52, 16384
    """)
    act_lane_offset(post, "v2", "v3")
    for qb in range(4):
        lp = 226 + (qb & ~1)
        osel = "op_sel:[0,0] op_sel_hi:[1,0]" if qb % 2 == 0 else "op_sel:[0,1] op_sel_hi:[1,1]"
        for e in range(4):
            t0 = 16 + (e & 1) * 16
            for hh in range(2):
                for r in range(4):
                    post(f"v_accvgpr_read_b32 v{t0+hh*4+r}, {O(2*e+hh,qb,r)}")
            for j in range(0, 8, 2): post(f"v_pk_mul_f32 v[{t0+j}:{t0+j+1}], v[{t0+j}:{t0+j+1}], v[{lp}:{lp+1}] {osel}")
            for i in range(4): post(f"v_cvt_pk_bf16_f32 v{t0+8+i}, v{t0+2*i}, v{t0+2*i+1}")
            post(f"buffer_store_dwordx4 v[{t0+8}:{t0+11}], v{2+(e&1)}, {SRD_WS}, s{52+(e>>1)} offen offset:{qb*1024}")
    if opts.get("time"):
        post("s_waitcnt vmcnt(0)")
        T(post, 5)
        post(f"""
        s_waitcnt lgkmcnt(0)
        s_lshl_b32 s6, s2, 2
        s_add_u32 s6, s6, s3
        s_lshl_b32 s6, s6, 6
        s_add_u32 s6, s6, {WS_TIME}
        v_mov_b32 v3, s6
        """)
        for i in range(8):
            post(f"v_mov_b32 v2, s{SB(i)}\nbuffer_store_dword v2, v3, {SRD_WS}, 0 offen offset:{4*i}")
        for i in range(4):
            post(f"v_mov_b32 v2, s{64+2*i}\nbuffer_store_dword v2, v3, {SRD_WS}, 0 offen offset:{32+4*i}")
    post("KA_end:\ns_endpgm")
    fb = Prog()
    fb(f"""
    K_fallback:
    s_waitcnt vmcnt(0) lgkmcnt(0)
    s_barrier
    s_mov_b32 s27, 1
    v_and_b32 v2, 15, v1
    v_lshrrev_b32 v3, 4, v1
    v_lshlrev_b32 v2, 8, v2
    v_lshl_add_u32 v2, v3, 4, v2
    s_mov_b32 s6, 0
    """)
    for qb in range(4): fb(f"v_mov_b32 v{244+qb}, 0xff800000")
    fb("K_fb_loop:")
    for ds in range(4):
        fb(f"buffer_load_dwordx4 v[{16+4*ds}:{19+4*ds}], v2, {SRD_K0}, s6 offen offset:{64*ds}")
    fb("s_waitcnt vmcnt(0)")
    for qb in range(4):
        for ds in range(4):
            c = "0" if ds == 0 else f"v[{32+4*qb}:{35+4*qb}]"
            fb(f"v_mfma_f32_16x16x32_bf16 v[{32+4*qb}:{35+4*qb}], v[{16+4*ds}:{19+4*ds}], {Q(qb,ds)}, {c}")
    fb("s_nop 15")
    for qb in range(4):
        b = 32 + 4 * qb
        fb(f"v_max3_f32 v{244+qb}, v{244+qb}, v{b}, v{b+1}")
        fb(f"v_max3_f32 v{244+qb}, v{244+qb}, v{b+2}, v{b+3}")
    fb(f"""
    s_add_u32 s6, s6, 4096
    s_cmp_lt_u32 s6, 524288
    s_cbranch_scc1 K_fb_loop
    """)
    for qb in range(4):
        m = f"v{244+qb}"
        fb(f"""
        v_mov_b32 v248, {m}
        s_nop 1
        v_permlane32_swap_b32 v248, {m}
        v_max_f32 {m}, {m}, v248
        v_mov_b32 v248, {m}
        s_nop 1
        v_permlane16_swap_b32 v248, {m}
        v_max_f32 {m}, {m}, v248
        """)
    fb("s_mov_b32 s6, 0\ns_mov_b32 s7, 16384")
    issue_groups(fb, dma_k(3, SRD_K0, "0") + dma_v(0, "s6") + dma_k(0, SRD_K, "s6") + dma_v(1, "s7") + dma_k(1, SRD_K, "s7"))
    fb("s_branch K_astart")
    fb2 = check_hazards([Inst("s_nop 15")] + fb.insts, fix=True)[1:]
    a2, st = lin(seg_a, None, [])
    b2, st = auto_wait_loop(body, st); b2 = merge_adjacent_waits(b2)
    q1, st = lin(p2a.insts, st, b2[-40:])
    q2, st = lin(p2.insts, WaitState(), q1[-40:])
    q2 = q1 + q2
    ab2, st = auto_wait_loop(abody, st); ab2 = merge_adjacent_waits(ab2)
    t2, st = lin(tail, st, ab2[-40:])
    po2, st = lin(post.insts, st, t2[-40:])
    for nm, seq in (("gloop", a2[-60:] + b2 + b2 + q2[:80]), ("aloop", q2[-60:] + ab2 + ab2 + t2 + po2[:40])):
        for p_ in check_hazards(seq): print("HAZARD", nm, p_, file=sys.stderr)
    return a2 + [Inst("K_gloop:")] + b2 + q2 + [Inst("K_aloop:")] + ab2 + t2 + po2 + fb2

def gen_kb(opts):
    T = lambda pr, idx: stamp(pr, opts, idx)
    NCH = 24
    ACC = lambda st_, cb, tb, r=None: (f"v[{16+st_*64+(cb*2+tb)*4}:{16+st_*64+(cb*2+tb)*4+3}]" if r is None else f"v{16+st_*64+(cb*2+tb)*4+r}")
    def AF3(s, cb, u=None):
        b = (s * 8 + cb) * 4
        return f"a[{b}:{b+3}]" if u is None else f"a[{b+2*u}:{b+2*u+1}]"
    G2 = opts.get('kbG', 0)
    R = 8 if G2 else opts.get('kbR', 4); D = R - 1
    RB = (opts.get('kbRB', 4) if G2 else R); DB = (RB - 1 if G2 else D); DW = 5 if G2 else D
    def BF3(st, s, tb):
        b = 64 + st * 16 + (s * 2 + tb) * 4
        return f"a[{b}:{b+3}]"
    VA = lambda cb, hi=0: f"v{208+hi*8+cb}"
    VOW = lambda ii: f"v{224+ii}"; VOA = lambda s: f"v{228+s}"
    SRD_W = "s[8:11]"; SRD_A = "s[12:15]"
    S_GP = "s19"; S_OA = "s24"; S_OW = "s26"; S_MW = "s25"
    PART = "s48"; TM = "s49"; TN = "s50"
    def a_rd(s, cb, stage):
        return [Inst(f"ds_read_b64_tr_b16 {AF3(s,cb,u)}, {VA(cb, stage >> 2)} offset:{(stage & 3)*16384 + (32*s+16*u)*256}") for u in range(2)]
    def sel_w():
        return [Inst(f"s_cmp_lt_u32 {S_GP}, 64"), Inst("s_cselect_b32 s8, s40, s42"), Inst("s_cselect_b32 s9, s41, s43"), Inst(f"s_add_u32 {S_GP}, {S_GP}, {R}")]
    def dma_w(stage):
        r = [[Inst(f"s_add_u32 m0, {S_MW}, {stage*16384}"), Inst(f"buffer_load_dwordx4 {VOW(0)}, {SRD_W}, {S_OW} offen lds")]]
        for ii in range(1, 4):
            r.append([Inst(f"buffer_load_dwordx4 {VOW(ii)}, {SRD_W}, {S_OW} offen offset:{ii*1024} lds")])
        return r, [Inst(f"s_add_u32 {S_OW}, {S_OW}, 65536")]
    def ld_a(st):
        so = S_OA
        if opts.get("kbuniq"):
            so = f"s{60 + (st & 3)}"
        r = [[Inst(f"buffer_load_dwordx4 {BF3(st,s,tb)}, {VOA(s)}, {SRD_A}, {so} offen offset:{tb*1024}")] for s in range(2) for tb in range(2)]
        adv = [Inst(f"s_add_u32 {S_OA}, {S_OA}, 16384")]
        if opts.get("kbuniq"):
            adv = [Inst(f"s_add_u32 s{60+i}, s{60+i}, 16384") for i in range(4)]
        return r, adv
    def period(c, accset):
        st = c % RB
        NG = 32
        pre = [[] for _ in range(NG + 1)]; mem = [[] for _ in range(NG + 1)]; gaps = [[] for _ in range(NG + 1)]
        pre[0] += [Hint(*[BF3(st, s, t) for s in range(2) for t in range(2)])]
        if not G2: pre[0] += [Inst(f"s_waitcnt vmcnt({8*(D-2)})"), Inst("s_barrier")]
        elif c % 2 == 0: pre[0] += [Inst("s_waitcnt vmcnt(16)"), Inst("s_barrier")]
        ag, aadv = ld_a((c + DB) % RB)
        wg_, wadv = dma_w((c + DW) % R)
        for s in range(2):
            for cb in range(8):
                k = 2 * (s * 8 + cb) + 2
                rd = a_rd(s, cb, (c + 1) % R)
                if k < 31: mem[k].append(rd[0]); mem[k + 1].append(rd[1])
                else: mem[31].append(rd[0]); mem[31].append(rd[1])
        mem[0] += ag[0]; mem[1] += ag[1]
        if (c + DW) % R == 0: gaps[0] += sel_w()[:1]; gaps[1] += sel_w()[1:2]; gaps[2] += sel_w()[2:3]; gaps[3] += sel_w()[3:]
        mem[5] += ag[2]; mem[8] += ag[3]; gaps[9] += aadv
        gaps[11] += wg_[0][:-1]
        for gp, d in zip([12, 16, 20, 24], wg_): mem[gp] += d[-1:]
        gaps[26] += wadv
        out = []
        for s in range(2):
            for cb in range(8):
                if cb == 0 or (s == 0 and cb == 4): pre[2 * (s * 8 + cb)].insert(0, Hint(*[AF3(s, c_) for c_ in range(cb, 8 if s else cb + 4)] + ([AF3(0, c_) for c_ in range(4, 8)] if False else [])))
                for tb in range(2):
                    k = 2 * (s * 8 + cb) + tb
                    d = ACC(accset, cb, tb)
                    out += pre[k]
                    out.append(Inst(f"v_mfma_f32_16x16x32_bf16 {d}, {AF3(s,cb)}, {BF3(st,s,tb)}, {d}"))
                    out += mem[k]; out += gaps[k]
        return out
    post = Prog()
    post("s_cmp_ge_u32 s2, 256\ns_cbranch_scc1 KB_end")
    T(post, 0)
    post(f"""
    s_load_dwordx2 s[40:41], s[0:1], 32
    s_load_dwordx2 s[42:43], s[0:1], 64
    s_load_dwordx2 s[34:35], s[0:1], 88
    s_load_dwordx2 s[30:31], s[0:1], 0
    s_load_dwordx2 s[32:33], s[0:1], 72
    s_load_dwordx2 s[72:73], s[0:1], 80
    v_and_b32 v1, 63, v0
    v_lshrrev_b32 v2, 6, v0
    s_nop 0
    v_readfirstlane_b32 s3, v2
    s_and_b32 {PART}, s2, 3
    s_bfe_u32 {TM}, s2, 0x10002
    s_lshl_b32 {TM}, {TM}, 3
    s_bfe_u32 s6, s2, 0x30003
    s_add_u32 {TM}, {TM}, s6
    s_lshr_b32 {TN}, s2, 6
    s_mul_i32 {S_GP}, {PART}, {NCH}
    s_sub_u32 s14, 92, {S_GP}
    s_min_u32 s14, s14, {NCH}
    s_lshl_b32 s14, s14, 14
    s_mul_i32 s6, {TM}, {92*16384 + opts.get("actpad", 4096)}
    s_lshl_b32 s7, {S_GP}, 14
    s_add_u32 s6, s6, s7
    s_add_u32 s36, s6, {WS_ACT}
    s_lshl_b32 {S_OA}, s3, 11
    s_lshl_b32 {S_OW}, {S_GP}, 16
    s_lshl_b32 s7, {TN}, 8
    s_add_u32 {S_OW}, {S_OW}, s7
    s_lshl_b32 {S_MW}, s3, 12
    v_lshrrev_b32 v2, 4, v1
    v_and_b32 v3, 15, v1
    s_lshl_b32 s7, s3, 4
    """)
    for ii in range(4):
        post(f"""
        v_add_u32 v4, {4*(ii&1)}, v2
        v_lshlrev_b32 v4, 1, v4
        v_xor_b32 v4, v4, v3
        v_lshlrev_b32 v4, 4, v4
        v_add_u32 v5, s7, v2
        v_add_u32 v5, {4*ii}, v5
        v_lshl_add_u32 v4, v5, 10, v4
        v_subrev_u32 {VOW(ii)}, {1024*ii}, v4
        """)
    act_lane_offset(post, VOA(0), VOA(1))
    post(f"""
    s_waitcnt lgkmcnt(0)
    s_and_b32 s41, s41, 0xffff
    s_sub_u32 s42, s42, {64*65536}
    s_subb_u32 s43, s43, 0
    s_and_b32 s43, s43, 0xffff
    s_mov_b32 s10, {92*65536}
    s_mov_b32 s11, 0x20000
    s_mov_b32 s20, s34
    s_and_b32 s21, s35, 0xffff
    s_mov_b32 s22, 0x10000000
    s_mov_b32 s23, 0x20000
    s_add_u32 s12, s34, s36
    s_addc_u32 s13, s35, 0
    s_and_b32 s13, s13, 0xffff
    s_mov_b32 s15, 0x20000
    """)
    if opts.get("kbuniq"):
        for i in range(4):
            post(f"s_cmp_eq_u32 {TN}, {i}\ns_cselect_b32 s{60+i}, {S_OA}, 0xf0000000")
        if opts.get("kbuniq") == 2:
            post(f"s_and_b32 s6, {TM}, 7\ns_cmp_eq_u32 s6, 0\ns_cselect_b32 {S_OW}, {S_OW}, 0xf0000000")
    post.extend(sel_w())
    if G2:
        for c in range(3): gr, adv = dma_w(c); issue_groups(post, gr); post.extend(adv)
        for c in range(3): gr, adv = ld_a(c); issue_groups(post, gr); post.extend(adv)
        for c in range(3, 5): gr, adv = dma_w(c); issue_groups(post, gr); post.extend(adv)
        for c in range(3, DB): gr, adv = ld_a(c); issue_groups(post, gr); post.extend(adv)
    else:
        for c in range(D):
            gr, adv = dma_w(c); issue_groups(post, gr); post.extend(adv)
            gr, adv = ld_a(c); issue_groups(post, gr); post.extend(adv)
    NINI = 4 * DW + 4 * DB
    NT = 0
    if opts.get("tlbwarm", 0):
        NT += 2
        post(f"""
        s_lshl_b32 s6, {TM}, 2
        s_add_u32 s6, s6, {TN}
        s_mul_i32 s6, s6, {5*32768 + opts.get('slabpad', 256)}
        s_add_u32 s6, s6, {WS_SLAB + 5*32768}
        v_mov_b32 v4, 0
        buffer_load_dword v230, v4, {SRD_WS}, s6 offen
        s_mov_b32 s44, s32
        s_and_b32 s45, s33, 0xffff
        s_mov_b32 s46, {2048*1024}
        s_mov_b32 s47, 0x20000
        s_lshl_b32 s6, {TM}, 17
        buffer_load_dword v231, v4, s[44:47], s6 offen
        """)
    if opts.get("ctouch", 0):
        post("s_and_b32 s6, s3, 1")
        code_touch(post, "oproj_kernel", "TEXT_END", "s6", 2, vt=(238, 239, 240))
        NT += 1
    if opts.get("kbtouch"):
        NT += 5
        post(f"""
        v_and_b32 v4, 31, v1
        v_lshlrev_b32 v4, 7, v4
        v_lshrrev_b32 v5, 5, v1
        v_lshl_add_u32 v4, v5, 16, v4
        s_lshl_b32 s6, {TN}, 14
        s_lshl_b32 s7, s3, 12
        s_add_u32 s6, s6, s7
        s_add_u32 s6, s6, {4*16384}
        buffer_load_dword v232, v4, {SRD_A}, s6 offen
        s_add_u32 s6, s6, {8*16384}
        buffer_load_dword v233, v4, {SRD_A}, s6 offen
        s_add_u32 s6, s6, {8*16384}
        buffer_load_dword v234, v4, {SRD_A}, s6 offen
        """)
        post(f"""
        s_and_b32 s58, {TM}, 7
        s_lshl_b32 s58, s58, 2
        s_add_u32 s58, s58, {TN}
        s_lshl_b32 s58, s58, 2
        s_add_u32 s58, s58, s3
        s_mul_i32 s58, s58, 10
        s_add_u32 s58, s58, 256
        s_mul_i32 s59, {PART}, {24*64}
        s_add_u32 s59, s59, s58
        s_cmp_lt_u32 s59, 4096
        s_cselect_b32 s44, s40, s42
        s_cselect_b32 s45, s41, s43
        s_cselect_b32 s46, {64*65536}, s10
        s_mov_b32 s47, 0x20000
        s_lshl_b32 s59, s59, 10
        v_lshlrev_b32 v4, 7, v1
        v_add_u32 v5, 8192, v4
        buffer_load_dword v235, v4, s[44:47], s59 offen
        v_cmp_gt_u32 vcc, 16, v1
        s_and_saveexec_b64 s[6:7], vcc
        buffer_load_dword v236, v5, s[44:47], s59 offen
        s_mov_b64 exec, s[6:7]
        """)
    post(f"""
    v_bfe_u32 v2, v1, 2, 2
    v_and_b32 v3, 3, v1
    v_lshrrev_b32 v4, 4, v1
    v_lshl_add_u32 v6, v4, 2, v2
    v_and_b32 v8, 7, v6
    v_lshlrev_b32 v8, 1, v8
    v_lshlrev_b32 v6, 8, v6
    v_and_b32 v7, 1, v3
    v_lshl_add_u32 v6, v7, 3, v6
    v_lshrrev_b32 v7, 1, v3
    """)
    for cb in range(8):
        post(f"""
        v_add_u32 v9, {2*cb}, v7
        v_xor_b32 v9, v9, v8
        v_lshl_add_u32 {VA(cb)}, v9, 4, v6
        v_add_u32 {VA(cb,1)}, 65536, {VA(cb)}
        """)
    for i in range(128): post(f"v_mov_b32 v{16+i}, 0")
    post(f"""
    s_mov_b32 s56, {24//R}
    s_mov_b32 s57, 0
    s_cmp_eq_u32 {PART}, 2
    s_cselect_b32 s56, {16//R}, s56
    s_cselect_b32 s57, {8//R}, s57
    s_cmp_eq_u32 {PART}, 3
    s_cselect_b32 s56, 0, s56
    s_cselect_b32 s57, {24//R if R == 8 else 5}, s57
    s_waitcnt vmcnt({NINI-4+NT})
    s_barrier
    """)
    T(post, 9)
    for s in range(2):
        for cb in range(8): post.extend(a_rd(s, cb, 0))
    post("s_cmp_eq_u32 s56, 0\ns_cbranch_scc1 K3_l1pre")
    body0 = []; body1 = []
    for c in range(R): body0 += period(c, 0); body1 += period(c, 1)
    body0 += [Inst("s_sub_u32 s56, s56, 1"), Inst("s_cmp_lg_u32 s56, 0"), Inst("s_cbranch_scc1 K3_loop0")]
    mid = [Inst("K3_l1pre:"), Inst("s_cmp_eq_u32 s57, 0"), Inst("s_cbranch_scc1 K3_post")]
    body1 += [Inst("s_sub_u32 s57, s57, 1"), Inst("s_cmp_lg_u32 s57, 0"), Inst("s_cbranch_scc1 K3_loop1")]
    fin = Prog()
    fin("K3_post:")
    fin("s_waitcnt lgkmcnt(0)\ns_nop 15")
    T(fin, 10)
    fin(f"""
    s_lshl_b32 s7, {TM}, 2
    s_add_u32 s7, s7, {TN}
    s_mul_i32 s58, s7, {5*32768 + opts.get('slabpad', 256)}
    s_add_u32 s58, s58, {WS_SLAB}
    s_lshl_b32 s59, s3, 13
    s_add_u32 s59, s59, s58
    s_lshl_b32 s6, {PART}, 15
    s_add_u32 s6, s6, s59
    v_lshlrev_b32 v2, 4, v1
    s_cmp_eq_u32 {PART}, 3
    s_cbranch_scc1 K3_st1
    """)
    def slab_store(base):
        for j in range(8):
            t0 = 144 + (j & 3) * 4
            for i in range(4): fin(f"v_cvt_pk_bf16_f32 v{t0+i}, v{16+base+j*8+2*i}, v{16+base+j*8+2*i+1}")
            if j == 4: fin("s_add_u32 s6, s6, 4096")
            fin(f"buffer_store_dwordx4 v[{t0}:{t0+3}], v2, {SRD_WS}, s6 offen offset:{(j%4)*1024} sc1")
    slab_store(0)
    fin(f"""
    K3_st1:
    s_cmp_lt_u32 {PART}, 2
    s_cbranch_scc1 K3_sync
    s_add_u32 s6, {PART}, 1
    s_lshl_b32 s6, s6, 15
    s_add_u32 s6, s6, s59
    """)
    slab_store(64)
    fin(f"""
    K3_sync:
    s_mov_b32 s8, s30
    s_and_b32 s9, s31, 0xffff
    s_mov_b32 s10, {2048*1024}
    s_mov_b32 s11, 0x20000
    s_mov_b32 s12, s32
    s_and_b32 s13, s33, 0xffff
    s_mov_b32 s14, {2048*1024}
    s_mov_b32 s15, 0x20000
    s_lshl_b32 s6, {TM}, 7
    s_lshl_b32 s74, {PART}, 5
    s_add_u32 s6, s6, s74
    s_lshl_b32 s6, s6, 10
    s_lshl_b32 s74, {TN}, 8
    s_add_u32 s6, s6, s74
    s_lshl_b32 s74, s3, 6
    s_add_u32 s37, s6, s74
    v_and_b32 v3, 15, v1
    v_lshrrev_b32 v4, 4, v1
    v_lshlrev_b32 v3, 10, v3
    v_lshl_add_u32 v3, v4, 3, v3
    v_add_u32 v4, 16384, v3
    """)
    for jj in range(2):
        for tb in range(2):
            b = 200 + (jj * 2 + tb) * 2
            fin(f"buffer_load_dwordx2 v[{b}:{b+1}], v{3+tb}, s[8:11], s37 offen offset:{jj*32}")
    fin(f"""
    s_lshl_b32 s59, {PART}, 13
    s_add_u32 s59, s59, s58
    s_lshl_b32 s6, s3, 11
    s_add_u32 s59, s59, s6
    s_waitcnt vmcnt(4)
    s_barrier
    s_cmp_lg_u32 s3, 0
    s_cbranch_scc1 K3_wait
    s_and_b32 s6, s7, 3
    s_lshl_b32 s6, s6, 6
    s_lshr_b32 s74, s7, 4
    s_lshl_b32 s74, s74, 2
    s_add_u32 s6, s6, s74
    s_bfe_u32 s74, s7, 0x20002
    s_lshl_b32 s74, s74, 3
    s_lshl_b32 s75, 1, s74
    v_mov_b32 v6, s6
    v_mov_b32 v7, s75
    s_mov_b64 exec, 1
    global_atomic_add v6, v7, {SRD_DBG} sc1
    """)
    poll(fin, "K3_spin", "v6", 4, shift="s74", sleep=1)
    fin(f"""
    s_mov_b64 exec, -1
    K3_wait:
    s_barrier
    """)
    T(fin, 11)
    for sl in range(5):
        fin(f"s_add_u32 s6, s59, {sl*32768}")
        for jj in range(2):
            b = 16 + (sl * 2 + jj) * 4
            fin(f"buffer_load_dwordx4 v[{b}:{b+3}], v2, {SRD_WS}, s6 offen offset:{jj*1024} sc1")
    fin(f"s_mov_b32 s7, {f32hex(-LOG2E)}")
    for jj in range(2):
        for tb in range(2):
            src = lambda sl, i: f"v{16+(sl*2+jj)*4+tb*2+i}"
            sv = [f"v{60+r}" for r in range(4)]; yv = [f"v{64+r}" for r in range(4)]; tv = [f"v{68+r}" for r in range(4)]
            def unp(dst, sl):
                fin(f"v_lshlrev_b32 {dst[0]}, 16, {src(sl,0)}\nv_and_b32 {dst[1]}, 0xffff0000, {src(sl,0)}")
                fin(f"v_lshlrev_b32 {dst[2]}, 16, {src(sl,1)}\nv_and_b32 {dst[3]}, 0xffff0000, {src(sl,1)}")
            unp(sv, 0); unp(tv, 1)
            for r in range(4): fin(f"v_add_f32 {sv[r]}, {sv[r]}, {tv[r]}")
            unp(tv, 2)
            for r in range(4): fin(f"v_add_f32 {sv[r]}, {sv[r]}, {tv[r]}")
            unp(yv, 3); unp(tv, 4)
            for r in range(4): fin(f"v_add_f32 {yv[r]}, {yv[r]}, {tv[r]}")
            for r in range(4): fin(f"v_mul_f32 {tv[r]}, s7, {yv[r]}")
            for r in range(4): fin(f"v_exp_f32 {tv[r]}, {tv[r]}")
            for r in range(4): fin(f"v_add_f32 {tv[r]}, 1.0, {tv[r]}")
            for r in range(4): fin(f"v_rcp_f32 {tv[r]}, {tv[r]}")
            for r in range(4): fin(f"v_mul_f32 {yv[r]}, {yv[r]}, {tv[r]}")
            xb = 200 + (jj * 2 + tb) * 2
            fin(f"v_lshlrev_b32 {tv[0]}, 16, v{xb}\nv_and_b32 {tv[1]}, 0xffff0000, v{xb}\nv_lshlrev_b32 {tv[2]}, 16, v{xb+1}\nv_and_b32 {tv[3]}, 0xffff0000, v{xb+1}")
            for r in range(4): fin(f"v_fma_f32 {sv[r]}, {sv[r]}, {yv[r]}, {tv[r]}")
            ob = 72 + 2 * ((jj * 2 + tb) & 1)
            fin(f"v_cvt_pk_bf16_f32 v{ob}, {sv[0]}, {sv[1]}\nv_cvt_pk_bf16_f32 v{ob+1}, {sv[2]}, {sv[3]}")
            fin(f"buffer_store_dwordx2 v[{ob}:{ob+1}], v{3+tb}, s[12:15], s37 offen offset:{jj*32}")
    if opts.get("time"):
        fin("s_waitcnt vmcnt(0)")
        T(fin, 8)
        fin(f"""
        s_waitcnt lgkmcnt(0)
        s_lshl_b32 s6, s2, 2
        s_add_u32 s6, s6, s3
        s_lshl_b32 s6, s6, 6
        s_add_u32 s6, s6, {WS_TIME + 65536}
        v_mov_b32 v3, s6
        """)
        for k_, i in enumerate((0, 9, 10, 11, 8)):
            fin(f"v_mov_b32 v2, s{SB(i)}\nbuffer_store_dword v2, v3, {SRD_WS}, 0 offen offset:{4*k_}")
        for i in range(2):
            fin(f"v_mov_b32 v2, s{64+2*i}\nbuffer_store_dword v2, v3, {SRD_WS}, 0 offen offset:{32+4*i}")
    if opts.get("dbgtime"):
        fin(f"""
        s_cmp_lg_u32 s2, {opts.get("dbgwg", 0)}
        s_cbranch_scc1 KB_end
        s_cmp_lg_u32 s3, 0
        s_cbranch_scc1 KB_end
        s_waitcnt vmcnt(0)
        v_lshlrev_b32 v2, 2, v1
        v_add_u32 v2, {WS_TIME + opts.get("dbgwg", 0) * 256}, v2
        buffer_load_dword v3, v2, {SRD_WS}, 0 offen sc1
        s_waitcnt vmcnt(0)
        v_readfirstlane_b32 s6, v3
        s_nop 1
        v_subrev_u32 v3, s6, v3
        v_mov_b32 v4, s{SB(0)}
        v_subrev_u32 v4, s6, v4
        v_mov_b32 v5, s{SB(8)}
        v_subrev_u32 v5, s6, v5
        v_mov_b32 v6, s{SB(9)}
        v_subrev_u32 v6, s6, v6
        v_mov_b32 v7, s{SB(10)}
        v_subrev_u32 v7, s6, v7
        v_cmp_eq_u32 vcc, 8, v1
        s_nop 1
        v_cndmask_b32 v3, v3, v4, vcc
        v_cmp_eq_u32 vcc, 9, v1
        s_nop 1
        v_cndmask_b32 v3, v3, v6, vcc
        v_cmp_eq_u32 vcc, 10, v1
        s_nop 1
        v_cndmask_b32 v3, v3, v7, vcc
        v_cmp_eq_u32 vcc, 11, v1
        s_nop 1
        v_cndmask_b32 v3, v3, v5, vcc
        v_lshlrev_b32 v2, 2, v1
        v_add_u32 v2, 16, v2
        v_cmp_gt_u32 vcc, 12, v1
        s_and_saveexec_b64 s[6:7], vcc
        global_store_dword v2, v3, {SRD_DBG}
        """)
    fin("KB_end:\ns_endpgm")
    po2, st = lin(post.insts, None, [])
    b0, st = auto_wait_loop(body0, st); b0 = merge_adjacent_waits(b0)
    b1, st = auto_wait_loop(body1, st); b1 = merge_adjacent_waits(b1)
    f2, st = lin(fin.insts, st, b1[-40:])
    for nm, seq in (("l3", po2[-40:] + b0 + b0 + b1 + b1 + f2[:30]),):
        for p_ in check_hazards(seq): print("HAZARD", nm, p_, file=sys.stderr)
    return po2 + [Inst("K3_loop0:")] + b0 + mid + [Inst("K3_loop1:")] + b1 + f2

def gen(opts):
    hdr = f"""; @launch kernel=attn_kernel grid=(256,1,1) block=(256,1,1) lds=131328
; @launch kernel=oproj_kernel grid=(256,1,1) block=(256,1,1) lds=131072
.amdgcn_target "amdgcn-amd-amdhsa--gfx950"
.text
"""
    return hdr + kernel_text("attn_kernel", gen_ka(opts), 512, 256) + kernel_text("oproj_kernel", gen_kb(opts) + [Inst("TEXT_END:")], 384, 256)

if __name__ == "__main__":
    opts = {}
    for a in sys.argv[2:]:
        k, _, v = a.partition("=")
        opts[k] = int(v) if v else 1
    open(sys.argv[1], "w").write(gen(opts))
```

```python
import re

TRANS = ("v_exp_f32", "v_log_f32", "v_rcp_f32", "v_rsq_f32", "v_sqrt_f32", "v_sin_f32", "v_cos_f32")

def parse_reg(tok):
    tok = tok.strip()
    neg = tok.lstrip("-")
    if neg.startswith("|") and neg.endswith("|"):
        neg = neg[1:-1]
    m = re.fullmatch(r"abs\((.*)\)", neg)
    if m: neg = m.group(1)
    tok = neg
    m = re.fullmatch(r"([vas])(\d+)", tok)
    if m: return [(m.group(1), int(m.group(2)))]
    m = re.fullmatch(r"([vas])\[(\d+):(\d+)\]", tok)
    if m: return [(m.group(1), i) for i in range(int(m.group(2)), int(m.group(3)) + 1)]
    if tok == "vcc": return [("vcc", 0)]
    if tok in ("vcc_lo", "vcc_hi"): return [("vcc", 0)]
    if tok == "exec": return [("exec", 0)]
    if tok == "m0": return [("m0", 0)]
    if tok == "scc": return [("scc", 0)]
    return []

class Inst:
    __slots__ = ("text", "op", "kind", "reads", "writes", "passes", "srcC", "srcAB", "tag", "wide_store", "comment")
    def __init__(self, text, tag=None, comment=None):
        self.text = text.strip()
        self.tag = tag
        self.comment = comment
        self.passes = 0
        self.srcC = []
        self.srcAB = []
        self.wide_store = False
        t = self.text
        if t.endswith(":") or t.startswith(".") or t.startswith(";") or t == "":
            self.op = t; self.kind = "label" if t.endswith(":") else "directive"; self.reads = set(); self.writes = set(); return
        parts = t.split(None, 1)
        op = parts[0]; self.op = op
        rest = parts[1] if len(parts) > 1 else ""
        ops = [o.strip() for o in rest.split(",")] if rest else []
        mods = ""
        if ops:
            last = ops[-1].split()
            ops[-1] = last[0] if last else ""
            mods = " ".join(last[1:])
        m = re.search(r"\s(op_sel|op_sel_hi|neg_lo|neg_hi|quad_perm|cbsz|blgp|abid)\b", " " + rest)
        if m:
            idx = rest.find(m.group(1))
            core = rest[:idx].strip(); mods = rest[idx:]
            ops = [o.strip() for o in core.split(",")]
            lastp = ops[-1].split()
            ops[-1] = lastp[0]
            mods = " ".join(lastp[1:]) + " " + mods
        R = [parse_reg(o) for o in ops]
        allr = lambda lst: set(x for r in lst for x in r)
        reads = set(); writes = set()
        if op.startswith("v_mfma"):
            self.kind = "mfma"
            self.passes = 8 if "32x32x16" in op else 4 if "16x16x32" in op else None
            assert self.passes
            writes = set(R[0]); reads = allr(R[1:]); self.srcC = R[3]; self.srcAB = R[1] + R[2]
        elif op.startswith("v_"):
            base = re.sub(r"_(e32|e64|dpp|sdwa)$", "", op)
            self.kind = "trans" if base in TRANS else "valu"
            if base.startswith("v_cmpx"):
                writes = set(R[0]) | {("exec", 0)}; reads = allr(R[1:])
            elif base.startswith("v_cmp"):
                writes = set(R[0]); reads = allr(R[1:])
            elif base in ("v_add_co_u32", "v_sub_co_u32", "v_subrev_co_u32"):
                writes = set(R[0]) | set(R[1]); reads = allr(R[2:])
            elif base in ("v_addc_co_u32", "v_subb_co_u32"):
                writes = set(R[0]) | set(R[1]); reads = allr(R[2:])
            elif base in ("v_permlane32_swap_b32", "v_permlane16_swap_b32", "v_swap_b32"):
                writes = allr(R[:2]); reads = allr(R[:2])
            elif base in ("v_fmac_f32", "v_dot2c_f32_bf16", "v_pk_fmac_f16", "v_writelane_b32", "v_mac_f32"):
                writes = set(R[0]); reads = allr(R)
            elif base == "v_nop":
                pass
            else:
                writes = set(R[0]); reads = allr(R[1:])
            if "dpp" in op or "row_" in mods or "quad_perm" in mods:
                self.tag = (self.tag or "") + " dpp"
                if "bound_ctrl" not in mods: reads |= writes
            reads |= {("exec", 0)}
        elif op.startswith("ds_"):
            if op.startswith("ds_read") or op.startswith("ds_bpermute") or op.startswith("ds_swizzle") or op.startswith("ds_permute"):
                self.kind = "lds"; writes = set(R[0]); reads = allr(R[1:])
            else:
                self.kind = "lds"; reads = allr(R)
        elif op.startswith("buffer_") or op.startswith("global_"):
            islds = (" lds" in (" " + mods)) or "_lds_" in op
            if op in ("buffer_wbl2", "buffer_inv"):
                self.kind = "vmem"
            elif islds:
                self.kind = "dma"; reads = allr(R) | {("m0", 0)}
            elif "_load" in op:
                self.kind = "vmem"; writes = set(R[0]); reads = allr(R[1:])
            elif "_store" in op:
                self.kind = "vmem"; reads = allr(R)
                if "x3" in op or "x4" in op: self.wide_store = True
            elif "atomic" in op:
                self.kind = "vmem"
                if "sc0" in mods:
                    writes = set(R[0]); reads = allr(R[1:])
                else:
                    reads = allr(R)
            else:
                raise ValueError(op)
        elif op.startswith("s_"):
            if op == "s_waitcnt": self.kind = "wait"
            elif op == "s_barrier": self.kind = "barrier"
            elif op == "s_nop": self.kind = "nop"
            elif op in ("s_branch", "s_endpgm", "s_setprio", "s_sleep"): self.kind = "ctl"
            elif op.startswith("s_cbranch"):
                self.kind = "ctl"
                reads = {("scc", 0)} if "scc" in op else {("vcc", 0)} if "vcc" in op else {("exec", 0)}
            elif op.startswith("s_load") or op.startswith("s_memtime") or op.startswith("s_memrealtime") or op.startswith("s_buffer_load"):
                self.kind = "smem"; writes = set(R[0]); reads = allr(R[1:])
            elif op.startswith("s_cmp") or op.startswith("s_bitcmp"):
                self.kind = "salu"; writes = {("scc", 0)}; reads = allr(R)
            elif op.startswith("s_getpc"):
                self.kind = "salu"; writes = set(R[0])
            elif op.startswith("s_getreg"):
                self.kind = "salu"; writes = set(R[0])
            else:
                self.kind = "salu"; writes = set(R[0]); reads = allr(R[1:])
                if op in ("s_addk_i32", "s_mulk_i32"): reads |= set(R[0])
                if op.startswith(("s_add", "s_sub", "s_and", "s_or", "s_xor", "s_lshl", "s_lshr", "s_ashr", "s_min", "s_max", "s_andn2", "s_bfe", "s_not")):
                    writes |= {("scc", 0)}
                if op.startswith(("s_addc", "s_subb", "s_cselect")): reads |= {("scc", 0)}
                if "saveexec" in op: writes |= {("exec", 0), ("scc", 0)}; reads |= {("exec", 0)}
        else:
            raise ValueError("unknown op " + op)
        self.reads = reads; self.writes = writes

    def nstates(self):
        if self.kind in ("label", "directive", "hint"): return 0
        if self.kind == "nop":
            return int(self.text.split()[1], 0) + 1
        return 1

def Hint(*regs):
    i = Inst(";hint")
    i.kind = "hint"
    i.reads = set(x for r in regs for x in parse_reg(r))
    return i

class Prog:
    def __init__(self):
        self.insts = []
    def __call__(self, text, tag=None):
        for line in text.strip("\n").split("\n"):
            line = line.split(";")[0].strip() if not line.strip().startswith(";") else line.strip()
            if line == "": continue
            self.insts.append(Inst(line, tag))
        return self
    def add(self, inst):
        if isinstance(inst, str): inst = Inst(inst)
        self.insts.append(inst)
    def extend(self, lst):
        for i in lst: self.add(i)
    def text(self):
        out = []
        for i in self.insts:
            if i.kind == "label": out.append(i.text)
            elif i.kind == "hint": continue
            else: out.append("    " + i.text)
        return "\n".join(out) + "\n"

def wait_fields(inst):
    vm = lg = None
    m = re.search(r"vmcnt\((\d+)\)", inst.text);  vm = int(m.group(1)) if m else None
    m = re.search(r"lgkmcnt\((\d+)\)", inst.text); lg = int(m.group(1)) if m else None
    return vm, lg

class WaitState:
    def __init__(self):
        self.vm = []; self.lg = []; self.smem = False
    def copy(self):
        w = WaitState(); w.vm = list(self.vm); w.lg = list(self.lg); w.smem = self.smem; return w
    def key(self):
        return (tuple(self.vm), tuple(self.lg), self.smem)

def compute_waits(insts, st):
    res = []
    for ins in insts:
        need_vm = need_lg = None
        touched = ins.reads | ins.writes
        if ins.kind not in ("wait", "label", "directive"):
            for i, d in enumerate(st.vm):
                if d & touched:
                    n = len(st.vm) - 1 - i
                    need_vm = n if need_vm is None else min(need_vm, n)
            for i, d in enumerate(st.lg):
                if d & touched:
                    n = len(st.lg) - 1 - i
                    if st.smem: n = 0
                    need_lg = n if need_lg is None else min(need_lg, n)
        if need_vm is not None:
            need_vm = min(need_vm, 63)
            st.vm = st.vm[len(st.vm) - need_vm:] if need_vm else []
        if need_lg is not None:
            need_lg = min(need_lg, 15)
            st.lg = st.lg[len(st.lg) - need_lg:] if need_lg else []
            if need_lg == 0: st.smem = False
        res.append((need_vm, need_lg))
        if ins.kind == "wait":
            vm, lg = wait_fields(ins)
            if vm is not None and len(st.vm) > vm: st.vm = st.vm[len(st.vm) - vm:] if vm else []
            if lg is not None:
                if st.smem and lg > 0:
                    pass
                elif len(st.lg) > lg: st.lg = st.lg[len(st.lg) - lg:] if lg else []
                if lg == 0: st.smem = False
        elif ins.kind in ("vmem", "dma"):
            st.vm.append(frozenset(ins.writes))
        elif ins.kind == "lds":
            st.lg.append(frozenset(ins.writes))
        elif ins.kind == "smem":
            st.lg.append(frozenset(ins.writes)); st.smem = True
    return res

def apply_waits(insts, waits):
    out = []
    for ins, (vm, lg) in zip(insts, waits):
        if vm is not None or lg is not None:
            t = "s_waitcnt"
            if vm is not None: t += f" vmcnt({vm})"
            if lg is not None: t += f" lgkmcnt({lg})"
            out.append(Inst(t, tag="auto"))
        out.append(ins)
    return out

def merge_waits(a, b):
    r = []
    for (x1, y1), (x2, y2) in zip(a, b):
        mn = lambda p, q: q if p is None else p if q is None else min(p, q)
        r.append((mn(x1, x2), mn(y1, y2)))
    return r

def auto_wait_linear(insts, st=None):
    st = st or WaitState()
    w = compute_waits(insts, st)
    return apply_waits(insts, w), st

def auto_wait_loop(body, st):
    s1 = st.copy(); w1 = compute_waits(body, s1)
    s2 = s1.copy(); w2 = compute_waits(body, s2)
    w = merge_waits(w1, w2)
    nb = apply_waits(body, w)
    sa = st.copy(); c1 = compute_waits(nb, sa); sb = sa.copy(); c2 = compute_waits(nb, sb); sc = sb.copy(); c3 = compute_waits(nb, sc)
    for c in (c1, c2, c3):
        assert all(x == (None, None) for x in c), "loop waits did not converge"
    return nb, sb

def check_hazards(insts, name="", fix=False):
    out = []
    pos = 0
    hist = []
    problems = []
    def need(ins):
        deficit = 0; why = None
        for p, h in reversed(hist):
            dist = pos - p
            if dist >= 20: break
            req = 0
            hv = h.kind in ("valu", "trans")
            iv = ins.kind in ("valu", "trans")
            ov_r = h.writes & ins.reads
            ov_w = h.writes & ins.writes
            vg = lambda s: set(x for x in s if x[0] in ("v", "a"))
            sg = lambda s: set(x for x in s if x[0] in ("s", "vcc"))
            if hv and ins.kind == "mfma" and vg(ov_r): req = max(req, 2)
            if h.kind == "mfma":
                xd = {4: (6, 8, 3), 8: (10, 12, 7)}[h.passes]
                if ins.kind == "mfma":
                    if set(ins.srcC) & h.writes:
                        if list(ins.srcC) == sorted(h.writes) and ins.passes == h.passes: pass
                        elif set(ins.srcC) == h.writes and ins.passes == h.passes: pass
                        else: req = max(req, xd[0])
                    if set(ins.srcAB) & h.writes: req = max(req, xd[1])
                    if (ins.writes & h.writes) and not (set(ins.srcC) & h.writes): req = max(req, xd[0])
                elif iv or ins.kind in ("lds", "vmem", "dma"):
                    if vg(ov_r) or vg(ov_w): req = max(req, xd[1])
                if iv and (set(h.srcC) & ins.writes): req = max(req, xd[2])
                if ins.kind in ("lds", "vmem") and (set(h.srcC) & ins.writes): req = max(req, xd[2])
            if h.kind == "trans" and ins.kind == "valu" and vg(ov_r): req = max(req, 1)
            if h.kind == "trans" and ins.kind in ("lds", "vmem", "dma") and vg(ov_r): req = max(req, 1)
            if hv and iv and sg(ov_r):
                req = max(req, 4 if ins.op.startswith(("v_readlane", "v_writelane")) else 2)
            if hv and ins.kind in ("vmem", "dma") and sg(ov_r): req = max(req, 5)
            if hv and ins.kind == "salu" and sg(ov_r): req = max(req, 1)
            if hv and ins.op.startswith(("v_readlane", "v_readfirstlane")) and vg(ov_r): req = max(req, 1)
            if hv and ins.op.startswith("v_permlane") and vg(ov_r): req = max(req, 2)
            if hv and iv and ins.tag and "dpp" in ins.tag and vg(ov_r): req = max(req, 2)
            if h.kind == "salu" and ("m0", 0) in h.writes and ins.kind == "dma": req = max(req, 1)
            if h.wide_store and (vg(h.reads) & ins.writes): req = max(req, 2)
            if hv and ("exec", 0) in h.writes:
                if ins.kind == "mfma": req = max(req, 4)
                if ins.tag and "dpp" in ins.tag: req = max(req, 5)
                if ins.op.startswith(("v_readlane", "v_readfirstlane", "v_writelane", "v_permlane")): req = max(req, 4)
            if hv and ("vcc", 0) in h.writes and ins.op in ("s_cbranch_vccz", "s_cbranch_vccnz"): req = max(req, 5)
            if req - dist > deficit:
                deficit = req - dist; why = (h.text, ins.text, req, dist)
        return deficit, why
    for ins in insts:
        if ins.kind in ("label", "directive", "hint"):
            out.append(ins); continue
        d, why = need(ins)
        if d > 0:
            if fix:
                n = d
                while n > 0:
                    k = min(n, 16)
                    nop = Inst(f"s_nop {k-1}", tag="hz")
                    out.append(nop); pos += k; n -= k
            else:
                problems.append(why)
        out.append(ins)
        pos += ins.nstates()
        hist.append((pos, ins))
        if len(hist) > 40: hist.pop(0)
    if fix: return out
    return problems

def merge_adjacent_waits(insts):
    out = []
    for ins in insts:
        if ins.kind == "wait":
            j = len(out) - 1
            while j >= 0 and out[j].kind == "hint": j -= 1
            if j >= 0 and out[j].kind == "wait":
                v1, l1 = wait_fields(out[j]); v2, l2 = wait_fields(ins)
                mn = lambda p, q: q if p is None else p if q is None else min(p, q)
                vm, lg = mn(v1, v2), mn(l1, l2)
                t = "s_waitcnt"
                if vm is not None: t += f" vmcnt({vm})"
                if lg is not None: t += f" lgkmcnt({lg})"
                out[j] = Inst(t, tag="auto")
                continue
        out.append(ins)
    return out

def auto_wait_loop_multi(body, states):
    w = None
    for st in states:
        s1 = st.copy(); w1 = compute_waits(body, s1)
        s2 = s1.copy(); w2 = compute_waits(body, s2)
        ww = merge_waits(w1, w2)
        w = ww if w is None else merge_waits(w, ww)
    nb = apply_waits(body, w)
    last = None
    for st in states:
        sa = st.copy()
        for it in range(3):
            c = compute_waits(nb, sa)
            assert all(x == (None, None) for x in c), "loop waits did not converge"
        last = sa
    return nb, last
```

```python
import sys, math
sys.path.insert(0, "dev")
from asmdsl import *
from gen import (NAME, WS_XN, WS_ACT, WS_SLAB, WS_TIME, LOG2E, QSCALE, f32hex, kernel_text, finish, rbf16,
                 S, P, NEGM, Qb, Q, VKA, VVA, VOFFK, VOFFV, L, O, KF, VF, SRD_K, SRD_V, SRD_K0, SRD_WS, S_OFF, S_WB, S_CNT,
                 SRD_WQ, SRD_G, SRD_U, k_read, v_reads, dma_k, dma_v, emit_phase)
from gen2 import ln_rows
from phase2 import emit_phase2, LACCN, ONES_A, LREGS
import gen as _g

SRD_DBG = "s[72:73]"
SB = lambda i: 80 + (i % 11) * 2 if i < 11 else 60 + (i - 11) * 2
CY = {1: 64, 2: 66, 3: 68, 4: 70, 9: 64, 10: 66}
def stamp(pr, opts, idx):
    if opts.get("time"):
        b = SB(idx)
        pr(f"s_memrealtime s[{b}:{b+1}]")
        if idx in CY: pr(f"s_memtime s[{CY[idx]}:{CY[idx]+1}]")

def poll(pr, label, addr_v, thresh, shift=None, sleep=2, cache="sc1"):
    pr(f"""
    {label}:
    global_load_dword v5, {addr_v}, {SRD_DBG} {cache}
    s_waitcnt vmcnt(0)
    v_readfirstlane_b32 s75, v5
    """)
    if shift is not None:
        pr(f"s_lshr_b32 s75, s75, {shift}\ns_and_b32 s75, s75, 0xff")
    pr(f"""
    s_cmp_ge_u32 s75, {thresh}
    s_cbranch_scc1 {label}_ok
    s_sleep {sleep}
    s_branch {label}
    {label}_ok:
    """)

def lin(insts, st, prev):
    a, st = auto_wait_linear(insts, st)
    a = merge_adjacent_waits(a)
    n = len(prev)
    return check_hazards(prev + a, fix=True)[n:], st

def issue_groups(pr, groups):
    for d in groups:
        pr.extend(d[:-1])
        if len(d) > 1: pr("s_nop 0")
        pr.extend(d[-1:])

def QACC(cb, tb, r=None):
    b = 16 + (cb * 4 + tb) * 4
    return f"v[{b}:{b+3}]" if r is None else f"v{b+r}"
def GACC(cb, tb, r=None):
    b = (cb * 4 + tb) * 4
    return f"a[{b}:{b+3}]" if r is None else f"a{b+r}"
def UACC(cb, tb, r=None):
    b = 64 + (cb * 4 + tb) * 4
    return f"a[{b}:{b+3}]" if r is None else f"a{b+r}"
def AF(cb, u=None):
    b = 128 + cb * 4
    if u is None: return f"a[{b}:{b+3}]"
    return f"a[{b+2*u}:{b+2*u+1}]"
def BF(st, tb):
    b = 144 + st * 16 + tb * 4
    return f"v[{b}:{b+3}]"
VA_Q = lambda ds: f"v{230+ds}"
VA_G = lambda cb: f"v{234+cb}"
VO_X = "v238"; VO_WQ = lambda ii: f"v{239+ii}"; VO_G = "v241"
S_OX = "s50"; S_OWQ = "s51"; S_OGU = "s52"
S_MWQ = "s55"; S_MG = "s56"; S_MU = "s57"
GW = 65536

def a_reads(cb, stage):
    if cb < 8:
        ds, h = cb >> 1, cb & 1
        return [Inst(f"ds_read_b64_tr_b16 {AF(cb,u)}, {VA_Q(ds)} offset:{stage*16384 + 8*h + 1024*u}") for u in range(2)]
    mat, c2 = (cb - 8) >> 2, (cb - 8) & 3
    return [Inst(f"ds_read_b64_tr_b16 {AF(cb,u)}, {VA_G(c2)} offset:{stage*16384 + 8192 + 4096*mat + 512*u}") for u in range(2)]
def w_dma(stage):
    r = []
    r.append([Inst(f"s_add_u32 m0, {S_MWQ}, {stage*16384}"), Inst(f"buffer_load_dwordx4 {VO_WQ(0)}, {SRD_WQ}, {S_OWQ} offen lds")])
    r.append([Inst(f"buffer_load_dwordx4 {VO_WQ(1)}, {SRD_WQ}, {S_OWQ} offen offset:1024 lds")])
    r.append([Inst(f"s_add_u32 m0, {S_MG}, {stage*16384}"), Inst(f"buffer_load_dwordx4 {VO_G}, {SRD_G}, {S_OGU} offen lds")])
    r.append([Inst(f"s_add_u32 m0, {S_MU}, {stage*16384}"), Inst(f"buffer_load_dwordx4 {VO_G}, {SRD_U}, {S_OGU} offen lds")])
    adv = [Inst(f"s_add_u32 {S_OWQ}, {S_OWQ}, {32*8192}"), Inst(f"s_add_u32 {S_OGU}, {S_OGU}, {32*3584}")]
    return r, adv
def x_loads(st):
    r = [[Inst(f"buffer_load_dwordx4 {BF(st,tb)}, {VO_X}, {SRD_WS}, {S_OX} offen offset:{tb*1024} sc1")] for tb in range(4)]
    return r, [Inst(f"s_add_u32 {S_OX}, {S_OX}, 16384")]

def gemm_period(c, groups, adv, read_next=True, extra=(), nvm=8):
    st = c & 3
    NG = 64
    pre = [[] for _ in range(NG + 1)]; mem = [[] for _ in range(NG + 1)]; gaps = [[] for _ in range(NG + 1)]
    pre[0].append(Hint(*[BF(st, t) for t in range(4)]))
    if nvm is not None: pre[0].append(Inst(f"s_waitcnt vmcnt({nvm})"))
    pre[0].append(Inst("s_barrier"))
    if read_next:
        for cb in range(16):
            rd = a_reads(cb, (c + 1) & 3)
            if cb < 15:
                mem[4 * cb + 4].append(rd[0]); mem[4 * cb + 5].append(rd[1])
            else:
                mem[63].append(rd[0]); mem[63].append(rd[1])
    pos = [2, 6, 10, 14, 18, 22, 26, 30, 34, 38, 42, 46]
    for gp, d in zip(pos, groups):
        gaps[gp - 1] += d[:-1]
        mem[gp] += d[-1:]
    for i, a in enumerate(adv): gaps[48 + i].append(a)
    for gp, lst in extra:
        for ins in lst:
            (mem if ins.kind in ("vmem", "dma", "lds") else gaps)[gp].append(ins)
    out = []
    for cb in range(16):
        if cb % 4 == 0:
            pre[4 * cb].insert(0, Hint(*[AF(c_) for c_ in range(cb, cb + 4)]))
        for tb in range(4):
            k = 4 * cb + tb
            d = QACC(cb, tb) if cb < 8 else GACC(cb - 8, tb) if cb < 12 else UACC(cb - 12, tb)
            out += pre[k]
            out.append(Inst(f"v_mfma_f32_16x16x32_bf16 {d}, {AF(cb)}, {BF(st,tb)}, {d}"))
            out += mem[k]; out += gaps[k]
    return out

def act_lane_offset(pr, dst0, dst1=None):
    pr(f"""
    v_and_b32 v2, 15, v1
    v_lshrrev_b32 v3, 4, v1
    v_bfe_u32 v4, v1, 2, 1
    v_lshlrev_b32 v4, 1, v4
    v_bfe_u32 v5, v1, 3, 1
    v_mul_u32_u24 v5, 3, v5
    v_xor_b32 v4, v4, v5
    v_xor_b32 v4, v4, v3
    v_lshlrev_b32 v4, 4, v4
    v_lshl_add_u32 {dst0}, v2, 6, v4
    """)
    if dst1: pr(f"v_add_u32 {dst1}, 8192, {dst0}")


def code_touch(pr, start_label, end_label, idx_sgpr, nblk, vt=(250, 251, 252)):
    a, b, d = vt
    pr(f"""
    s_getpc_b64 s[78:79]
    CT_{start_label}:
    s_sub_u32 s78, s78, CT_{start_label}-{start_label}
    s_subb_u32 s79, s79, 0
    s_lshl_b32 s77, {idx_sgpr}, 13
    v_lshlrev_b32 v{a}, 7, v1
    v_add_u32 v{a}, s77, v{a}
    v_min_u32 v{a}, {end_label}-{start_label}-4, v{a}
    v_mov_b32 v{b}, s79
    v_add_co_u32 v{a}, vcc, s78, v{a}
    v_addc_co_u32 v{b}, vcc, 0, v{b}, vcc
    global_load_dword v{d}, v[{a}:{b}], off
    """)

def gen_ka(opts):
    global emit_phase
    NS = opts.get('nsum', 2) if opts.get('ph2', 1) else 0
    emit_phase = emit_phase2 if opts.get('ph2', 1) else _g.emit_phase
    opts = dict(opts); opts['nsum'] = NS
    T = lambda pr, idx: stamp(pr, opts, idx)
    pr = Prog()
    pr("s_cmp_ge_u32 s2, 256\ns_cbranch_scc1 KA_end")
    T(pr, 0)
    pr(f"""
    s_load_dwordx2 s[76:77], s[0:1], 0
    s_load_dwordx2 s[34:35], s[0:1], 88
    s_load_dwordx4 s[28:31], s[0:1], 8
    s_load_dwordx2 s[32:33], s[0:1], 24
    s_load_dwordx4 s[40:43], s[0:1], 48
    s_load_dwordx2 s[72:73], s[0:1], 80
    v_and_b32 v1, 63, v0
    v_lshrrev_b32 v2, 6, v0
    s_nop 0
    v_readfirstlane_b32 s3, v2
    s_and_b32 s4, s2, 7
    s_lshl_b32 s4, s4, 2
    s_lshr_b32 s5, s2, 3
    s_and_b32 s6, s5, 3
    s_add_u32 s4, s4, s6
    s_lshr_b32 s5, s2, 5
    s_lshl_b32 {S_WB}, s3, 12
    s_lshl_b32 s16, s5, 8
    s_lshl_b32 s17, s4, 3
    s_add_u32 s16, s16, s17
    s_lshl_b32 s17, s3, 1
    s_add_u32 s16, s16, s17
    s_lshl_b32 s17, s16, 10
    v_lshlrev_b32 v2, 4, v1
    s_waitcnt lgkmcnt(0)
    s_mov_b32 s8, s76
    s_and_b32 s9, s77, 0xffff
    s_mov_b32 s10, {2048*1024}
    s_mov_b32 s11, 0x20000
    buffer_load_dwordx4 v[4:7], v2, s[8:11], s17 offen
    buffer_load_dwordx4 v[8:11], v2, s[8:11], s17 offen offset:1024
    s_mov_b32 s20, s34
    s_and_b32 s21, s35, 0xffff
    s_mov_b32 s22, 0x10000000
    s_mov_b32 s23, 0x20000
    s_mov_b32 s36, s32
    s_and_b32 s37, s33, 0xffff
    s_mov_b32 s38, {0 if opts.get("kanow") else 512*8192}
    s_mov_b32 s39, 0x20000
    s_mov_b32 s44, s42
    s_and_b32 s45, s43, 0xffff
    s_and_b32 s41, s41, 0xffff
    s_cmp_lt_u32 s4, 28
    s_cselect_b32 s42, {0 if opts.get("kanow") else 512*3584}, 0
    s_mov_b32 s46, s42
    s_mov_b32 s43, 0x20000
    s_mov_b32 s47, 0x20000
    s_lshl_b32 {S_OX}, s5, 18
    s_add_u32 {S_OX}, {S_OX}, {WS_XN}
    s_add_u32 {S_OX}, {S_OX}, {S_WB}
    {"s_mov_b32 s50, 0xf0000000" if opts.get("kanox") else ""}
    s_lshl_b32 {S_OWQ}, s4, 8
    s_lshl_b32 {S_OGU}, s4, 7
    s_lshl_b32 s6, s3, 11
    s_add_u32 {S_MWQ}, s6, {GW}
    s_lshl_b32 s6, s3, 10
    s_add_u32 {S_MG}, s6, {GW + 8192}
    s_add_u32 {S_MU}, s6, {GW + 12288}
    v_lshrrev_b32 v12, 4, v1
    v_and_b32 v13, 15, v1
    v_lshlrev_b32 v14, 2, v12
    v_xor_b32 v14, v14, v13
    v_lshlrev_b32 v14, 4, v14
    s_lshl_b32 s6, s3, 3
    v_add_u32 v15, s6, v12
    v_lshlrev_b32 v15, 13, v15
    v_add_u32 {VO_WQ(0)}, v15, v14
    v_add_u32 {VO_WQ(1)}, {4*8192-1024}, {VO_WQ(0)}
    v_lshrrev_b32 v12, 3, v1
    v_and_b32 v13, 7, v1
    v_bfe_u32 v14, v1, 4, 1
    s_and_b32 s7, s3, 1
    s_lshl_b32 s7, s7, 1
    v_or_b32 v14, s7, v14
    v_lshlrev_b32 v14, 1, v14
    v_xor_b32 v14, v14, v13
    v_add_u32 v15, s6, v12
    s_movk_i32 s7, 3584
    v_mul_lo_u32 v15, v15, s7
    v_lshl_add_u32 {VO_G}, v14, 4, v15
    """)
    for c in range(3):
        gr, adv = w_dma(c)
        issue_groups(pr, gr); pr.extend(adv)
    if opts.get("wearly", 0):
        pr(f"""
        s_cmp_lt_u32 s3, 2
        s_cbranch_scc0 K_we_gu
        s_mov_b32 s64, s36
        s_mov_b32 s65, s37
        s_mov_b32 s66, s38
        v_lshrrev_b32 v12, 1, v1
        s_and_b32 s6, s3, 1
        s_lshl_b32 s6, s6, 5
        s_lshl_b32 s7, s5, 6
        s_add_u32 s6, s6, s7
        v_add_u32 v12, s6, v12
        v_lshlrev_b32 v12, 13, v12
        v_and_b32 v13, 1, v1
        v_lshl_add_u32 v12, v13, 7, v12
        s_lshl_b32 s6, s4, 8
        s_branch K_we_go
        K_we_gu:
        s_cmp_eq_u32 s3, 2
        s_cselect_b32 s64, s40, s44
        s_cselect_b32 s65, s41, s45
        s_mov_b32 s66, s42
        s_lshl_b32 s7, s5, 6
        v_add_u32 v12, s7, v1
        s_movk_i32 s7, 3584
        v_mul_lo_u32 v12, v12, s7
        s_lshl_b32 s6, s4, 7
        K_we_go:
        s_mov_b32 s67, 0x20000
        buffer_load_dword v249, v12, s[64:67], s6 offen
        """)
    if opts.get("ctouch", 0):
        pr("""
        s_lshr_b32 s6, s2, 3
        s_lshl_b32 s6, s6, 2
        s_add_u32 s6, s6, s3
        s_mul_i32 s7, s6, 43
        s_lshr_b32 s7, s7, 8
        s_mul_i32 s7, s7, 6
        s_sub_u32 s6, s6, s7
        """)
        code_touch(pr, "attn_kernel", "TEXT_END", "s6", 6)
    pr(f"""
    v_bfe_u32 v3, v1, 2, 3
    v_lshlrev_b32 v3, 14, v3
    v_lshrrev_b32 v12, 5, v1
    v_lshl_add_u32 v3, v12, 6, v3
    v_and_b32 v12, 3, v1
    s_lshr_b32 s18, s16, 8
    s_lshl_b32 s18, s18, 18
    s_and_b32 s19, s16, 255
    s_lshl_b32 s6, s19, 6
    s_add_u32 s18, s18, s6
    s_add_u32 s18, s18, {WS_XN}
    s_lshr_b32 s6, s19, 2
    s_and_b32 s6, s6, 3
    s_and_b32 s7, s6, 1
    s_lshl_b32 s7, s7, 1
    s_lshr_b32 s6, s6, 1
    s_mul_i32 s6, s6, 3
    s_xor_b32 s7, s7, s6
    v_xor_b32 v12, s7, v12
    v_lshl_add_u32 v3, v12, 4, v3
    """)
    ln_rows(pr, opts)
    pr(f"""
    s_lshl_b32 s6, s4, 19
    s_add_u32 s16, s28, s6
    s_addc_u32 s17, s29, 0
    s_and_b32 s17, s17, 0xffff
    s_mov_b32 s18, 524288
    s_mov_b32 s19, 0x20000
    s_add_u32 s8, s16, 16384
    s_addc_u32 s9, s17, 0
    s_mov_b32 s10, {524288-16384}
    s_mov_b32 s11, 0x20000
    s_add_u32 s12, s30, s6
    s_addc_u32 s13, s31, 0
    s_and_b32 s13, s13, 0xffff
    s_mov_b32 s14, 524288
    s_mov_b32 s15, 0x20000
    """)
    pr("s_waitcnt vmcnt(0)\ns_barrier")
    T(pr, 6)
    pr(f"""
    s_and_b32 s6, s5, 3
    s_lshl_b32 s6, s6, 6
    s_lshr_b32 s7, s5, 2
    s_lshl_b32 s7, s7, 2
    s_add_u32 s74, s6, s7
    s_cmp_lg_u32 s3, 0
    s_cbranch_scc1 K_xn_skip
    v_mov_b32 v2, s74
    v_mov_b32 v4, 1
    s_mov_b64 exec, 1
    global_atomic_add v2, v4, {SRD_DBG} sc1
    s_mov_b64 exec, -1
    K_xn_skip:
    """)
    pr(f"""
    v_bfe_u32 v2, v1, 2, 2
    v_and_b32 v3, 3, v1
    v_lshrrev_b32 v4, 4, v1
    v_lshl_add_u32 v5, v4, 3, v2
    v_lshlrev_b32 v6, 8, v5
    v_add_u32 v6, {GW}, v6
    v_lshlrev_b32 v7, 2, v2
    """)
    for ds in range(4):
        pr(f"""
        v_add_u32 v8, {4*ds}, v3
        v_xor_b32 v8, v8, v7
        v_lshl_add_u32 {VA_Q(ds)}, v8, 4, v6
        """)
    pr(f"""
    v_lshlrev_b32 v6, 7, v5
    v_add_u32 v6, {GW}, v6
    v_and_b32 v7, 1, v3
    v_lshl_add_u32 v6, v7, 3, v6
    v_bfe_u32 v7, v1, 3, 1
    v_and_b32 v8, 1, v4
    v_lshl_or_b32 v7, v8, 1, v7
    v_lshlrev_b32 v7, 1, v7
    v_lshrrev_b32 v9, 1, v3
    """)
    for cb in range(4):
        pr(f"""
        v_add_u32 v8, {2*cb}, v9
        v_xor_b32 v8, v8, v7
        v_lshl_add_u32 {VA_G(cb)}, v8, 4, v6
        """)
    act_lane_offset(pr, VO_X)
    pr(f"""
    v_lshrrev_b32 v2, 4, v1
    v_and_b32 v3, 15, v1
    v_lshlrev_b32 v4, 8, v2
    v_add_u32 v4, {S_WB}, v4
    """)
    for ii in range(4):
        pr(f"""
        v_add_u32 v5, {4*ii}, v2
        v_xor_b32 v5, v5, v3
        v_lshl_add_u32 {VOFFK(ii)}, v5, 4, v4
        """)
    for par in range(2):
        pr(f"""
        v_add_u32 v5, {4*par}, v2
        v_lshlrev_b32 v5, 1, v5
        v_xor_b32 v5, v5, v3
        v_lshl_add_u32 {VOFFV(par)}, v5, 4, v4
        """)
    pr(f"""
    v_and_b32 v2, 15, v1
    v_lshrrev_b32 v3, 4, v1
    v_lshlrev_b32 v5, 8, v2
    """)
    for ds in range(4):
        pr(f"""
        v_add_u32 v6, {4*ds}, v3
        v_xor_b32 v6, v6, v2
        v_lshl_add_u32 {VKA(ds)}, v6, 4, v5
        """)
    pr(f"""
    v_bfe_u32 v2, v1, 2, 2
    v_and_b32 v3, 3, v1
    v_lshrrev_b32 v4, 4, v1
    v_lshl_add_u32 v6, v4, 2, v2
    v_and_b32 v8, 7, v6
    v_lshlrev_b32 v8, 1, v8
    v_lshlrev_b32 v6, 8, v6
    v_add_u32 v6, 65536, v6
    v_and_b32 v7, 1, v3
    v_lshl_add_u32 v6, v7, 3, v6
    v_lshrrev_b32 v7, 1, v3
    """)
    for db in range(8):
        pr(f"""
        v_add_u32 v9, {2*db}, v7
        v_xor_b32 v9, v9, v8
        v_lshl_add_u32 {VVA(db)}, v9, 4, v6
        """)
    for i in range(128): pr(f"v_mov_b32 v{16+i}, 0")
    for i in range(128): pr(f"v_accvgpr_write_b32 a{i}, 0")
    for cb in range(16): pr.extend(a_reads(cb, 0))
    pr(f"""
    s_cmp_lg_u32 s3, 0
    s_cbranch_scc1 K_xn_wait
    v_mov_b32 v2, s74
    s_mov_b64 exec, 1
    """)
    poll(pr, "K_xn_poll", "v2", 32)
    pr(f"""
    s_mov_b64 exec, -1
    K_xn_wait:
    s_barrier
    """)
    T(pr, 7)
    for c in range(3):
        gr, adv = x_loads(c)
        issue_groups(pr, gr); pr.extend(adv)
    T(pr, 1)
    pr(f"s_mov_b32 {S_CNT}, 3")
    seg_a = pr.insts
    def full(c):
        xg, xa = x_loads((c + 3) & 3); wg_, wa = w_dma((c + 3) & 3)
        return gemm_period(c, xg + wg_, xa + wa)
    body = []
    for c in range(4): body += full(c)
    body += [Inst(f"s_sub_u32 {S_CNT}, {S_CNT}, 1"), Inst(f"s_cmp_lg_u32 {S_CNT}, 0"), Inst("s_cbranch_scc1 K_gloop")]
    def mk_touch():
        tp = Prog()
        tp(f"""
        s_load_dwordx2 s[40:41], s[0:1], 32
        s_load_dwordx2 s[42:43], s[0:1], 64
        s_and_b32 s51, s2, 3
        s_bfe_u32 s58, s2, 0x30003
        s_lshl_b32 s58, s58, 2
        s_lshr_b32 s59, s2, 6
        s_add_u32 s58, s58, s59
        s_lshl_b32 s58, s58, 2
        s_add_u32 s58, s58, s3
        s_lshl_b32 s58, s58, 4
        s_mul_i32 s59, s51, {24*64}
        s_add_u32 s59, s59, s58
        v_lshlrev_b32 v242, 7, v1
        v_add_u32 v243, 8192, v242
        """)
        tp2 = Prog()
        tp2(f"""
        s_waitcnt lgkmcnt(0)
        s_and_b32 s41, s41, 0xffff
        s_sub_u32 s42, s42, {64*65536}
        s_subb_u32 s43, s43, 0
        s_and_b32 s43, s43, 0xffff
        s_cmp_lt_u32 s59, 4096
        s_cselect_b32 s44, s40, s42
        s_cselect_b32 s45, s41, s43
        s_mov_b32 s46, {92*65536}
        s_cselect_b32 s46, {64*65536}, s46
        s_mov_b32 s47, 0x20000
        s_lshl_b32 s59, s59, 10
        s_cmp_lt_u32 s58, {24*64}
        s_cselect_b32 s59, s59, 0xf0000000
        """)
        tp3 = [Inst("buffer_load_dword v240, v242, s[44:47], s59 offen"), Inst("buffer_load_dword v241, v243, s[44:47], s59 offen")]
        return tp.insts, tp2.insts, tp3
    p2 = Prog()
    p2.extend(full(12))
    p2(f"s_mov_b32 s6, 0\ns_mov_b32 s7, 16384")
    p2.extend(gemm_period(13, dma_k(3, SRD_K0, "0") + dma_v(0, "s6"), []))
    p2.extend(gemm_period(14, dma_k(0, SRD_K, "s6") + dma_v(1, "s7"), []))
    p2.extend(gemm_period(15, dma_k(1, SRD_K, "s7"), [], read_next=False, nvm=None))
    T(p2, 2)
    p2(f"s_mov_b32 s6, {f32hex(QSCALE)}\ns_mov_b32 s7, {f32hex(QSCALE)}\ns_nop 7")
    for tb in range(4):
        for ds in range(4):
            for h in range(2):
                b = 16 + ((2 * ds + h) * 4 + tb) * 4
                p2(f"v_pk_mul_f32 v[{b}:{b+1}], v[{b}:{b+1}], s[6:7]\nv_pk_mul_f32 v[{b+2}:{b+3}], v[{b+2}:{b+3}], s[6:7]")
            for h in range(2):
                cb = 2 * ds + h
                for i in range(2):
                    p2(f"v_cvt_pk_bf16_f32 v{Qb(tb,ds)+2*h+i}, {QACC(cb,tb,2*i)}, {QACC(cb,tb,2*i+1)}")
    p2("s_cmp_ge_u32 s4, 28\ns_cbranch_scc1 K_noh")
    p2(f"""
    s_lshl_b32 s6, s5, 1
    s_lshr_b32 s7, s3, 1
    s_add_u32 s6, s6, s7
    s_mul_i32 s6, s6, {92*16384 + opts.get("actpad", 4096)}
    s_add_u32 s7, s4, 64
    s_lshl_b32 s7, s7, 14
    s_add_u32 s6, s6, s7
    s_and_b32 s7, s3, 1
    s_lshl_b32 s7, s7, 12
    s_add_u32 s6, s6, s7
    s_add_u32 s6, s6, {WS_ACT}
    """)
    act_lane_offset(p2, "v2", "v3")
    p2(f"""
    s_mov_b32 s26, {f32hex(-LOG2E)}
    s_mov_b32 s27, {f32hex(-LOG2E)}
    s_mov_b32 s78, 1.0
    s_mov_b32 s79, 1.0
    """)
    for tb in range(4):
        for e in range(2):
            t0 = 16 + e * 32
            for hh in range(2):
                cb = 2 * e + hh
                for r in range(4):
                    j = hh * 4 + r
                    p2(f"v_accvgpr_read_b32 v{t0+j}, {GACC(cb,tb,r)}")
                    p2(f"v_accvgpr_read_b32 v{t0+8+j}, {UACC(cb,tb,r)}")
            pk = lambda op, d, a, b: p2(f"{op} v[{d}:{d+1}], v[{a}:{a+1}], {b}")
            for j in range(0, 8, 2): pk("v_pk_mul_f32", t0 + 16 + j, t0 + j, "s[26:27]")
            for j in range(8): p2(f"v_exp_f32 v{t0+16+j}, v{t0+16+j}")
            for j in range(0, 8, 2): pk("v_pk_mul_f32", t0 + j, t0 + j, f"v[{t0+8+j}:{t0+9+j}]")
            for j in range(0, 8, 2): pk("v_pk_add_f32", t0 + 16 + j, t0 + 16 + j, "s[78:79]")
            for j in range(8): p2(f"v_rcp_f32 v{t0+16+j}, v{t0+16+j}")
            for j in range(0, 8, 2): pk("v_pk_mul_f32", t0 + j, t0 + j, f"v[{t0+16+j}:{t0+17+j}]")
            for i in range(4): p2(f"v_cvt_pk_bf16_f32 v{t0+24+i}, v{t0+2*i}, v{t0+2*i+1}")
            p2(f"buffer_store_dwordx4 v[{t0+24}:{t0+27}], v{2+e}, {SRD_WS}, s6 offen offset:{tb*1024}" + (" sc1" if opts.get("hst") else ""))
    p2("K_noh:")
    p2("s_mov_b32 s27, 0")
    p3 = Prog()
    p3("K_astart:")
    for i in range(128): p3(f"v_accvgpr_write_b32 a{i}, 0")
    for qb in range(4): p3(f"v_mov_b32 {L(qb)}, 0")
    for i in range(4): p3(f"v_mov_b32 v{128+i}, 0x3f803f80")
    for j in range(NS):
        for i in range(4): p3(f"v_mov_b32 v{LREGS[j]+i}, 0")
    p3(f"s_mov_b32 {S_OFF}, 32768")
    if opts.get("kvtouch"):
        D = opts.get("kvdist", 2) * 16384
        p3(f"""
        s_cmp_lt_u32 s3, 2
        s_cselect_b32 s56, s8, s12
        s_cselect_b32 s57, s9, s13
        s_cselect_b32 s58, s10, s14
        s_add_u32 s56, s56, {D}
        s_addc_u32 s57, s57, 0
        s_sub_u32 s58, s58, {D}
        s_mov_b32 s59, 0x20000
        s_lshl_b32 s6, s5, 11
        s_and_b32 s7, s3, 1
        s_lshl_b32 s7, s7, 10
        s_add_u32 s6, s6, s7
        v_lshlrev_b32 v243, 4, v1
        v_add_u32 v243, s6, v243
        """)
    p3("s_waitcnt vmcnt(0) lgkmcnt(0)\ns_barrier")
    T(p3, 3)
    for f in range(4): p3.add(k_read(0, f))
    if opts.get("sent", 1):
        p3(f"""
        s_and_b32 s58, s2, 3
        s_bfe_u32 s59, s2, 0x10002
        s_lshl_b32 s59, s59, 3
        s_bfe_u32 s6, s2, 0x30003
        s_add_u32 s59, s59, s6
        s_lshl_b32 s59, s59, 2
        s_lshr_b32 s6, s2, 6
        s_add_u32 s59, s59, s6
        s_mul_i32 s59, s59, {5*32768 + opts.get('slabpad', 256)}
        s_add_u32 s59, s59, {WS_SLAB}
        s_lshl_b32 s58, s58, 13
        s_add_u32 s59, s59, s58
        s_lshl_b32 s6, s3, 11
        s_add_u32 s59, s59, s6
        v_lshlrev_b32 v8, 4, v1
        v_mov_b32 v4, -1
        v_mov_b32 v5, -1
        v_mov_b32 v6, -1
        v_mov_b32 v7, -1
        """)
        for sl in range(5):
            for jj in range(2):
                p3(f"buffer_store_dwordx4 v[4:7], v8, {SRD_WS}, s59 offen offset:{jj*1024}" + (" sc1" if opts.get("hst") else ""))
            if sl < 4: p3("s_add_u32 s59, s59, 32768")
    ph, carry = emit_phase(-1, opts, [])
    p3.extend(ph)
    p3("s_cmp_lg_u32 s27, 0\ns_cbranch_scc1 K_havemax")
    p3("s_nop 7")
    for qb in range(4):
        m = f"v{244+qb}"
        p3(f"v_max3_f32 {m}, {S(0,0,qb,0)}, {S(0,0,qb,1)}, {S(0,0,qb,2)}")
        p3(f"v_max3_f32 {m}, {m}, {S(0,0,qb,3)}, {S(0,1,qb,0)}")
        p3(f"v_max3_f32 {m}, {m}, {S(0,1,qb,1)}, {S(0,1,qb,2)}")
        p3(f"v_max_f32 {m}, {m}, {S(0,1,qb,3)}")
        p3(f"v_mov_b32 v248, {m}")
        p3(f"v_permlane32_swap_b32 v248, {m}")
        p3(f"v_max_f32 {m}, {m}, v248")
        p3(f"v_mov_b32 v248, {m}")
        p3(f"v_permlane16_swap_b32 v248, {m}")
        p3(f"v_max_f32 {m}, {m}, v248")
    p3("K_havemax:")
    p3("s_nop 7")
    for qb in range(4):
        m = f"v{244+qb}"
        for r in range(4): p3(f"v_sub_f32 {NEGM(qb,r)}, 0, {m}")
        for kb in range(2):
            for r in range(4): p3(f"v_sub_f32 {S(0,kb,qb,r)}, {S(0,kb,qb,r)}, {m}")
    p2 = (p2, p3); p2a, p2 = p2
    ph, carry = emit_phase(0, opts, carry)
    p2.extend(ph)
    p2(f"s_mov_b32 {S_CNT}, 7")
    abody = []
    c2 = carry
    for p in range(1, 9):
        ph, c2 = emit_phase(p, opts, c2)
        abody += ph
    abody += [Inst(f"s_sub_u32 {S_CNT}, {S_CNT}, 1"), Inst(f"s_cmp_lg_u32 {S_CNT}, 0"), Inst("s_cbranch_scc1 K_aloop")]
    if opts.get("wtouch", 1):
        opts = dict(opts)
        ta, tb_, tc = mk_touch()
        opts["extra"] = {58: [(3, ta)], 59: [(41, tb_), (50, tc[:1]), (54, tc[1:])]}
        opts["vmadj"] = {30: 2, 31: 2}
        if opts.get("kbcode", 0):
            cp = Prog()
            cp("""
            s_getpc_b64 s[78:79]
            CT_kb:
            s_add_u32 s78, s78, oproj_kernel-CT_kb
            s_addc_u32 s79, s79, 0
            s_and_b32 s77, s3, 1
            s_lshl_b32 s77, s77, 13
            v_lshlrev_b32 v236, 7, v1
            v_add_u32 v236, s77, v236
            v_min_u32 v236, TEXT_END-oproj_kernel-4, v236
            v_mov_b32 v237, s79
            v_add_co_u32 v236, vcc, s78, v236
            v_addc_co_u32 v237, vcc, 0, v237, vcc
            """)
            opts["extra"][58].append((40, cp.insts))
            opts["extra"][59].append((58, [Inst("global_load_dword v238, v[236:237], off")]))
            opts["vmadj"] = {30: 3, 31: 3}
    tail = []
    c3 = c2
    for p in range(57, 65):
        ph, c3 = emit_phase(p, opts, c3)
        tail += ph
    tail += [c[1] if isinstance(c, tuple) else c for c in c3]
    post = Prog()
    T(post, 4)
    for qb in range(4):
        if qb >= 4 - NS:
            post(f"v_mov_b32 {L(qb)}, v{LREGS[qb - (4 - NS)]}")
            continue
        post(f"""
        v_mov_b32 v248, {L(qb)}
        v_permlane32_swap_b32 v248, {L(qb)}
        v_add_f32 {L(qb)}, {L(qb)}, v248
        v_mov_b32 v248, {L(qb)}
        v_permlane16_swap_b32 v248, {L(qb)}
        v_add_f32 {L(qb)}, {L(qb)}, v248
        """)
    post(f"""
    v_max3_f32 v248, {L(0)}, {L(1)}, {L(2)}
    v_max_f32 v248, v248, {L(3)}
    v_add_f32 v249, {L(0)}, {L(1)}
    v_add_f32 v250, {L(2)}, {L(3)}
    v_add_f32 v249, v249, v250
    s_mov_b32 s6, {f32hex(float(2**24))}
    v_cmp_nlt_f32 vcc, v248, s6
    v_cmp_u_f32 s[6:7], v249, v249
    s_or_b64 vcc, vcc, s[6:7]
    s_cmp_lg_u64 vcc, 0
    s_cselect_b32 s6, 1, 0
    v_mov_b32 v248, s6
    v_mov_b32 v249, 131072
    v_lshl_add_u32 v250, s3, 2, v249
    ds_write_b32 v250, v248
    s_waitcnt lgkmcnt(0)
    s_barrier
    ds_read_b128 v[248:251], v249
    s_waitcnt lgkmcnt(0)
    v_or3_b32 v248, v248, v249, v250
    v_or_b32 v248, v248, v251
    s_nop 0
    v_readfirstlane_b32 s6, v248
    s_xor_b32 s7, s27, 1
    s_and_b32 s6, s6, s7
    s_cmp_lg_u32 s6, 0
    s_cbranch_scc1 K_fallback
    """)
    for qb in range(4): post(f"v_rcp_f32 {L(qb)}, {L(qb)}")
    post(f"""
    s_lshl_b32 s6, s5, 1
    s_lshr_b32 s7, s3, 1
    s_add_u32 s6, s6, s7
    s_mul_i32 s6, s6, {92*16384 + opts.get("actpad", 4096)}
    s_lshl_b32 s7, s4, 15
    s_add_u32 s6, s6, s7
    s_and_b32 s7, s3, 1
    s_lshl_b32 s7, s7, 12
    s_add_u32 s6, s6, s7
    s_add_u32 s52, s6, {WS_ACT}
    s_add_u32 s53, s52, 16384
    """)
    act_lane_offset(post, "v2", "v3")
    for qb in range(4):
        lp = 226 + (qb & ~1)
        osel = "op_sel:[0,0] op_sel_hi:[1,0]" if qb % 2 == 0 else "op_sel:[0,1] op_sel_hi:[1,1]"
        for e in range(4):
            t0 = 16 + (e & 1) * 16
            for hh in range(2):
                for r in range(4):
                    post(f"v_accvgpr_read_b32 v{t0+hh*4+r}, {O(2*e+hh,qb,r)}")
            for j in range(0, 8, 2): post(f"v_pk_mul_f32 v[{t0+j}:{t0+j+1}], v[{t0+j}:{t0+j+1}], v[{lp}:{lp+1}] {osel}")
            for i in range(4): post(f"v_cvt_pk_bf16_f32 v{t0+8+i}, v{t0+2*i}, v{t0+2*i+1}")
            post(f"buffer_store_dwordx4 v[{t0+8}:{t0+11}], v{2+(e&1)}, {SRD_WS}, s{52+(e>>1)} offen offset:{qb*1024}" + {0: "", 1: " nt", 2: " sc1", 3: " sc0"}[opts.get("ost", 0)])
    if opts.get("time"):
        post("s_waitcnt vmcnt(0)")
        T(post, 5)
        post(f"""
        s_waitcnt lgkmcnt(0)
        s_lshl_b32 s6, s2, 2
        s_add_u32 s6, s6, s3
        s_lshl_b32 s6, s6, 6
        s_add_u32 s6, s6, {WS_TIME}
        v_mov_b32 v3, s6
        """)
        for i in range(8):
            post(f"v_mov_b32 v2, s{SB(i)}\nbuffer_store_dword v2, v3, {SRD_WS}, 0 offen offset:{4*i}")
        for i in range(4):
            post(f"v_mov_b32 v2, s{64+2*i}\nbuffer_store_dword v2, v3, {SRD_WS}, 0 offen offset:{32+4*i}")
    post("KA_end:\ns_endpgm")
    fb = Prog()
    fb(f"""
    K_fallback:
    s_waitcnt vmcnt(0) lgkmcnt(0)
    s_barrier
    s_mov_b32 s27, 1
    v_and_b32 v2, 15, v1
    v_lshrrev_b32 v3, 4, v1
    v_lshlrev_b32 v2, 8, v2
    v_lshl_add_u32 v2, v3, 4, v2
    s_mov_b32 s6, 0
    """)
    for qb in range(4): fb(f"v_mov_b32 v{244+qb}, 0xff800000")
    fb("K_fb_loop:")
    for ds in range(4):
        fb(f"buffer_load_dwordx4 v[{16+4*ds}:{19+4*ds}], v2, {SRD_K0}, s6 offen offset:{64*ds}")
    fb("s_waitcnt vmcnt(0)")
    for qb in range(4):
        for ds in range(4):
            c = "0" if ds == 0 else f"v[{32+4*qb}:{35+4*qb}]"
            fb(f"v_mfma_f32_16x16x32_bf16 v[{32+4*qb}:{35+4*qb}], v[{16+4*ds}:{19+4*ds}], {Q(qb,ds)}, {c}")
    fb("s_nop 15")
    for qb in range(4):
        b = 32 + 4 * qb
        fb(f"v_max3_f32 v{244+qb}, v{244+qb}, v{b}, v{b+1}")
        fb(f"v_max3_f32 v{244+qb}, v{244+qb}, v{b+2}, v{b+3}")
    fb(f"""
    s_add_u32 s6, s6, 4096
    s_cmp_lt_u32 s6, 524288
    s_cbranch_scc1 K_fb_loop
    """)
    for qb in range(4):
        m = f"v{244+qb}"
        fb(f"""
        v_mov_b32 v248, {m}
        s_nop 1
        v_permlane32_swap_b32 v248, {m}
        v_max_f32 {m}, {m}, v248
        v_mov_b32 v248, {m}
        s_nop 1
        v_permlane16_swap_b32 v248, {m}
        v_max_f32 {m}, {m}, v248
        """)
    fb("s_mov_b32 s6, 0\ns_mov_b32 s7, 16384")
    issue_groups(fb, dma_k(3, SRD_K0, "0") + dma_v(0, "s6") + dma_k(0, SRD_K, "s6") + dma_v(1, "s7") + dma_k(1, SRD_K, "s7"))
    fb("s_branch K_astart")
    fb2 = check_hazards([Inst("s_nop 15")] + fb.insts, fix=True)[1:]
    a2, st = lin(seg_a, None, [])
    b2, st = auto_wait_loop(body, st); b2 = merge_adjacent_waits(b2)
    q1, st = lin(p2a.insts, st, b2[-40:])
    q2, st = lin(p2.insts, WaitState(), q1[-40:])
    q2 = q1 + q2
    ab2, st = auto_wait_loop(abody, st); ab2 = merge_adjacent_waits(ab2)
    t2, st = lin(tail, st, ab2[-40:])
    po2, st = lin(post.insts, st, t2[-40:])
    for nm, seq in (("gloop", a2[-60:] + b2 + b2 + q2[:80]), ("aloop", q2[-60:] + ab2 + ab2 + t2 + po2[:40])):
        for p_ in check_hazards(seq): print("HAZARD", nm, p_, file=sys.stderr)
    return a2 + [Inst("K_gloop:")] + b2 + q2 + [Inst("K_aloop:")] + ab2 + t2 + po2 + fb2

def gen_kb(opts):
    T = lambda pr, idx: stamp(pr, opts, idx)
    NCH = 24
    ACC = lambda st_, cb, tb, r=None: (f"v[{16+st_*64+(cb*2+tb)*4}:{16+st_*64+(cb*2+tb)*4+3}]" if r is None else f"v{16+st_*64+(cb*2+tb)*4+r}")
    def AF3(s, cb, u=None):
        b = (s * 8 + cb) * 4
        return f"a[{b}:{b+3}]" if u is None else f"a[{b+2*u}:{b+2*u+1}]"
    G2 = opts.get('kbG', 0)
    R = 8 if G2 else opts.get('kbR', 4); D = R - 1
    RB = (opts.get('kbRB', 4) if G2 else R); DB = (RB - 1 if G2 else D); DW = 5 if G2 else D
    def BF3(st, s, tb):
        b = 64 + st * 16 + (s * 2 + tb) * 4
        return f"a[{b}:{b+3}]"
    VA = lambda cb, hi=0: f"v{208+hi*8+cb}"
    VOW = lambda ii: f"v{224+ii}"; VOA = lambda s: f"v{228+s}"
    SRD_W = "s[8:11]"; SRD_A = "s[12:15]"
    S_GP = "s19"; S_OA = "s24"; S_OW = "s26"; S_MW = "s25"
    PART = "s48"; TM = "s49"; TN = "s50"
    def a_rd(s, cb, stage):
        return [Inst(f"ds_read_b64_tr_b16 {AF3(s,cb,u)}, {VA(cb, stage >> 2)} offset:{(stage & 3)*16384 + (32*s+16*u)*256}") for u in range(2)]
    def sel_w():
        return [Inst(f"s_cmp_lt_u32 {S_GP}, 64"), Inst("s_cselect_b32 s8, s40, s42"), Inst("s_cselect_b32 s9, s41, s43"), Inst(f"s_add_u32 {S_GP}, {S_GP}, {R}")]
    def dma_w(stage):
        r = [[Inst(f"s_add_u32 m0, {S_MW}, {stage*16384}"), Inst(f"buffer_load_dwordx4 {VOW(0)}, {SRD_W}, {S_OW} offen lds")]]
        for ii in range(1, 4):
            r.append([Inst(f"buffer_load_dwordx4 {VOW(ii)}, {SRD_W}, {S_OW} offen offset:{ii*1024} lds")])
        return r, [Inst(f"s_add_u32 {S_OW}, {S_OW}, 65536")]
    def ld_a(st):
        so = S_OA
        if opts.get("kbuniq"):
            so = f"s{60 + (st & 3)}"
        r = [[Inst(f"buffer_load_dwordx4 {BF3(st,s,tb)}, {VOA(s)}, {SRD_A}, {so} offen offset:{tb*1024}")] for s in range(2) for tb in range(2)]
        adv = [Inst(f"s_add_u32 {S_OA}, {S_OA}, 16384")]
        if opts.get("kbuniq"):
            adv = [Inst(f"s_add_u32 s{60+i}, s{60+i}, 16384") for i in range(4)]
        return r, adv
    def period(c, accset):
        st = c % RB
        NG = 32
        pre = [[] for _ in range(NG + 1)]; mem = [[] for _ in range(NG + 1)]; gaps = [[] for _ in range(NG + 1)]
        pre[0] += [Hint(*[BF3(st, s, t) for s in range(2) for t in range(2)])]
        if not G2: pre[0] += [Inst(f"s_waitcnt vmcnt({8*(D-2)})"), Inst("s_barrier")]
        elif c % 2 == 0: pre[0] += [Inst("s_waitcnt vmcnt(16)"), Inst("s_barrier")]
        ag, aadv = ld_a((c + DB) % RB)
        wg_, wadv = dma_w((c + DW) % R)
        for s in range(2):
            for cb in range(8):
                k = 2 * (s * 8 + cb) + 2
                rd = a_rd(s, cb, (c + 1) % R)
                if k < 31: mem[k].append(rd[0]); mem[k + 1].append(rd[1])
                else: mem[31].append(rd[0]); mem[31].append(rd[1])
        mem[0] += ag[0]; mem[1] += ag[1]
        if (c + DW) % R == 0: gaps[0] += sel_w()[:1]; gaps[1] += sel_w()[1:2]; gaps[2] += sel_w()[2:3]; gaps[3] += sel_w()[3:]
        mem[5] += ag[2]; mem[8] += ag[3]; gaps[9] += aadv
        gaps[11] += wg_[0][:-1]
        for gp, d in zip([12, 16, 20, 24], wg_): mem[gp] += d[-1:]
        gaps[26] += wadv
        out = []
        for s in range(2):
            for cb in range(8):
                if cb == 0 or (s == 0 and cb == 4): pre[2 * (s * 8 + cb)].insert(0, Hint(*[AF3(s, c_) for c_ in range(cb, 8 if s else cb + 4)] + ([AF3(0, c_) for c_ in range(4, 8)] if False else [])))
                for tb in range(2):
                    k = 2 * (s * 8 + cb) + tb
                    d = ACC(accset, cb, tb)
                    out += pre[k]
                    out.append(Inst(f"v_mfma_f32_16x16x32_bf16 {d}, {AF3(s,cb)}, {BF3(st,s,tb)}, {d}"))
                    out += mem[k]; out += gaps[k]
        return out
    post = Prog()
    post("s_cmp_ge_u32 s2, 256\ns_cbranch_scc1 KB_end")
    T(post, 0)
    post(f"""
    s_load_dwordx2 s[40:41], s[0:1], 32
    s_load_dwordx2 s[42:43], s[0:1], 64
    s_load_dwordx2 s[34:35], s[0:1], 88
    s_load_dwordx2 s[30:31], s[0:1], 0
    s_load_dwordx2 s[32:33], s[0:1], 72
    s_load_dwordx2 s[72:73], s[0:1], 80
    v_and_b32 v1, 63, v0
    v_lshrrev_b32 v2, 6, v0
    s_nop 0
    v_readfirstlane_b32 s3, v2
    s_and_b32 {PART}, s2, 3
    s_bfe_u32 {TM}, s2, 0x10002
    s_lshl_b32 {TM}, {TM}, 3
    s_bfe_u32 s6, s2, 0x30003
    s_add_u32 {TM}, {TM}, s6
    s_lshr_b32 {TN}, s2, 6
    s_mul_i32 {S_GP}, {PART}, {NCH}
    s_sub_u32 s14, 92, {S_GP}
    s_min_u32 s14, s14, {NCH}
    s_lshl_b32 s14, s14, 14
    s_mul_i32 s6, {TM}, {92*16384 + opts.get("actpad", 4096)}
    s_lshl_b32 s7, {S_GP}, 14
    s_add_u32 s6, s6, s7
    s_add_u32 s36, s6, {WS_ACT}
    s_lshl_b32 {S_OA}, s3, 11
    s_lshl_b32 {S_OW}, {S_GP}, 16
    s_lshl_b32 s7, {TN}, 8
    s_add_u32 {S_OW}, {S_OW}, s7
    s_lshl_b32 {S_MW}, s3, 12
    v_lshrrev_b32 v2, 4, v1
    v_and_b32 v3, 15, v1
    s_lshl_b32 s7, s3, 4
    """)
    for ii in range(4):
        post(f"""
        v_add_u32 v4, {4*(ii&1)}, v2
        v_lshlrev_b32 v4, 1, v4
        v_xor_b32 v4, v4, v3
        v_lshlrev_b32 v4, 4, v4
        v_add_u32 v5, s7, v2
        v_add_u32 v5, {4*ii}, v5
        v_lshl_add_u32 v4, v5, 10, v4
        v_subrev_u32 {VOW(ii)}, {1024*ii}, v4
        """)
    act_lane_offset(post, VOA(0), VOA(1))
    post(f"""
    s_waitcnt lgkmcnt(0)
    s_and_b32 s41, s41, 0xffff
    s_sub_u32 s42, s42, {64*65536}
    s_subb_u32 s43, s43, 0
    s_and_b32 s43, s43, 0xffff
    s_mov_b32 s10, {92*65536}
    s_mov_b32 s11, 0x20000
    s_mov_b32 s20, s34
    s_and_b32 s21, s35, 0xffff
    s_mov_b32 s22, 0x10000000
    s_mov_b32 s23, 0x20000
    s_add_u32 s12, s34, s36
    s_addc_u32 s13, s35, 0
    s_and_b32 s13, s13, 0xffff
    s_mov_b32 s15, 0x20000
    """)
    if opts.get("kbuniq"):
        for i in range(4):
            post(f"s_cmp_eq_u32 {TN}, {i}\ns_cselect_b32 s{60+i}, {S_OA}, 0xf0000000")
        if opts.get("kbuniq") == 2:
            post(f"s_and_b32 s6, {TM}, 7\ns_cmp_eq_u32 s6, 0\ns_cselect_b32 {S_OW}, {S_OW}, 0xf0000000")
    post.extend(sel_w())
    if G2:
        for c in range(3): gr, adv = dma_w(c); issue_groups(post, gr); post.extend(adv)
        for c in range(3): gr, adv = ld_a(c); issue_groups(post, gr); post.extend(adv)
        for c in range(3, 5): gr, adv = dma_w(c); issue_groups(post, gr); post.extend(adv)
        for c in range(3, DB): gr, adv = ld_a(c); issue_groups(post, gr); post.extend(adv)
    else:
        for c in range(D):
            gr, adv = dma_w(c); issue_groups(post, gr); post.extend(adv)
            gr, adv = ld_a(c); issue_groups(post, gr); post.extend(adv)
    NINI = 4 * DW + 4 * DB
    NT = 0
    if opts.get("tlbwarm", 0):
        NT += 2
        post(f"""
        s_lshl_b32 s6, {TM}, 2
        s_add_u32 s6, s6, {TN}
        s_mul_i32 s6, s6, {5*32768 + opts.get('slabpad', 256)}
        s_add_u32 s6, s6, {WS_SLAB + 5*32768}
        v_mov_b32 v4, 0
        buffer_load_dword v230, v4, {SRD_WS}, s6 offen
        s_mov_b32 s44, s32
        s_and_b32 s45, s33, 0xffff
        s_mov_b32 s46, {2048*1024}
        s_mov_b32 s47, 0x20000
        s_lshl_b32 s6, {TM}, 17
        buffer_load_dword v231, v4, s[44:47], s6 offen
        """)
    if opts.get("ctouch", 0):
        post("s_and_b32 s6, s3, 1")
        code_touch(post, "oproj_kernel", "TEXT_END", "s6", 2, vt=(238, 239, 240))
        NT += 1
    if opts.get("kbtouch"):
        NT += 5
        post(f"""
        v_and_b32 v4, 31, v1
        v_lshlrev_b32 v4, 7, v4
        v_lshrrev_b32 v5, 5, v1
        v_lshl_add_u32 v4, v5, 16, v4
        s_lshl_b32 s6, {TN}, 14
        s_lshl_b32 s7, s3, 12
        s_add_u32 s6, s6, s7
        s_add_u32 s6, s6, {4*16384}
        buffer_load_dword v232, v4, {SRD_A}, s6 offen
        s_add_u32 s6, s6, {8*16384}
        buffer_load_dword v233, v4, {SRD_A}, s6 offen
        s_add_u32 s6, s6, {8*16384}
        buffer_load_dword v234, v4, {SRD_A}, s6 offen
        """)
        post(f"""
        s_and_b32 s58, {TM}, 7
        s_lshl_b32 s58, s58, 2
        s_add_u32 s58, s58, {TN}
        s_lshl_b32 s58, s58, 2
        s_add_u32 s58, s58, s3
        s_mul_i32 s58, s58, 10
        s_add_u32 s58, s58, 256
        s_mul_i32 s59, {PART}, {24*64}
        s_add_u32 s59, s59, s58
        s_cmp_lt_u32 s59, 4096
        s_cselect_b32 s44, s40, s42
        s_cselect_b32 s45, s41, s43
        s_cselect_b32 s46, {64*65536}, s10
        s_mov_b32 s47, 0x20000
        s_lshl_b32 s59, s59, 10
        v_lshlrev_b32 v4, 7, v1
        v_add_u32 v5, 8192, v4
        buffer_load_dword v235, v4, s[44:47], s59 offen
        v_cmp_gt_u32 vcc, 16, v1
        s_and_saveexec_b64 s[6:7], vcc
        buffer_load_dword v236, v5, s[44:47], s59 offen
        s_mov_b64 exec, s[6:7]
        """)
    post(f"""
    v_bfe_u32 v2, v1, 2, 2
    v_and_b32 v3, 3, v1
    v_lshrrev_b32 v4, 4, v1
    v_lshl_add_u32 v6, v4, 2, v2
    v_and_b32 v8, 7, v6
    v_lshlrev_b32 v8, 1, v8
    v_lshlrev_b32 v6, 8, v6
    v_and_b32 v7, 1, v3
    v_lshl_add_u32 v6, v7, 3, v6
    v_lshrrev_b32 v7, 1, v3
    """)
    for cb in range(8):
        post(f"""
        v_add_u32 v9, {2*cb}, v7
        v_xor_b32 v9, v9, v8
        v_lshl_add_u32 {VA(cb)}, v9, 4, v6
        v_add_u32 {VA(cb,1)}, 65536, {VA(cb)}
        """)
    for i in range(128): post(f"v_mov_b32 v{16+i}, 0")
    post(f"""
    s_mov_b32 s56, {24//R}
    s_mov_b32 s57, 0
    s_cmp_eq_u32 {PART}, 2
    s_cselect_b32 s56, {16//R}, s56
    s_cselect_b32 s57, {8//R}, s57
    s_cmp_eq_u32 {PART}, 3
    s_cselect_b32 s56, 0, s56
    s_cselect_b32 s57, {24//R if R == 8 else 5}, s57
    s_waitcnt vmcnt({NINI-4+NT})
    s_barrier
    """)
    T(post, 9)
    for s in range(2):
        for cb in range(8): post.extend(a_rd(s, cb, 0))
    post("s_cmp_eq_u32 s56, 0\ns_cbranch_scc1 K3_l1pre")
    body0 = []; body1 = []
    for c in range(R): body0 += period(c, 0); body1 += period(c, 1)
    body0 += [Inst("s_sub_u32 s56, s56, 1"), Inst("s_cmp_lg_u32 s56, 0"), Inst("s_cbranch_scc1 K3_loop0")]
    mid = [Inst("K3_l1pre:"), Inst("s_cmp_eq_u32 s57, 0"), Inst("s_cbranch_scc1 K3_post")]
    body1 += [Inst("s_sub_u32 s57, s57, 1"), Inst("s_cmp_lg_u32 s57, 0"), Inst("s_cbranch_scc1 K3_loop1")]
    fin = Prog()
    fin("K3_post:")
    fin("s_waitcnt lgkmcnt(0)\ns_nop 15")
    T(fin, 10)
    fin(f"""
    s_lshl_b32 s7, {TM}, 2
    s_add_u32 s7, s7, {TN}
    s_mul_i32 s58, s7, {5*32768 + opts.get('slabpad', 256)}
    s_add_u32 s58, s58, {WS_SLAB}
    s_lshl_b32 s59, s3, 13
    s_add_u32 s59, s59, s58
    s_lshl_b32 s6, {PART}, 15
    s_add_u32 s6, s6, s59
    v_lshlrev_b32 v2, 4, v1
    s_mov_b32 s36, 0xfffffffe
    s_cmp_eq_u32 {PART}, 3
    s_cbranch_scc1 K3_st1
    """)
    def slab_store(base):
        for j in range(8):
            t0 = 144 + (j & 3) * 4
            for i in range(4): fin(f"v_cvt_pk_bf16_f32 v{t0+i}, v{16+base+j*8+2*i}, v{16+base+j*8+2*i+1}")
            if opts.get("sent", 1):
                for i in range(4): fin(f"v_min_u32 v{t0+i}, s36, v{t0+i}")
            if j == 4: fin("s_add_u32 s6, s6, 4096")
            fin(f"buffer_store_dwordx4 v[{t0}:{t0+3}], v2, {SRD_WS}, s6 offen offset:{(j%4)*1024} sc1")
    slab_store(0)
    fin(f"""
    K3_st1:
    s_cmp_lt_u32 {PART}, 2
    s_cbranch_scc1 K3_sync
    s_add_u32 s6, {PART}, 1
    s_lshl_b32 s6, s6, 15
    s_add_u32 s6, s6, s59
    """)
    slab_store(64)
    fin(f"""
    K3_sync:
    s_mov_b32 s8, s30
    s_and_b32 s9, s31, 0xffff
    s_mov_b32 s10, {2048*1024}
    s_mov_b32 s11, 0x20000
    s_mov_b32 s12, s32
    s_and_b32 s13, s33, 0xffff
    s_mov_b32 s14, {2048*1024}
    s_mov_b32 s15, 0x20000
    s_lshl_b32 s6, {TM}, 7
    s_lshl_b32 s74, {PART}, 5
    s_add_u32 s6, s6, s74
    s_lshl_b32 s6, s6, 10
    s_lshl_b32 s74, {TN}, 8
    s_add_u32 s6, s6, s74
    s_lshl_b32 s74, s3, 6
    s_add_u32 s37, s6, s74
    v_and_b32 v3, 15, v1
    v_lshrrev_b32 v4, 4, v1
    v_lshlrev_b32 v3, 10, v3
    v_lshl_add_u32 v3, v4, 3, v3
    v_add_u32 v4, 16384, v3
    """)
    for jj in range(2):
        for tb in range(2):
            b = 200 + (jj * 2 + tb) * 2
            fin(f"buffer_load_dwordx2 v[{b}:{b+1}], v{3+tb}, s[8:11], s37 offen offset:{jj*32}")
    fin(f"""
    s_lshl_b32 s59, {PART}, 13
    s_add_u32 s59, s59, s58
    s_lshl_b32 s6, s3, 11
    s_add_u32 s59, s59, s6
    """)
    if opts.get("sent", 1):
        fin("K3_retry:")
        for sl in range(5):
            fin(f"s_add_u32 s6, s59, {sl*32768}")
            for jj in range(2):
                b = 16 + (sl * 2 + jj) * 4
                fin(f"buffer_load_dwordx4 v[{b}:{b+3}], v2, {SRD_WS}, s6 offen offset:{jj*1024} sc1")
        fin("s_waitcnt vmcnt(0)")
        fin("v_max3_u32 v60, v16, v17, v18")
        for i in range(19, 55, 2): fin(f"v_max3_u32 v60, v60, v{i}, v{i+1}")
        fin("v_max_u32 v60, v60, v55")
        fin("""
        v_cmp_eq_u32 vcc, -1, v60
        s_nop 4
        s_cbranch_vccz K3_ready
        s_sleep 1
        s_branch K3_retry
        K3_ready:
        """)
        T(fin, 11)
    else:
        fin(f"""
        s_waitcnt vmcnt(4)
        s_barrier
        s_cmp_lg_u32 s3, 0
        s_cbranch_scc1 K3_wait
        s_and_b32 s6, s7, 3
        s_lshl_b32 s6, s6, 6
        s_lshr_b32 s74, s7, 4
        s_lshl_b32 s74, s74, 2
        s_add_u32 s6, s6, s74
        s_bfe_u32 s74, s7, 0x20002
        s_lshl_b32 s74, s74, 3
        s_lshl_b32 s75, 1, s74
        v_mov_b32 v6, s6
        v_mov_b32 v7, s75
        s_mov_b64 exec, 1
        global_atomic_add v6, v7, {SRD_DBG} sc1
        """)
        poll(fin, "K3_spin", "v6", 4, shift="s74", sleep=1)
        fin(f"""
        s_mov_b64 exec, -1
        K3_wait:
        s_barrier
        """)
        T(fin, 11)
        for sl in range(5):
            fin(f"s_add_u32 s6, s59, {sl*32768}")
            for jj in range(2):
                b = 16 + (sl * 2 + jj) * 4
                fin(f"buffer_load_dwordx4 v[{b}:{b+3}], v2, {SRD_WS}, s6 offen offset:{jj*1024} sc1")
    fin(f"s_mov_b32 s7, {f32hex(-LOG2E)}")
    for jj in range(2):
        for tb in range(2):
            src = lambda sl, i: f"v{16+(sl*2+jj)*4+tb*2+i}"
            sv = [f"v{60+r}" for r in range(4)]; yv = [f"v{64+r}" for r in range(4)]; tv = [f"v{68+r}" for r in range(4)]
            def unp(dst, sl):
                fin(f"v_lshlrev_b32 {dst[0]}, 16, {src(sl,0)}\nv_and_b32 {dst[1]}, 0xffff0000, {src(sl,0)}")
                fin(f"v_lshlrev_b32 {dst[2]}, 16, {src(sl,1)}\nv_and_b32 {dst[3]}, 0xffff0000, {src(sl,1)}")
            unp(sv, 0); unp(tv, 1)
            for r in range(4): fin(f"v_add_f32 {sv[r]}, {sv[r]}, {tv[r]}")
            unp(tv, 2)
            for r in range(4): fin(f"v_add_f32 {sv[r]}, {sv[r]}, {tv[r]}")
            unp(yv, 3); unp(tv, 4)
            for r in range(4): fin(f"v_add_f32 {yv[r]}, {yv[r]}, {tv[r]}")
            for r in range(4): fin(f"v_mul_f32 {tv[r]}, s7, {yv[r]}")
            for r in range(4): fin(f"v_exp_f32 {tv[r]}, {tv[r]}")
            for r in range(4): fin(f"v_add_f32 {tv[r]}, 1.0, {tv[r]}")
            for r in range(4): fin(f"v_rcp_f32 {tv[r]}, {tv[r]}")
            for r in range(4): fin(f"v_mul_f32 {yv[r]}, {yv[r]}, {tv[r]}")
            xb = 200 + (jj * 2 + tb) * 2
            fin(f"v_lshlrev_b32 {tv[0]}, 16, v{xb}\nv_and_b32 {tv[1]}, 0xffff0000, v{xb}\nv_lshlrev_b32 {tv[2]}, 16, v{xb+1}\nv_and_b32 {tv[3]}, 0xffff0000, v{xb+1}")
            for r in range(4): fin(f"v_fma_f32 {sv[r]}, {sv[r]}, {yv[r]}, {tv[r]}")
            ob = 72 + 2 * ((jj * 2 + tb) & 1)
            fin(f"v_cvt_pk_bf16_f32 v{ob}, {sv[0]}, {sv[1]}\nv_cvt_pk_bf16_f32 v{ob+1}, {sv[2]}, {sv[3]}")
            fin(f"buffer_store_dwordx2 v[{ob}:{ob+1}], v{3+tb}, s[12:15], s37 offen offset:{jj*32}")
    if opts.get("time"):
        fin("s_waitcnt vmcnt(0)")
        T(fin, 8)
        fin(f"""
        s_waitcnt lgkmcnt(0)
        s_lshl_b32 s6, s2, 2
        s_add_u32 s6, s6, s3
        s_lshl_b32 s6, s6, 6
        s_add_u32 s6, s6, {WS_TIME + 65536}
        v_mov_b32 v3, s6
        """)
        for k_, i in enumerate((0, 9, 10, 11, 8)):
            fin(f"v_mov_b32 v2, s{SB(i)}\nbuffer_store_dword v2, v3, {SRD_WS}, 0 offen offset:{4*k_}")
        for i in range(2):
            fin(f"v_mov_b32 v2, s{64+2*i}\nbuffer_store_dword v2, v3, {SRD_WS}, 0 offen offset:{32+4*i}")
    if opts.get("dbgtime"):
        fin(f"""
        s_cmp_lg_u32 s2, {opts.get("dbgwg", 0)}
        s_cbranch_scc1 KB_end
        s_cmp_lg_u32 s3, 0
        s_cbranch_scc1 KB_end
        s_waitcnt vmcnt(0)
        v_lshlrev_b32 v2, 2, v1
        v_add_u32 v2, {WS_TIME + opts.get("dbgwg", 0) * 256}, v2
        buffer_load_dword v3, v2, {SRD_WS}, 0 offen sc1
        s_waitcnt vmcnt(0)
        v_readfirstlane_b32 s6, v3
        s_nop 1
        v_subrev_u32 v3, s6, v3
        v_mov_b32 v4, s{SB(0)}
        v_subrev_u32 v4, s6, v4
        v_mov_b32 v5, s{SB(8)}
        v_subrev_u32 v5, s6, v5
        v_mov_b32 v6, s{SB(9)}
        v_subrev_u32 v6, s6, v6
        v_mov_b32 v7, s{SB(10)}
        v_subrev_u32 v7, s6, v7
        v_cmp_eq_u32 vcc, 8, v1
        s_nop 1
        v_cndmask_b32 v3, v3, v4, vcc
        v_cmp_eq_u32 vcc, 9, v1
        s_nop 1
        v_cndmask_b32 v3, v3, v6, vcc
        v_cmp_eq_u32 vcc, 10, v1
        s_nop 1
        v_cndmask_b32 v3, v3, v7, vcc
        v_cmp_eq_u32 vcc, 11, v1
        s_nop 1
        v_cndmask_b32 v3, v3, v5, vcc
        v_lshlrev_b32 v2, 2, v1
        v_add_u32 v2, 16, v2
        v_cmp_gt_u32 vcc, 12, v1
        s_and_saveexec_b64 s[6:7], vcc
        global_store_dword v2, v3, {SRD_DBG}
        """)
    fin("KB_end:\ns_endpgm")
    po2, st = lin(post.insts, None, [])
    st_post = st.copy()
    b0, st = auto_wait_loop(body0, st); b0 = merge_adjacent_waits(b0)
    b1, st = auto_wait_loop_multi(body1, [st_post, st]); b1 = merge_adjacent_waits(b1)
    f2, st = lin(fin.insts, st, b1[-40:])
    for nm, seq in (("l3", po2[-40:] + b0 + b0 + b1 + b1 + f2[:30]),):
        for p_ in check_hazards(seq): print("HAZARD", nm, p_, file=sys.stderr)
    return po2 + [Inst("K3_loop0:")] + b0 + mid + [Inst("K3_loop1:")] + b1 + f2

def gen(opts):
    hdr = f"""; @launch kernel=attn_kernel grid=(256,1,1) block=(256,1,1) lds=131328
; @launch kernel=oproj_kernel grid=(256,1,1) block=(256,1,1) lds=131072
.amdgcn_target "amdgcn-amd-amdhsa--gfx950"
.text
"""
    return hdr + kernel_text("attn_kernel", gen_ka(opts), 512, 256) + kernel_text("oproj_kernel", gen_kb(opts) + [Inst("TEXT_END:")], 384, 256)

if __name__ == "__main__":
    opts = {}
    for a in sys.argv[2:]:
        k, _, v = a.partition("=")
        opts[k] = int(v) if v else 1
    open(sys.argv[1], "w").write(gen(opts))
```

```python
import sys, math
sys.path.insert(0, "dev")
from asmdsl import *
from gen import (NAME, WS_XN, WS_ACT, WS_SLAB, WS_TIME, LOG2E, QSCALE, f32hex, kernel_text, finish, rbf16,
                 S, P, NEGM, Qb, Q, VKA, VVA, VOFFK, VOFFV, L, O, KF, VF, SRD_K, SRD_V, SRD_K0, SRD_WS, S_OFF, S_WB, S_CNT,
                 SRD_WQ, SRD_G, SRD_U, k_read, v_reads, dma_k, dma_v, emit_phase)
from gen2 import ln_rows
from phase2 import emit_phase2, LACCN, ONES_A, LREGS
import gen as _g

SRD_DBG = "s[72:73]"
SB = lambda i: 80 + (i % 11) * 2 if i < 11 else 60 + (i - 11) * 2
CY = {1: 64, 2: 66, 3: 68, 4: 70, 9: 64, 10: 66}
def stamp(pr, opts, idx):
    if opts.get("time"):
        b = SB(idx)
        pr(f"s_memrealtime s[{b}:{b+1}]")
        if idx in CY: pr(f"s_memtime s[{CY[idx]}:{CY[idx]+1}]")

def poll(pr, label, addr_v, thresh, shift=None, sleep=2, cache="sc1"):
    pr(f"""
    s_mov_b32 s79, 0x40000
    {label}:
    global_load_dword v5, {addr_v}, {SRD_DBG} {cache}
    s_waitcnt vmcnt(0)
    v_readfirstlane_b32 s75, v5
    """)
    if shift is not None:
        pr(f"s_lshr_b32 s75, s75, {shift}\ns_and_b32 s75, s75, 0xff")
    pr(f"""
    s_cmp_ge_u32 s75, {thresh}
    s_cbranch_scc1 {label}_ok
    s_sleep {sleep}
    s_sub_u32 s79, s79, 1
    s_cbranch_scc0 {label}
    {label}_ok:
    """)

def lin(insts, st, prev):
    a, st = auto_wait_linear(insts, st)
    a = merge_adjacent_waits(a)
    n = len(prev)
    return check_hazards(prev + a, fix=True)[n:], st

def issue_groups(pr, groups):
    for d in groups:
        pr.extend(d[:-1])
        if len(d) > 1: pr("s_nop 0")
        pr.extend(d[-1:])

def QACC(cb, tb, r=None):
    b = 16 + (cb * 4 + tb) * 4
    return f"v[{b}:{b+3}]" if r is None else f"v{b+r}"
def GACC(cb, tb, r=None):
    b = (cb * 4 + tb) * 4
    return f"a[{b}:{b+3}]" if r is None else f"a{b+r}"
def UACC(cb, tb, r=None):
    b = 64 + (cb * 4 + tb) * 4
    return f"a[{b}:{b+3}]" if r is None else f"a{b+r}"
def AF(cb, u=None):
    b = 128 + cb * 4
    if u is None: return f"a[{b}:{b+3}]"
    return f"a[{b+2*u}:{b+2*u+1}]"
def BF(st, tb):
    b = 144 + st * 16 + tb * 4
    return f"v[{b}:{b+3}]"
VA_Q = lambda ds: f"v{230+ds}"
VA_G = lambda cb: f"v{234+cb}"
VO_X = "v238"; VO_WQ = lambda ii: f"v{239+ii}"; VO_G = "v241"
S_OX = "s50"; S_OWQ = "s51"; S_OGU = "s52"
S_MWQ = "s55"; S_MG = "s56"; S_MU = "s57"
GW = 65536

def a_reads(cb, stage):
    if cb < 8:
        ds, h = cb >> 1, cb & 1
        return [Inst(f"ds_read_b64_tr_b16 {AF(cb,u)}, {VA_Q(ds)} offset:{stage*16384 + 8*h + 1024*u}") for u in range(2)]
    mat, c2 = (cb - 8) >> 2, (cb - 8) & 3
    return [Inst(f"ds_read_b64_tr_b16 {AF(cb,u)}, {VA_G(c2)} offset:{stage*16384 + 8192 + 4096*mat + 512*u}") for u in range(2)]
def w_dma(stage):
    r = []
    r.append([Inst(f"s_add_u32 m0, {S_MWQ}, {stage*16384}"), Inst(f"buffer_load_dwordx4 {VO_WQ(0)}, {SRD_WQ}, {S_OWQ} offen lds")])
    r.append([Inst(f"buffer_load_dwordx4 {VO_WQ(1)}, {SRD_WQ}, {S_OWQ} offen offset:1024 lds")])
    r.append([Inst(f"s_add_u32 m0, {S_MG}, {stage*16384}"), Inst(f"buffer_load_dwordx4 {VO_G}, {SRD_G}, {S_OGU} offen lds")])
    r.append([Inst(f"s_add_u32 m0, {S_MU}, {stage*16384}"), Inst(f"buffer_load_dwordx4 {VO_G}, {SRD_U}, {S_OGU} offen lds")])
    adv = [Inst(f"s_add_u32 {S_OWQ}, {S_OWQ}, {32*8192}"), Inst(f"s_add_u32 {S_OGU}, {S_OGU}, {32*3584}")]
    return r, adv
def x_loads(st):
    r = [[Inst(f"buffer_load_dwordx4 {BF(st,tb)}, {VO_X}, {SRD_WS}, {S_OX} offen offset:{tb*1024} sc1")] for tb in range(4)]
    return r, [Inst(f"s_add_u32 {S_OX}, {S_OX}, 16384")]

def gemm_period(c, groups, adv, read_next=True, extra=(), nvm=8):
    st = c & 3
    NG = 64
    pre = [[] for _ in range(NG + 1)]; mem = [[] for _ in range(NG + 1)]; gaps = [[] for _ in range(NG + 1)]
    pre[0].append(Hint(*[BF(st, t) for t in range(4)]))
    if nvm is not None: pre[0].append(Inst(f"s_waitcnt vmcnt({nvm})"))
    pre[0].append(Inst("s_barrier"))
    if read_next:
        for cb in range(16):
            rd = a_reads(cb, (c + 1) & 3)
            if cb < 15:
                mem[4 * cb + 4].append(rd[0]); mem[4 * cb + 5].append(rd[1])
            else:
                mem[63].append(rd[0]); mem[63].append(rd[1])
    pos = [2, 6, 10, 14, 18, 22, 26, 30, 34, 38, 42, 46]
    for gp, d in zip(pos, groups):
        gaps[gp - 1] += d[:-1]
        mem[gp] += d[-1:]
    for i, a in enumerate(adv): gaps[48 + i].append(a)
    for gp, lst in extra:
        for ins in lst:
            (mem if ins.kind in ("vmem", "dma", "lds") else gaps)[gp].append(ins)
    out = []
    for cb in range(16):
        if cb % 4 == 0:
            pre[4 * cb].insert(0, Hint(*[AF(c_) for c_ in range(cb, cb + 4)]))
        for tb in range(4):
            k = 4 * cb + tb
            d = QACC(cb, tb) if cb < 8 else GACC(cb - 8, tb) if cb < 12 else UACC(cb - 12, tb)
            out += pre[k]
            out.append(Inst(f"v_mfma_f32_16x16x32_bf16 {d}, {AF(cb)}, {BF(st,tb)}, {d}"))
            out += mem[k]; out += gaps[k]
    return out

def act_lane_offset(pr, dst0, dst1=None):
    pr(f"""
    v_and_b32 v2, 15, v1
    v_lshrrev_b32 v3, 4, v1
    v_bfe_u32 v4, v1, 2, 1
    v_lshlrev_b32 v4, 1, v4
    v_bfe_u32 v5, v1, 3, 1
    v_mul_u32_u24 v5, 3, v5
    v_xor_b32 v4, v4, v5
    v_xor_b32 v4, v4, v3
    v_lshlrev_b32 v4, 4, v4
    v_lshl_add_u32 {dst0}, v2, 6, v4
    """)
    if dst1: pr(f"v_add_u32 {dst1}, 8192, {dst0}")


def code_touch(pr, start_label, end_label, idx_sgpr, nblk, vt=(250, 251, 252)):
    a, b, d = vt
    pr(f"""
    s_getpc_b64 s[78:79]
    CT_{start_label}:
    s_sub_u32 s78, s78, CT_{start_label}-{start_label}
    s_subb_u32 s79, s79, 0
    s_lshl_b32 s77, {idx_sgpr}, 13
    v_lshlrev_b32 v{a}, 7, v1
    v_add_u32 v{a}, s77, v{a}
    v_min_u32 v{a}, {end_label}-{start_label}-4, v{a}
    v_mov_b32 v{b}, s79
    v_add_co_u32 v{a}, vcc, s78, v{a}
    v_addc_co_u32 v{b}, vcc, 0, v{b}, vcc
    global_load_dword v{d}, v[{a}:{b}], off
    """)

def gen_ka(opts):
    global emit_phase
    NS = opts.get('nsum', 2) if opts.get('ph2', 1) else 0
    emit_phase = emit_phase2 if opts.get('ph2', 1) else _g.emit_phase
    opts = dict(opts); opts['nsum'] = NS
    T = lambda pr, idx: stamp(pr, opts, idx)
    pr = Prog()
    pr("s_cmp_ge_u32 s2, 256\ns_cbranch_scc1 KA_end")
    T(pr, 0)
    pr(f"""
    s_load_dwordx2 s[76:77], s[0:1], 0
    s_load_dwordx2 s[34:35], s[0:1], 88
    s_load_dwordx4 s[28:31], s[0:1], 8
    s_load_dwordx2 s[32:33], s[0:1], 24
    s_load_dwordx4 s[40:43], s[0:1], 48
    s_load_dwordx2 s[72:73], s[0:1], 80
    v_and_b32 v1, 63, v0
    v_lshrrev_b32 v2, 6, v0
    s_nop 0
    v_readfirstlane_b32 s3, v2
    s_and_b32 s4, s2, 7
    s_lshl_b32 s4, s4, 2
    s_lshr_b32 s5, s2, 3
    s_and_b32 s6, s5, 3
    s_add_u32 s4, s4, s6
    s_lshr_b32 s5, s2, 5
    s_lshl_b32 {S_WB}, s3, 12
    s_lshl_b32 s16, s5, 8
    s_lshl_b32 s17, s4, 3
    s_add_u32 s16, s16, s17
    s_lshl_b32 s17, s3, 1
    s_add_u32 s16, s16, s17
    s_lshl_b32 s17, s16, 10
    v_lshlrev_b32 v2, 4, v1
    s_waitcnt lgkmcnt(0)
    s_mov_b32 s8, s76
    s_and_b32 s9, s77, 0xffff
    s_mov_b32 s10, {2048*1024}
    s_mov_b32 s11, 0x20000
    buffer_load_dwordx4 v[4:7], v2, s[8:11], s17 offen
    buffer_load_dwordx4 v[8:11], v2, s[8:11], s17 offen offset:1024
    s_mov_b32 s20, s34
    s_and_b32 s21, s35, 0xffff
    s_mov_b32 s22, 0x10000000
    s_mov_b32 s23, 0x20000
    s_mov_b32 s36, s32
    s_and_b32 s37, s33, 0xffff
    s_mov_b32 s38, {0 if opts.get("kanow") else 512*8192}
    s_mov_b32 s39, 0x20000
    s_mov_b32 s44, s42
    s_and_b32 s45, s43, 0xffff
    s_and_b32 s41, s41, 0xffff
    s_cmp_lt_u32 s4, 28
    s_cselect_b32 s42, {0 if opts.get("kanow") else 512*3584}, 0
    s_mov_b32 s46, s42
    s_mov_b32 s43, 0x20000
    s_mov_b32 s47, 0x20000
    s_lshl_b32 {S_OX}, s5, 18
    s_add_u32 {S_OX}, {S_OX}, {WS_XN}
    s_add_u32 {S_OX}, {S_OX}, {S_WB}
    {"s_mov_b32 s50, 0xf0000000" if opts.get("kanox") else ""}
    s_lshl_b32 {S_OWQ}, s4, 8
    s_lshl_b32 {S_OGU}, s4, 7
    s_lshl_b32 s6, s3, 11
    s_add_u32 {S_MWQ}, s6, {GW}
    s_lshl_b32 s6, s3, 10
    s_add_u32 {S_MG}, s6, {GW + 8192}
    s_add_u32 {S_MU}, s6, {GW + 12288}
    v_lshrrev_b32 v12, 4, v1
    v_and_b32 v13, 15, v1
    v_lshlrev_b32 v14, 2, v12
    v_xor_b32 v14, v14, v13
    v_lshlrev_b32 v14, 4, v14
    s_lshl_b32 s6, s3, 3
    v_add_u32 v15, s6, v12
    v_lshlrev_b32 v15, 13, v15
    v_add_u32 {VO_WQ(0)}, v15, v14
    v_add_u32 {VO_WQ(1)}, {4*8192-1024}, {VO_WQ(0)}
    v_lshrrev_b32 v12, 3, v1
    v_and_b32 v13, 7, v1
    v_bfe_u32 v14, v1, 4, 1
    s_and_b32 s7, s3, 1
    s_lshl_b32 s7, s7, 1
    v_or_b32 v14, s7, v14
    v_lshlrev_b32 v14, 1, v14
    v_xor_b32 v14, v14, v13
    v_add_u32 v15, s6, v12
    s_movk_i32 s7, 3584
    v_mul_lo_u32 v15, v15, s7
    v_lshl_add_u32 {VO_G}, v14, 4, v15
    """)
    for c in range(3):
        gr, adv = w_dma(c)
        issue_groups(pr, gr); pr.extend(adv)
    if opts.get("wearly", 0):
        pr(f"""
        s_cmp_lt_u32 s3, 2
        s_cbranch_scc0 K_we_gu
        s_mov_b32 s64, s36
        s_mov_b32 s65, s37
        s_mov_b32 s66, s38
        v_lshrrev_b32 v12, 1, v1
        s_and_b32 s6, s3, 1
        s_lshl_b32 s6, s6, 5
        s_lshl_b32 s7, s5, 6
        s_add_u32 s6, s6, s7
        v_add_u32 v12, s6, v12
        v_lshlrev_b32 v12, 13, v12
        v_and_b32 v13, 1, v1
        v_lshl_add_u32 v12, v13, 7, v12
        s_lshl_b32 s6, s4, 8
        s_branch K_we_go
        K_we_gu:
        s_cmp_eq_u32 s3, 2
        s_cselect_b32 s64, s40, s44
        s_cselect_b32 s65, s41, s45
        s_mov_b32 s66, s42
        s_lshl_b32 s7, s5, 6
        v_add_u32 v12, s7, v1
        s_movk_i32 s7, 3584
        v_mul_lo_u32 v12, v12, s7
        s_lshl_b32 s6, s4, 7
        K_we_go:
        s_mov_b32 s67, 0x20000
        buffer_load_dword v249, v12, s[64:67], s6 offen
        """)
    if opts.get("ctouch", 0):
        pr("""
        s_lshr_b32 s6, s2, 3
        s_lshl_b32 s6, s6, 2
        s_add_u32 s6, s6, s3
        s_mul_i32 s7, s6, 43
        s_lshr_b32 s7, s7, 8
        s_mul_i32 s7, s7, 6
        s_sub_u32 s6, s6, s7
        """)
        code_touch(pr, "attn_kernel", "TEXT_END", "s6", 6)
    pr(f"""
    v_bfe_u32 v3, v1, 2, 3
    v_lshlrev_b32 v3, 14, v3
    v_lshrrev_b32 v12, 5, v1
    v_lshl_add_u32 v3, v12, 6, v3
    v_and_b32 v12, 3, v1
    s_lshr_b32 s18, s16, 8
    s_lshl_b32 s18, s18, 18
    s_and_b32 s19, s16, 255
    s_lshl_b32 s6, s19, 6
    s_add_u32 s18, s18, s6
    s_add_u32 s18, s18, {WS_XN}
    s_lshr_b32 s6, s19, 2
    s_and_b32 s6, s6, 3
    s_and_b32 s7, s6, 1
    s_lshl_b32 s7, s7, 1
    s_lshr_b32 s6, s6, 1
    s_mul_i32 s6, s6, 3
    s_xor_b32 s7, s7, s6
    v_xor_b32 v12, s7, v12
    v_lshl_add_u32 v3, v12, 4, v3
    """)
    ln_rows(pr, opts)
    pr(f"""
    s_lshl_b32 s6, s4, 19
    s_add_u32 s16, s28, s6
    s_addc_u32 s17, s29, 0
    s_and_b32 s17, s17, 0xffff
    s_mov_b32 s18, 524288
    s_mov_b32 s19, 0x20000
    s_add_u32 s8, s16, 16384
    s_addc_u32 s9, s17, 0
    s_mov_b32 s10, {524288-16384}
    s_mov_b32 s11, 0x20000
    s_add_u32 s12, s30, s6
    s_addc_u32 s13, s31, 0
    s_and_b32 s13, s13, 0xffff
    s_mov_b32 s14, 524288
    s_mov_b32 s15, 0x20000
    """)
    pr("s_waitcnt vmcnt(0)\ns_barrier")
    T(pr, 6)
    pr(f"""
    s_and_b32 s6, s5, 3
    s_lshl_b32 s6, s6, 6
    s_lshr_b32 s7, s5, 2
    s_lshl_b32 s7, s7, 2
    s_add_u32 s74, s6, s7
    s_cmp_lg_u32 s3, 0
    s_cbranch_scc1 K_xn_skip
    v_mov_b32 v2, s74
    v_mov_b32 v4, 1
    s_mov_b64 exec, 1
    global_atomic_add v2, v4, {SRD_DBG} sc1
    s_mov_b64 exec, -1
    K_xn_skip:
    """)
    pr(f"""
    v_bfe_u32 v2, v1, 2, 2
    v_and_b32 v3, 3, v1
    v_lshrrev_b32 v4, 4, v1
    v_lshl_add_u32 v5, v4, 3, v2
    v_lshlrev_b32 v6, 8, v5
    v_add_u32 v6, {GW}, v6
    v_lshlrev_b32 v7, 2, v2
    """)
    for ds in range(4):
        pr(f"""
        v_add_u32 v8, {4*ds}, v3
        v_xor_b32 v8, v8, v7
        v_lshl_add_u32 {VA_Q(ds)}, v8, 4, v6
        """)
    pr(f"""
    v_lshlrev_b32 v6, 7, v5
    v_add_u32 v6, {GW}, v6
    v_and_b32 v7, 1, v3
    v_lshl_add_u32 v6, v7, 3, v6
    v_bfe_u32 v7, v1, 3, 1
    v_and_b32 v8, 1, v4
    v_lshl_or_b32 v7, v8, 1, v7
    v_lshlrev_b32 v7, 1, v7
    v_lshrrev_b32 v9, 1, v3
    """)
    for cb in range(4):
        pr(f"""
        v_add_u32 v8, {2*cb}, v9
        v_xor_b32 v8, v8, v7
        v_lshl_add_u32 {VA_G(cb)}, v8, 4, v6
        """)
    act_lane_offset(pr, VO_X)
    pr(f"""
    v_lshrrev_b32 v2, 4, v1
    v_and_b32 v3, 15, v1
    v_lshlrev_b32 v4, 8, v2
    v_add_u32 v4, {S_WB}, v4
    """)
    for ii in range(4):
        pr(f"""
        v_add_u32 v5, {4*ii}, v2
        v_xor_b32 v5, v5, v3
        v_lshl_add_u32 {VOFFK(ii)}, v5, 4, v4
        """)
    for par in range(2):
        pr(f"""
        v_add_u32 v5, {4*par}, v2
        v_lshlrev_b32 v5, 1, v5
        v_xor_b32 v5, v5, v3
        v_lshl_add_u32 {VOFFV(par)}, v5, 4, v4
        """)
    pr(f"""
    v_and_b32 v2, 15, v1
    v_lshrrev_b32 v3, 4, v1
    v_lshlrev_b32 v5, 8, v2
    """)
    for ds in range(4):
        pr(f"""
        v_add_u32 v6, {4*ds}, v3
        v_xor_b32 v6, v6, v2
        v_lshl_add_u32 {VKA(ds)}, v6, 4, v5
        """)
    pr(f"""
    v_bfe_u32 v2, v1, 2, 2
    v_and_b32 v3, 3, v1
    v_lshrrev_b32 v4, 4, v1
    v_lshl_add_u32 v6, v4, 2, v2
    v_and_b32 v8, 7, v6
    v_lshlrev_b32 v8, 1, v8
    v_lshlrev_b32 v6, 8, v6
    v_add_u32 v6, 65536, v6
    v_and_b32 v7, 1, v3
    v_lshl_add_u32 v6, v7, 3, v6
    v_lshrrev_b32 v7, 1, v3
    """)
    for db in range(8):
        pr(f"""
        v_add_u32 v9, {2*db}, v7
        v_xor_b32 v9, v9, v8
        v_lshl_add_u32 {VVA(db)}, v9, 4, v6
        """)
    for i in range(128): pr(f"v_mov_b32 v{16+i}, 0")
    for i in range(128): pr(f"v_accvgpr_write_b32 a{i}, 0")
    for cb in range(16): pr.extend(a_reads(cb, 0))
    pr(f"""
    s_cmp_lg_u32 s3, 0
    s_cbranch_scc1 K_xn_wait
    v_mov_b32 v2, s74
    s_mov_b64 exec, 1
    """)
    poll(pr, "K_xn_poll", "v2", 32)
    pr(f"""
    s_mov_b64 exec, -1
    K_xn_wait:
    s_barrier
    """)
    T(pr, 7)
    for c in range(3):
        gr, adv = x_loads(c)
        issue_groups(pr, gr); pr.extend(adv)
    T(pr, 1)
    pr(f"s_mov_b32 {S_CNT}, 3")
    seg_a = pr.insts
    def full(c):
        xg, xa = x_loads((c + 3) & 3); wg_, wa = w_dma((c + 3) & 3)
        return gemm_period(c, xg + wg_, xa + wa)
    body = []
    for c in range(4): body += full(c)
    body += [Inst(f"s_sub_u32 {S_CNT}, {S_CNT}, 1"), Inst(f"s_cmp_lg_u32 {S_CNT}, 0"), Inst("s_cbranch_scc1 K_gloop")]
    def mk_touch():
        tp = Prog()
        tp(f"""
        s_load_dwordx2 s[40:41], s[0:1], 32
        s_load_dwordx2 s[42:43], s[0:1], 64
        s_and_b32 s51, s2, 3
        s_bfe_u32 s58, s2, 0x30003
        s_lshl_b32 s58, s58, 2
        s_lshr_b32 s59, s2, 6
        s_add_u32 s58, s58, s59
        s_lshl_b32 s58, s58, 2
        s_add_u32 s58, s58, s3
        s_lshl_b32 s58, s58, 4
        s_mul_i32 s59, s51, {24*64}
        s_add_u32 s59, s59, s58
        v_lshlrev_b32 v242, 7, v1
        v_add_u32 v243, 8192, v242
        """)
        tp2 = Prog()
        tp2(f"""
        s_waitcnt lgkmcnt(0)
        s_and_b32 s41, s41, 0xffff
        s_sub_u32 s42, s42, {64*65536}
        s_subb_u32 s43, s43, 0
        s_and_b32 s43, s43, 0xffff
        s_cmp_lt_u32 s59, 4096
        s_cselect_b32 s44, s40, s42
        s_cselect_b32 s45, s41, s43
        s_mov_b32 s46, {92*65536}
        s_cselect_b32 s46, {64*65536}, s46
        s_mov_b32 s47, 0x20000
        s_lshl_b32 s59, s59, 10
        s_cmp_lt_u32 s58, {24*64}
        s_cselect_b32 s59, s59, 0xf0000000
        """)
        tp3 = [Inst("buffer_load_dword v240, v242, s[44:47], s59 offen"), Inst("buffer_load_dword v241, v243, s[44:47], s59 offen")]
        return tp.insts, tp2.insts, tp3
    p2 = Prog()
    p2.extend(full(12))
    p2(f"s_mov_b32 s6, 0\ns_mov_b32 s7, 16384")
    p2.extend(gemm_period(13, dma_k(3, SRD_K0, "0") + dma_v(0, "s6"), []))
    p2.extend(gemm_period(14, dma_k(0, SRD_K, "s6") + dma_v(1, "s7"), []))
    p2.extend(gemm_period(15, dma_k(1, SRD_K, "s7"), [], read_next=False, nvm=None))
    T(p2, 2)
    p2(f"s_mov_b32 s6, {f32hex(QSCALE)}\ns_mov_b32 s7, {f32hex(QSCALE)}\ns_nop 7")
    for tb in range(4):
        for ds in range(4):
            for h in range(2):
                b = 16 + ((2 * ds + h) * 4 + tb) * 4
                p2(f"v_pk_mul_f32 v[{b}:{b+1}], v[{b}:{b+1}], s[6:7]\nv_pk_mul_f32 v[{b+2}:{b+3}], v[{b+2}:{b+3}], s[6:7]")
            for h in range(2):
                cb = 2 * ds + h
                for i in range(2):
                    p2(f"v_cvt_pk_bf16_f32 v{Qb(tb,ds)+2*h+i}, {QACC(cb,tb,2*i)}, {QACC(cb,tb,2*i+1)}")
    p2("s_cmp_ge_u32 s4, 28\ns_cbranch_scc1 K_noh")
    p2(f"""
    s_lshl_b32 s6, s5, 1
    s_lshr_b32 s7, s3, 1
    s_add_u32 s6, s6, s7
    s_mul_i32 s6, s6, {92*16384 + opts.get("actpad", 4096)}
    s_add_u32 s7, s4, 64
    s_lshl_b32 s7, s7, 14
    s_add_u32 s6, s6, s7
    s_and_b32 s7, s3, 1
    s_lshl_b32 s7, s7, 12
    s_add_u32 s6, s6, s7
    s_add_u32 s6, s6, {WS_ACT}
    """)
    act_lane_offset(p2, "v2", "v3")
    p2(f"""
    s_mov_b32 s26, {f32hex(-LOG2E)}
    s_mov_b32 s27, {f32hex(-LOG2E)}
    s_mov_b32 s78, 1.0
    s_mov_b32 s79, 1.0
    """)
    for tb in range(4):
        for e in range(2):
            t0 = 16 + e * 32
            for hh in range(2):
                cb = 2 * e + hh
                for r in range(4):
                    j = hh * 4 + r
                    p2(f"v_accvgpr_read_b32 v{t0+j}, {GACC(cb,tb,r)}")
                    p2(f"v_accvgpr_read_b32 v{t0+8+j}, {UACC(cb,tb,r)}")
            pk = lambda op, d, a, b: p2(f"{op} v[{d}:{d+1}], v[{a}:{a+1}], {b}")
            for j in range(0, 8, 2): pk("v_pk_mul_f32", t0 + 16 + j, t0 + j, "s[26:27]")
            for j in range(8): p2(f"v_exp_f32 v{t0+16+j}, v{t0+16+j}")
            for j in range(0, 8, 2): pk("v_pk_mul_f32", t0 + j, t0 + j, f"v[{t0+8+j}:{t0+9+j}]")
            for j in range(0, 8, 2): pk("v_pk_add_f32", t0 + 16 + j, t0 + 16 + j, "s[78:79]")
            for j in range(8): p2(f"v_rcp_f32 v{t0+16+j}, v{t0+16+j}")
            for j in range(0, 8, 2): pk("v_pk_mul_f32", t0 + j, t0 + j, f"v[{t0+16+j}:{t0+17+j}]")
            for i in range(4): p2(f"v_cvt_pk_bf16_f32 v{t0+24+i}, v{t0+2*i}, v{t0+2*i+1}")
            p2(f"buffer_store_dwordx4 v[{t0+24}:{t0+27}], v{2+e}, {SRD_WS}, s6 offen offset:{tb*1024}" + (" sc1" if opts.get("hst") else ""))
    p2("K_noh:")
    p2("s_mov_b32 s27, 0")
    p3 = Prog()
    p3("K_astart:")
    for i in range(128): p3(f"v_accvgpr_write_b32 a{i}, 0")
    for qb in range(4): p3(f"v_mov_b32 {L(qb)}, 0")
    for i in range(4): p3(f"v_mov_b32 v{128+i}, 0x3f803f80")
    for j in range(NS):
        for i in range(4): p3(f"v_mov_b32 v{LREGS[j]+i}, 0")
    p3(f"s_mov_b32 {S_OFF}, 32768")
    if opts.get("kvtouch"):
        D = opts.get("kvdist", 2) * 16384
        p3(f"""
        s_cmp_lt_u32 s3, 2
        s_cselect_b32 s56, s8, s12
        s_cselect_b32 s57, s9, s13
        s_cselect_b32 s58, s10, s14
        s_add_u32 s56, s56, {D}
        s_addc_u32 s57, s57, 0
        s_sub_u32 s58, s58, {D}
        s_mov_b32 s59, 0x20000
        s_lshl_b32 s6, s5, 11
        s_and_b32 s7, s3, 1
        s_lshl_b32 s7, s7, 10
        s_add_u32 s6, s6, s7
        v_lshlrev_b32 v243, 4, v1
        v_add_u32 v243, s6, v243
        """)
    p3("s_waitcnt vmcnt(0) lgkmcnt(0)\ns_barrier")
    T(p3, 3)
    for f in range(4): p3.add(k_read(0, f))
    if opts.get("sent", 1):
        p3(f"""
        s_and_b32 s58, s2, 3
        s_bfe_u32 s59, s2, 0x10002
        s_lshl_b32 s59, s59, 3
        s_bfe_u32 s6, s2, 0x30003
        s_add_u32 s59, s59, s6
        s_lshl_b32 s59, s59, 2
        s_lshr_b32 s6, s2, 6
        s_add_u32 s59, s59, s6
        s_mul_i32 s59, s59, {5*32768 + opts.get('slabpad', 256)}
        s_add_u32 s59, s59, {WS_SLAB}
        s_lshl_b32 s58, s58, 13
        s_add_u32 s59, s59, s58
        s_lshl_b32 s6, s3, 11
        s_add_u32 s59, s59, s6
        v_lshlrev_b32 v8, 4, v1
        v_mov_b32 v4, -1
        v_mov_b32 v5, -1
        v_mov_b32 v6, -1
        v_mov_b32 v7, -1
        """)
        for sl in range(5):
            for jj in range(2):
                p3(f"buffer_store_dwordx4 v[4:7], v8, {SRD_WS}, s59 offen offset:{jj*1024}" + (" sc1" if opts.get("hst") else ""))
            if sl < 4: p3("s_add_u32 s59, s59, 32768")
    ph, carry = emit_phase(-1, opts, [])
    p3.extend(ph)
    p3("s_cmp_lg_u32 s27, 0\ns_cbranch_scc1 K_havemax")
    p3("s_nop 7")
    for qb in range(4):
        m = f"v{244+qb}"
        p3(f"v_max3_f32 {m}, {S(0,0,qb,0)}, {S(0,0,qb,1)}, {S(0,0,qb,2)}")
        p3(f"v_max3_f32 {m}, {m}, {S(0,0,qb,3)}, {S(0,1,qb,0)}")
        p3(f"v_max3_f32 {m}, {m}, {S(0,1,qb,1)}, {S(0,1,qb,2)}")
        p3(f"v_max_f32 {m}, {m}, {S(0,1,qb,3)}")
        p3(f"v_mov_b32 v248, {m}")
        p3(f"v_permlane32_swap_b32 v248, {m}")
        p3(f"v_max_f32 {m}, {m}, v248")
        p3(f"v_mov_b32 v248, {m}")
        p3(f"v_permlane16_swap_b32 v248, {m}")
        p3(f"v_max_f32 {m}, {m}, v248")
    p3("K_havemax:")
    p3("s_nop 7")
    for qb in range(4):
        m = f"v{244+qb}"
        for r in range(4): p3(f"v_sub_f32 {NEGM(qb,r)}, 0, {m}")
        for kb in range(2):
            for r in range(4): p3(f"v_sub_f32 {S(0,kb,qb,r)}, {S(0,kb,qb,r)}, {m}")
    p2 = (p2, p3); p2a, p2 = p2
    ph, carry = emit_phase(0, opts, carry)
    p2.extend(ph)
    p2(f"s_mov_b32 {S_CNT}, 7")
    abody = []
    c2 = carry
    for p in range(1, 9):
        ph, c2 = emit_phase(p, opts, c2)
        abody += ph
    abody += [Inst(f"s_sub_u32 {S_CNT}, {S_CNT}, 1"), Inst(f"s_cmp_lg_u32 {S_CNT}, 0"), Inst("s_cbranch_scc1 K_aloop")]
    if opts.get("wtouch", 1):
        opts = dict(opts)
        ta, tb_, tc = mk_touch()
        opts["extra"] = {58: [(3, ta)], 59: [(41, tb_), (50, tc[:1]), (54, tc[1:])]}
        opts["vmadj"] = {30: 2, 31: 2}
        if opts.get("kbcode", 0):
            cp = Prog()
            cp("""
            s_getpc_b64 s[78:79]
            CT_kb:
            s_add_u32 s78, s78, oproj_kernel-CT_kb
            s_addc_u32 s79, s79, 0
            s_and_b32 s77, s3, 1
            s_lshl_b32 s77, s77, 13
            v_lshlrev_b32 v236, 7, v1
            v_add_u32 v236, s77, v236
            v_min_u32 v236, TEXT_END-oproj_kernel-4, v236
            v_mov_b32 v237, s79
            v_add_co_u32 v236, vcc, s78, v236
            v_addc_co_u32 v237, vcc, 0, v237, vcc
            """)
            opts["extra"][58].append((40, cp.insts))
            opts["extra"][59].append((58, [Inst("global_load_dword v238, v[236:237], off")]))
            opts["vmadj"] = {30: 3, 31: 3}
    tail = []
    c3 = c2
    for p in range(57, 65):
        ph, c3 = emit_phase(p, opts, c3)
        tail += ph
    tail += [c[1] if isinstance(c, tuple) else c for c in c3]
    post = Prog()
    T(post, 4)
    for qb in range(4):
        if qb >= 4 - NS:
            post(f"v_mov_b32 {L(qb)}, v{LREGS[qb - (4 - NS)]}")
            continue
        post(f"""
        v_mov_b32 v248, {L(qb)}
        v_permlane32_swap_b32 v248, {L(qb)}
        v_add_f32 {L(qb)}, {L(qb)}, v248
        v_mov_b32 v248, {L(qb)}
        v_permlane16_swap_b32 v248, {L(qb)}
        v_add_f32 {L(qb)}, {L(qb)}, v248
        """)
    post(f"""
    v_max3_f32 v248, {L(0)}, {L(1)}, {L(2)}
    v_max_f32 v248, v248, {L(3)}
    v_add_f32 v249, {L(0)}, {L(1)}
    v_add_f32 v250, {L(2)}, {L(3)}
    v_add_f32 v249, v249, v250
    s_mov_b32 s6, {f32hex(float(2**24))}
    v_cmp_nlt_f32 vcc, v248, s6
    v_cmp_u_f32 s[6:7], v249, v249
    s_or_b64 vcc, vcc, s[6:7]
    s_cmp_lg_u64 vcc, 0
    s_cselect_b32 s6, 1, 0
    v_mov_b32 v248, s6
    v_mov_b32 v249, 131072
    v_lshl_add_u32 v250, s3, 2, v249
    ds_write_b32 v250, v248
    s_waitcnt lgkmcnt(0)
    s_barrier
    ds_read_b128 v[248:251], v249
    s_waitcnt lgkmcnt(0)
    v_or3_b32 v248, v248, v249, v250
    v_or_b32 v248, v248, v251
    s_nop 0
    v_readfirstlane_b32 s6, v248
    s_xor_b32 s7, s27, 1
    s_and_b32 s6, s6, s7
    s_cmp_lg_u32 s6, 0
    s_cbranch_scc1 K_fallback
    """)
    for qb in range(4): post(f"v_rcp_f32 {L(qb)}, {L(qb)}")
    post(f"""
    s_lshl_b32 s6, s5, 1
    s_lshr_b32 s7, s3, 1
    s_add_u32 s6, s6, s7
    s_mul_i32 s6, s6, {92*16384 + opts.get("actpad", 4096)}
    s_lshl_b32 s7, s4, 15
    s_add_u32 s6, s6, s7
    s_and_b32 s7, s3, 1
    s_lshl_b32 s7, s7, 12
    s_add_u32 s6, s6, s7
    s_add_u32 s52, s6, {WS_ACT}
    s_add_u32 s53, s52, 16384
    """)
    act_lane_offset(post, "v2", "v3")
    for qb in range(4):
        lp = 226 + (qb & ~1)
        osel = "op_sel:[0,0] op_sel_hi:[1,0]" if qb % 2 == 0 else "op_sel:[0,1] op_sel_hi:[1,1]"
        for e in range(4):
            t0 = 16 + (e & 1) * 16
            for hh in range(2):
                for r in range(4):
                    post(f"v_accvgpr_read_b32 v{t0+hh*4+r}, {O(2*e+hh,qb,r)}")
            for j in range(0, 8, 2): post(f"v_pk_mul_f32 v[{t0+j}:{t0+j+1}], v[{t0+j}:{t0+j+1}], v[{lp}:{lp+1}] {osel}")
            for i in range(4): post(f"v_cvt_pk_bf16_f32 v{t0+8+i}, v{t0+2*i}, v{t0+2*i+1}")
            post(f"buffer_store_dwordx4 v[{t0+8}:{t0+11}], v{2+(e&1)}, {SRD_WS}, s{52+(e>>1)} offen offset:{qb*1024}" + {0: "", 1: " nt", 2: " sc1", 3: " sc0"}[opts.get("ost", 0)])
    if opts.get("time"):
        post("s_waitcnt vmcnt(0)")
        T(post, 5)
        post(f"""
        s_waitcnt lgkmcnt(0)
        s_lshl_b32 s6, s2, 2
        s_add_u32 s6, s6, s3
        s_lshl_b32 s6, s6, 6
        s_add_u32 s6, s6, {WS_TIME}
        v_mov_b32 v3, s6
        """)
        for i in range(8):
            post(f"v_mov_b32 v2, s{SB(i)}\nbuffer_store_dword v2, v3, {SRD_WS}, 0 offen offset:{4*i}")
        for i in range(4):
            post(f"v_mov_b32 v2, s{64+2*i}\nbuffer_store_dword v2, v3, {SRD_WS}, 0 offen offset:{32+4*i}")
    post("KA_end:\ns_endpgm")
    fb = Prog()
    fb(f"""
    K_fallback:
    s_waitcnt vmcnt(0) lgkmcnt(0)
    s_barrier
    s_mov_b32 s27, 1
    v_and_b32 v2, 15, v1
    v_lshrrev_b32 v3, 4, v1
    v_lshlrev_b32 v2, 8, v2
    v_lshl_add_u32 v2, v3, 4, v2
    s_mov_b32 s6, 0
    """)
    for qb in range(4): fb(f"v_mov_b32 v{244+qb}, 0xff800000")
    fb("K_fb_loop:")
    for ds in range(4):
        fb(f"buffer_load_dwordx4 v[{16+4*ds}:{19+4*ds}], v2, {SRD_K0}, s6 offen offset:{64*ds}")
    fb("s_waitcnt vmcnt(0)")
    for qb in range(4):
        for ds in range(4):
            c = "0" if ds == 0 else f"v[{32+4*qb}:{35+4*qb}]"
            fb(f"v_mfma_f32_16x16x32_bf16 v[{32+4*qb}:{35+4*qb}], v[{16+4*ds}:{19+4*ds}], {Q(qb,ds)}, {c}")
    fb("s_nop 15")
    for qb in range(4):
        b = 32 + 4 * qb
        fb(f"v_max3_f32 v{244+qb}, v{244+qb}, v{b}, v{b+1}")
        fb(f"v_max3_f32 v{244+qb}, v{244+qb}, v{b+2}, v{b+3}")
    fb(f"""
    s_add_u32 s6, s6, 4096
    s_cmp_lt_u32 s6, 524288
    s_cbranch_scc1 K_fb_loop
    """)
    for qb in range(4):
        m = f"v{244+qb}"
        fb(f"""
        v_mov_b32 v248, {m}
        s_nop 1
        v_permlane32_swap_b32 v248, {m}
        v_max_f32 {m}, {m}, v248
        v_mov_b32 v248, {m}
        s_nop 1
        v_permlane16_swap_b32 v248, {m}
        v_max_f32 {m}, {m}, v248
        """)
    fb("s_mov_b32 s6, 0\ns_mov_b32 s7, 16384")
    issue_groups(fb, dma_k(3, SRD_K0, "0") + dma_v(0, "s6") + dma_k(0, SRD_K, "s6") + dma_v(1, "s7") + dma_k(1, SRD_K, "s7"))
    fb("s_branch K_astart")
    fb2 = check_hazards([Inst("s_nop 15")] + fb.insts, fix=True)[1:]
    a2, st = lin(seg_a, None, [])
    b2, st = auto_wait_loop(body, st); b2 = merge_adjacent_waits(b2)
    q1, st = lin(p2a.insts, st, b2[-40:])
    q2, st = lin(p2.insts, WaitState(), q1[-40:])
    q2 = q1 + q2
    ab2, st = auto_wait_loop(abody, st); ab2 = merge_adjacent_waits(ab2)
    t2, st = lin(tail, st, ab2[-40:])
    po2, st = lin(post.insts, st, t2[-40:])
    for nm, seq in (("gloop", a2[-60:] + b2 + b2 + q2[:80]), ("aloop", q2[-60:] + ab2 + ab2 + t2 + po2[:40])):
        for p_ in check_hazards(seq): print("HAZARD", nm, p_, file=sys.stderr)
    return a2 + [Inst("K_gloop:")] + b2 + q2 + [Inst("K_aloop:")] + ab2 + t2 + po2 + fb2

def gen_kb(opts):
    T = lambda pr, idx: stamp(pr, opts, idx)
    NCH = 24
    ACC = lambda st_, cb, tb, r=None: (f"v[{16+st_*64+(cb*2+tb)*4}:{16+st_*64+(cb*2+tb)*4+3}]" if r is None else f"v{16+st_*64+(cb*2+tb)*4+r}")
    def AF3(s, cb, u=None):
        b = (s * 8 + cb) * 4
        return f"a[{b}:{b+3}]" if u is None else f"a[{b+2*u}:{b+2*u+1}]"
    G2 = opts.get('kbG', 0)
    R = 8 if G2 else opts.get('kbR', 4); D = R - 1
    RB = (opts.get('kbRB', 4) if G2 else R); DB = (RB - 1 if G2 else D); DW = 5 if G2 else D
    def BF3(st, s, tb):
        b = 64 + st * 16 + (s * 2 + tb) * 4
        return f"a[{b}:{b+3}]"
    VA = lambda cb, hi=0: f"v{208+hi*8+cb}"
    VOW = lambda ii: f"v{224+ii}"; VOA = lambda s: f"v{228+s}"
    SRD_W = "s[8:11]"; SRD_A = "s[12:15]"
    S_GP = "s19"; S_OA = "s24"; S_OW = "s26"; S_MW = "s25"
    PART = "s48"; TM = "s49"; TN = "s50"
    def a_rd(s, cb, stage):
        return [Inst(f"ds_read_b64_tr_b16 {AF3(s,cb,u)}, {VA(cb, stage >> 2)} offset:{(stage & 3)*16384 + (32*s+16*u)*256}") for u in range(2)]
    def sel_w():
        return [Inst(f"s_cmp_lt_u32 {S_GP}, 64"), Inst("s_cselect_b32 s8, s40, s42"), Inst("s_cselect_b32 s9, s41, s43"), Inst(f"s_add_u32 {S_GP}, {S_GP}, {R}")]
    def dma_w(stage):
        r = [[Inst(f"s_add_u32 m0, {S_MW}, {stage*16384}"), Inst(f"buffer_load_dwordx4 {VOW(0)}, {SRD_W}, {S_OW} offen lds")]]
        for ii in range(1, 4):
            r.append([Inst(f"buffer_load_dwordx4 {VOW(ii)}, {SRD_W}, {S_OW} offen offset:{ii*1024} lds")])
        return r, [Inst(f"s_add_u32 {S_OW}, {S_OW}, 65536")]
    def ld_a(st):
        so = S_OA
        if opts.get("kbuniq"):
            so = f"s{60 + (st & 3)}"
        r = [[Inst(f"buffer_load_dwordx4 {BF3(st,s,tb)}, {VOA(s)}, {SRD_A}, {so} offen offset:{tb*1024}")] for s in range(2) for tb in range(2)]
        adv = [Inst(f"s_add_u32 {S_OA}, {S_OA}, 16384")]
        if opts.get("kbuniq"):
            adv = [Inst(f"s_add_u32 s{60+i}, s{60+i}, 16384") for i in range(4)]
        return r, adv
    def period(c, accset):
        st = c % RB
        NG = 32
        pre = [[] for _ in range(NG + 1)]; mem = [[] for _ in range(NG + 1)]; gaps = [[] for _ in range(NG + 1)]
        pre[0] += [Hint(*[BF3(st, s, t) for s in range(2) for t in range(2)])]
        if not G2: pre[0] += [Inst(f"s_waitcnt vmcnt({8*(D-2)})"), Inst("s_barrier")]
        elif c % 2 == 0: pre[0] += [Inst("s_waitcnt vmcnt(16)"), Inst("s_barrier")]
        ag, aadv = ld_a((c + DB) % RB)
        wg_, wadv = dma_w((c + DW) % R)
        for s in range(2):
            for cb in range(8):
                k = 2 * (s * 8 + cb) + 2
                rd = a_rd(s, cb, (c + 1) % R)
                if k < 31: mem[k].append(rd[0]); mem[k + 1].append(rd[1])
                else: mem[31].append(rd[0]); mem[31].append(rd[1])
        mem[0] += ag[0]; mem[1] += ag[1]
        if (c + DW) % R == 0: gaps[0] += sel_w()[:1]; gaps[1] += sel_w()[1:2]; gaps[2] += sel_w()[2:3]; gaps[3] += sel_w()[3:]
        mem[5] += ag[2]; mem[8] += ag[3]; gaps[9] += aadv
        gaps[11] += wg_[0][:-1]
        for gp, d in zip([12, 16, 20, 24], wg_): mem[gp] += d[-1:]
        gaps[26] += wadv
        out = []
        for s in range(2):
            for cb in range(8):
                if cb == 0 or (s == 0 and cb == 4): pre[2 * (s * 8 + cb)].insert(0, Hint(*[AF3(s, c_) for c_ in range(cb, 8 if s else cb + 4)] + ([AF3(0, c_) for c_ in range(4, 8)] if False else [])))
                for tb in range(2):
                    k = 2 * (s * 8 + cb) + tb
                    d = ACC(accset, cb, tb)
                    out += pre[k]
                    out.append(Inst(f"v_mfma_f32_16x16x32_bf16 {d}, {AF3(s,cb)}, {BF3(st,s,tb)}, {d}"))
                    out += mem[k]; out += gaps[k]
        return out
    post = Prog()
    post("s_cmp_ge_u32 s2, 256\ns_cbranch_scc1 KB_end")
    T(post, 0)
    post(f"""
    s_load_dwordx2 s[40:41], s[0:1], 32
    s_load_dwordx2 s[42:43], s[0:1], 64
    s_load_dwordx2 s[34:35], s[0:1], 88
    s_load_dwordx2 s[30:31], s[0:1], 0
    s_load_dwordx2 s[32:33], s[0:1], 72
    s_load_dwordx2 s[72:73], s[0:1], 80
    v_and_b32 v1, 63, v0
    v_lshrrev_b32 v2, 6, v0
    s_nop 0
    v_readfirstlane_b32 s3, v2
    s_and_b32 {PART}, s2, 3
    s_bfe_u32 {TM}, s2, 0x10002
    s_lshl_b32 {TM}, {TM}, 3
    s_bfe_u32 s6, s2, 0x30003
    s_add_u32 {TM}, {TM}, s6
    s_lshr_b32 {TN}, s2, 6
    s_mul_i32 {S_GP}, {PART}, {NCH}
    s_sub_u32 s14, 92, {S_GP}
    s_min_u32 s14, s14, {NCH}
    s_lshl_b32 s14, s14, 14
    s_mul_i32 s6, {TM}, {92*16384 + opts.get("actpad", 4096)}
    s_lshl_b32 s7, {S_GP}, 14
    s_add_u32 s6, s6, s7
    s_add_u32 s36, s6, {WS_ACT}
    s_lshl_b32 {S_OA}, s3, 11
    s_lshl_b32 {S_OW}, {S_GP}, 16
    s_lshl_b32 s7, {TN}, 8
    s_add_u32 {S_OW}, {S_OW}, s7
    s_lshl_b32 {S_MW}, s3, 12
    v_lshrrev_b32 v2, 4, v1
    v_and_b32 v3, 15, v1
    s_lshl_b32 s7, s3, 4
    """)
    for ii in range(4):
        post(f"""
        v_add_u32 v4, {4*(ii&1)}, v2
        v_lshlrev_b32 v4, 1, v4
        v_xor_b32 v4, v4, v3
        v_lshlrev_b32 v4, 4, v4
        v_add_u32 v5, s7, v2
        v_add_u32 v5, {4*ii}, v5
        v_lshl_add_u32 v4, v5, 10, v4
        v_subrev_u32 {VOW(ii)}, {1024*ii}, v4
        """)
    act_lane_offset(post, VOA(0), VOA(1))
    post(f"""
    s_waitcnt lgkmcnt(0)
    s_and_b32 s41, s41, 0xffff
    s_sub_u32 s42, s42, {64*65536}
    s_subb_u32 s43, s43, 0
    s_and_b32 s43, s43, 0xffff
    s_mov_b32 s10, {92*65536}
    s_mov_b32 s11, 0x20000
    s_mov_b32 s20, s34
    s_and_b32 s21, s35, 0xffff
    s_mov_b32 s22, 0x10000000
    s_mov_b32 s23, 0x20000
    s_add_u32 s12, s34, s36
    s_addc_u32 s13, s35, 0
    s_and_b32 s13, s13, 0xffff
    s_mov_b32 s15, 0x20000
    """)
    if opts.get("kbuniq"):
        for i in range(4):
            post(f"s_cmp_eq_u32 {TN}, {i}\ns_cselect_b32 s{60+i}, {S_OA}, 0xf0000000")
        if opts.get("kbuniq") == 2:
            post(f"s_and_b32 s6, {TM}, 7\ns_cmp_eq_u32 s6, 0\ns_cselect_b32 {S_OW}, {S_OW}, 0xf0000000")
    post.extend(sel_w())
    if G2:
        for c in range(3): gr, adv = dma_w(c); issue_groups(post, gr); post.extend(adv)
        for c in range(3): gr, adv = ld_a(c); issue_groups(post, gr); post.extend(adv)
        for c in range(3, 5): gr, adv = dma_w(c); issue_groups(post, gr); post.extend(adv)
        for c in range(3, DB): gr, adv = ld_a(c); issue_groups(post, gr); post.extend(adv)
    else:
        for c in range(D):
            gr, adv = dma_w(c); issue_groups(post, gr); post.extend(adv)
            gr, adv = ld_a(c); issue_groups(post, gr); post.extend(adv)
    NINI = 4 * DW + 4 * DB
    NT = 0
    if opts.get("tlbwarm", 0):
        NT += 2
        post(f"""
        s_lshl_b32 s6, {TM}, 2
        s_add_u32 s6, s6, {TN}
        s_mul_i32 s6, s6, {5*32768 + opts.get('slabpad', 256)}
        s_add_u32 s6, s6, {WS_SLAB + 5*32768}
        v_mov_b32 v4, 0
        buffer_load_dword v230, v4, {SRD_WS}, s6 offen
        s_mov_b32 s44, s32
        s_and_b32 s45, s33, 0xffff
        s_mov_b32 s46, {2048*1024}
        s_mov_b32 s47, 0x20000
        s_lshl_b32 s6, {TM}, 17
        buffer_load_dword v231, v4, s[44:47], s6 offen
        """)
    if opts.get("ctouch", 0):
        post("s_and_b32 s6, s3, 1")
        code_touch(post, "oproj_kernel", "TEXT_END", "s6", 2, vt=(238, 239, 240))
        NT += 1
    if opts.get("kbtouch"):
        NT += 5
        post(f"""
        v_and_b32 v4, 31, v1
        v_lshlrev_b32 v4, 7, v4
        v_lshrrev_b32 v5, 5, v1
        v_lshl_add_u32 v4, v5, 16, v4
        s_lshl_b32 s6, {TN}, 14
        s_lshl_b32 s7, s3, 12
        s_add_u32 s6, s6, s7
        s_add_u32 s6, s6, {4*16384}
        buffer_load_dword v232, v4, {SRD_A}, s6 offen
        s_add_u32 s6, s6, {8*16384}
        buffer_load_dword v233, v4, {SRD_A}, s6 offen
        s_add_u32 s6, s6, {8*16384}
        buffer_load_dword v234, v4, {SRD_A}, s6 offen
        """)
        post(f"""
        s_and_b32 s58, {TM}, 7
        s_lshl_b32 s58, s58, 2
        s_add_u32 s58, s58, {TN}
        s_lshl_b32 s58, s58, 2
        s_add_u32 s58, s58, s3
        s_mul_i32 s58, s58, 10
        s_add_u32 s58, s58, 256
        s_mul_i32 s59, {PART}, {24*64}
        s_add_u32 s59, s59, s58
        s_cmp_lt_u32 s59, 4096
        s_cselect_b32 s44, s40, s42
        s_cselect_b32 s45, s41, s43
        s_cselect_b32 s46, {64*65536}, s10
        s_mov_b32 s47, 0x20000
        s_lshl_b32 s59, s59, 10
        v_lshlrev_b32 v4, 7, v1
        v_add_u32 v5, 8192, v4
        buffer_load_dword v235, v4, s[44:47], s59 offen
        v_cmp_gt_u32 vcc, 16, v1
        s_and_saveexec_b64 s[6:7], vcc
        buffer_load_dword v236, v5, s[44:47], s59 offen
        s_mov_b64 exec, s[6:7]
        """)
    post(f"""
    v_bfe_u32 v2, v1, 2, 2
    v_and_b32 v3, 3, v1
    v_lshrrev_b32 v4, 4, v1
    v_lshl_add_u32 v6, v4, 2, v2
    v_and_b32 v8, 7, v6
    v_lshlrev_b32 v8, 1, v8
    v_lshlrev_b32 v6, 8, v6
    v_and_b32 v7, 1, v3
    v_lshl_add_u32 v6, v7, 3, v6
    v_lshrrev_b32 v7, 1, v3
    """)
    for cb in range(8):
        post(f"""
        v_add_u32 v9, {2*cb}, v7
        v_xor_b32 v9, v9, v8
        v_lshl_add_u32 {VA(cb)}, v9, 4, v6
        v_add_u32 {VA(cb,1)}, 65536, {VA(cb)}
        """)
    for i in range(128): post(f"v_mov_b32 v{16+i}, 0")
    post(f"""
    s_mov_b32 s56, {24//R}
    s_mov_b32 s57, 0
    s_cmp_eq_u32 {PART}, 2
    s_cselect_b32 s56, {16//R}, s56
    s_cselect_b32 s57, {8//R}, s57
    s_cmp_eq_u32 {PART}, 3
    s_cselect_b32 s56, 0, s56
    s_cselect_b32 s57, {24//R if R == 8 else 5}, s57
    s_waitcnt vmcnt({NINI-4+NT})
    s_barrier
    """)
    T(post, 9)
    for s in range(2):
        for cb in range(8): post.extend(a_rd(s, cb, 0))
    post("s_cmp_eq_u32 s56, 0\ns_cbranch_scc1 K3_l1pre")
    body0 = []; body1 = []
    for c in range(R): body0 += period(c, 0); body1 += period(c, 1)
    body0 += [Inst("s_sub_u32 s56, s56, 1"), Inst("s_cmp_lg_u32 s56, 0"), Inst("s_cbranch_scc1 K3_loop0")]
    mid = [Inst("K3_l1pre:"), Inst("s_cmp_eq_u32 s57, 0"), Inst("s_cbranch_scc1 K3_post")]
    body1 += [Inst("s_sub_u32 s57, s57, 1"), Inst("s_cmp_lg_u32 s57, 0"), Inst("s_cbranch_scc1 K3_loop1")]
    fin = Prog()
    fin("K3_post:")
    fin("s_waitcnt lgkmcnt(0)\ns_nop 15")
    T(fin, 10)
    fin(f"""
    s_lshl_b32 s7, {TM}, 2
    s_add_u32 s7, s7, {TN}
    s_mul_i32 s58, s7, {5*32768 + opts.get('slabpad', 256)}
    s_add_u32 s58, s58, {WS_SLAB}
    s_lshl_b32 s59, s3, 13
    s_add_u32 s59, s59, s58
    s_lshl_b32 s6, {PART}, 15
    s_add_u32 s6, s6, s59
    v_lshlrev_b32 v2, 4, v1
    s_mov_b32 s36, 0xfffffffe
    s_cmp_eq_u32 {PART}, 3
    s_cbranch_scc1 K3_st1
    """)
    def slab_store(base):
        for j in range(8):
            t0 = 144 + (j & 3) * 4
            for i in range(4): fin(f"v_cvt_pk_bf16_f32 v{t0+i}, v{16+base+j*8+2*i}, v{16+base+j*8+2*i+1}")
            if opts.get("sent", 1):
                for i in range(4): fin(f"v_min_u32 v{t0+i}, s36, v{t0+i}")
            if j == 4: fin("s_add_u32 s6, s6, 4096")
            fin(f"buffer_store_dwordx4 v[{t0}:{t0+3}], v2, {SRD_WS}, s6 offen offset:{(j%4)*1024} sc1")
    slab_store(0)
    fin(f"""
    K3_st1:
    s_cmp_lt_u32 {PART}, 2
    s_cbranch_scc1 K3_sync
    s_add_u32 s6, {PART}, 1
    s_lshl_b32 s6, s6, 15
    s_add_u32 s6, s6, s59
    """)
    slab_store(64)
    fin(f"""
    K3_sync:
    s_mov_b32 s8, s30
    s_and_b32 s9, s31, 0xffff
    s_mov_b32 s10, {2048*1024}
    s_mov_b32 s11, 0x20000
    s_mov_b32 s12, s32
    s_and_b32 s13, s33, 0xffff
    s_mov_b32 s14, {2048*1024}
    s_mov_b32 s15, 0x20000
    s_lshl_b32 s6, {TM}, 7
    s_lshl_b32 s74, {PART}, 5
    s_add_u32 s6, s6, s74
    s_lshl_b32 s6, s6, 10
    s_lshl_b32 s74, {TN}, 8
    s_add_u32 s6, s6, s74
    s_lshl_b32 s74, s3, 6
    s_add_u32 s37, s6, s74
    v_and_b32 v3, 15, v1
    v_lshrrev_b32 v4, 4, v1
    v_lshlrev_b32 v3, 10, v3
    v_lshl_add_u32 v3, v4, 3, v3
    v_add_u32 v4, 16384, v3
    """)
    for jj in range(2):
        for tb in range(2):
            b = 200 + (jj * 2 + tb) * 2
            fin(f"buffer_load_dwordx2 v[{b}:{b+1}], v{3+tb}, s[8:11], s37 offen offset:{jj*32}")
    fin(f"""
    s_lshl_b32 s59, {PART}, 13
    s_add_u32 s59, s59, s58
    s_lshl_b32 s6, s3, 11
    s_add_u32 s59, s59, s6
    """)
    if opts.get("sent", 1):
        fin("s_mov_b32 s79, 0x40000")
        fin("K3_retry:")
        for sl in range(5):
            fin(f"s_add_u32 s6, s59, {sl*32768}")
            for jj in range(2):
                b = 16 + (sl * 2 + jj) * 4
                fin(f"buffer_load_dwordx4 v[{b}:{b+3}], v2, {SRD_WS}, s6 offen offset:{jj*1024} sc1")
        fin("s_waitcnt vmcnt(0)")
        fin("v_max3_u32 v60, v16, v17, v18")
        for i in range(19, 55, 2): fin(f"v_max3_u32 v60, v60, v{i}, v{i+1}")
        fin("v_max_u32 v60, v60, v55")
        fin("""
        v_cmp_eq_u32 vcc, -1, v60
        s_nop 4
        s_cbranch_vccz K3_ready
        s_sleep 1
        s_sub_u32 s79, s79, 1
        s_cbranch_scc0 K3_retry
        K3_ready:
        """)
        T(fin, 11)
    else:
        fin(f"""
        s_waitcnt vmcnt(4)
        s_barrier
        s_cmp_lg_u32 s3, 0
        s_cbranch_scc1 K3_wait
        s_and_b32 s6, s7, 3
        s_lshl_b32 s6, s6, 6
        s_lshr_b32 s74, s7, 4
        s_lshl_b32 s74, s74, 2
        s_add_u32 s6, s6, s74
        s_bfe_u32 s74, s7, 0x20002
        s_lshl_b32 s74, s74, 3
        s_lshl_b32 s75, 1, s74
        v_mov_b32 v6, s6
        v_mov_b32 v7, s75
        s_mov_b64 exec, 1
        global_atomic_add v6, v7, {SRD_DBG} sc1
        """)
        poll(fin, "K3_spin", "v6", 4, shift="s74", sleep=1)
        fin(f"""
        s_mov_b64 exec, -1
        K3_wait:
        s_barrier
        """)
        T(fin, 11)
        for sl in range(5):
            fin(f"s_add_u32 s6, s59, {sl*32768}")
            for jj in range(2):
                b = 16 + (sl * 2 + jj) * 4
                fin(f"buffer_load_dwordx4 v[{b}:{b+3}], v2, {SRD_WS}, s6 offen offset:{jj*1024} sc1")
    fin(f"s_mov_b32 s7, {f32hex(-LOG2E)}")
    for jj in range(2):
        for tb in range(2):
            src = lambda sl, i: f"v{16+(sl*2+jj)*4+tb*2+i}"
            sv = [f"v{60+r}" for r in range(4)]; yv = [f"v{64+r}" for r in range(4)]; tv = [f"v{68+r}" for r in range(4)]
            def unp(dst, sl):
                fin(f"v_lshlrev_b32 {dst[0]}, 16, {src(sl,0)}\nv_and_b32 {dst[1]}, 0xffff0000, {src(sl,0)}")
                fin(f"v_lshlrev_b32 {dst[2]}, 16, {src(sl,1)}\nv_and_b32 {dst[3]}, 0xffff0000, {src(sl,1)}")
            unp(sv, 0); unp(tv, 1)
            for r in range(4): fin(f"v_add_f32 {sv[r]}, {sv[r]}, {tv[r]}")
            unp(tv, 2)
            for r in range(4): fin(f"v_add_f32 {sv[r]}, {sv[r]}, {tv[r]}")
            unp(yv, 3); unp(tv, 4)
            for r in range(4): fin(f"v_add_f32 {yv[r]}, {yv[r]}, {tv[r]}")
            for r in range(4): fin(f"v_mul_f32 {tv[r]}, s7, {yv[r]}")
            for r in range(4): fin(f"v_exp_f32 {tv[r]}, {tv[r]}")
            for r in range(4): fin(f"v_add_f32 {tv[r]}, 1.0, {tv[r]}")
            for r in range(4): fin(f"v_rcp_f32 {tv[r]}, {tv[r]}")
            for r in range(4): fin(f"v_mul_f32 {yv[r]}, {yv[r]}, {tv[r]}")
            xb = 200 + (jj * 2 + tb) * 2
            fin(f"v_lshlrev_b32 {tv[0]}, 16, v{xb}\nv_and_b32 {tv[1]}, 0xffff0000, v{xb}\nv_lshlrev_b32 {tv[2]}, 16, v{xb+1}\nv_and_b32 {tv[3]}, 0xffff0000, v{xb+1}")
            for r in range(4): fin(f"v_fma_f32 {sv[r]}, {sv[r]}, {yv[r]}, {tv[r]}")
            ob = 72 + 2 * ((jj * 2 + tb) & 1)
            fin(f"v_cvt_pk_bf16_f32 v{ob}, {sv[0]}, {sv[1]}\nv_cvt_pk_bf16_f32 v{ob+1}, {sv[2]}, {sv[3]}")
            fin(f"buffer_store_dwordx2 v[{ob}:{ob+1}], v{3+tb}, s[12:15], s37 offen offset:{jj*32}")
    if opts.get("time"):
        fin("s_waitcnt vmcnt(0)")
        T(fin, 8)
        fin(f"""
        s_waitcnt lgkmcnt(0)
        s_lshl_b32 s6, s2, 2
        s_add_u32 s6, s6, s3
        s_lshl_b32 s6, s6, 6
        s_add_u32 s6, s6, {WS_TIME + 65536}
        v_mov_b32 v3, s6
        """)
        for k_, i in enumerate((0, 9, 10, 11, 8)):
            fin(f"v_mov_b32 v2, s{SB(i)}\nbuffer_store_dword v2, v3, {SRD_WS}, 0 offen offset:{4*k_}")
        for i in range(2):
            fin(f"v_mov_b32 v2, s{64+2*i}\nbuffer_store_dword v2, v3, {SRD_WS}, 0 offen offset:{32+4*i}")
    if opts.get("dbgtime"):
        fin(f"""
        s_cmp_lg_u32 s2, {opts.get("dbgwg", 0)}
        s_cbranch_scc1 KB_end
        s_cmp_lg_u32 s3, 0
        s_cbranch_scc1 KB_end
        s_waitcnt vmcnt(0)
        v_lshlrev_b32 v2, 2, v1
        v_add_u32 v2, {WS_TIME + opts.get("dbgwg", 0) * 256}, v2
        buffer_load_dword v3, v2, {SRD_WS}, 0 offen sc1
        s_waitcnt vmcnt(0)
        v_readfirstlane_b32 s6, v3
        s_nop 1
        v_subrev_u32 v3, s6, v3
        v_mov_b32 v4, s{SB(0)}
        v_subrev_u32 v4, s6, v4
        v_mov_b32 v5, s{SB(8)}
        v_subrev_u32 v5, s6, v5
        v_mov_b32 v6, s{SB(9)}
        v_subrev_u32 v6, s6, v6
        v_mov_b32 v7, s{SB(10)}
        v_subrev_u32 v7, s6, v7
        v_cmp_eq_u32 vcc, 8, v1
        s_nop 1
        v_cndmask_b32 v3, v3, v4, vcc
        v_cmp_eq_u32 vcc, 9, v1
        s_nop 1
        v_cndmask_b32 v3, v3, v6, vcc
        v_cmp_eq_u32 vcc, 10, v1
        s_nop 1
        v_cndmask_b32 v3, v3, v7, vcc
        v_cmp_eq_u32 vcc, 11, v1
        s_nop 1
        v_cndmask_b32 v3, v3, v5, vcc
        v_lshlrev_b32 v2, 2, v1
        v_add_u32 v2, 16, v2
        v_cmp_gt_u32 vcc, 12, v1
        s_and_saveexec_b64 s[6:7], vcc
        global_store_dword v2, v3, {SRD_DBG}
        """)
    fin("KB_end:\ns_endpgm")
    po2, st = lin(post.insts, None, [])
    st_post = st.copy()
    b0, st = auto_wait_loop(body0, st); b0 = merge_adjacent_waits(b0)
    b1, st = auto_wait_loop_multi(body1, [st_post, st]); b1 = merge_adjacent_waits(b1)
    f2, st = lin(fin.insts, st, b1[-40:])
    for nm, seq in (("l3", po2[-40:] + b0 + b0 + b1 + b1 + f2[:30]),):
        for p_ in check_hazards(seq): print("HAZARD", nm, p_, file=sys.stderr)
    return po2 + [Inst("K3_loop0:")] + b0 + mid + [Inst("K3_loop1:")] + b1 + f2

def gen(opts):
    hdr = f"""; @launch kernel=attn_kernel grid=(256,1,1) block=(256,1,1) lds=131328
; @launch kernel=oproj_kernel grid=(256,1,1) block=(256,1,1) lds=131072
;
;
.amdgcn_target "amdgcn-amd-amdhsa--gfx950"
.text
"""
    return hdr + kernel_text("attn_kernel", gen_ka(opts), 512, 256) + kernel_text("oproj_kernel", gen_kb(opts) + [Inst("TEXT_END:")], 384, 256)

if __name__ == "__main__":
    opts = {}
    for a in sys.argv[2:]:
        k, _, v = a.partition("=")
        opts[k] = int(v) if v else 1
    open(sys.argv[1], "w").write(gen(opts))
```

```python
import sys, math
sys.path.insert(0, "dev")
from asmdsl import *
from gen import (NAME, WS_XN, WS_ACT, WS_SLAB, WS_TIME, LOG2E, QSCALE, f32hex, kernel_text, finish, rbf16,
                 S, P, NEGM, Qb, Q, VKA, VVA, VOFFK, VOFFV, L, O, KF, VF, SRD_K, SRD_V, SRD_K0, SRD_WS, S_OFF, S_WB, S_CNT,
                 SRD_WQ, SRD_G, SRD_U, k_read, v_reads, dma_k, dma_v, emit_phase)
from gen2 import ln_rows
from phase2 import emit_phase2, LACCN, ONES_A, LREGS
import gen as _g

SRD_DBG = "s[72:73]"
SB = lambda i: 80 + (i % 11) * 2 if i < 11 else 60 + (i - 11) * 2
CY = {1: 64, 2: 66, 3: 68, 4: 70, 9: 64, 10: 66}
def stamp(pr, opts, idx):
    if opts.get("time"):
        b = SB(idx)
        pr(f"s_memrealtime s[{b}:{b+1}]")
        if idx in CY: pr(f"s_memtime s[{CY[idx]}:{CY[idx]+1}]")

def poll(pr, label, addr_v, thresh, shift=None, sleep=2, cache="sc1"):
    pr(f"""
    s_mov_b32 s79, 0x40000
    {label}:
    global_load_dword v5, {addr_v}, {SRD_DBG} {cache}
    s_waitcnt vmcnt(0)
    v_readfirstlane_b32 s75, v5
    """)
    if shift is not None:
        pr(f"s_lshr_b32 s75, s75, {shift}\ns_and_b32 s75, s75, 0xff")
    pr(f"""
    s_cmp_ge_u32 s75, {thresh}
    s_cbranch_scc1 {label}_ok
    s_sleep {sleep}
    s_sub_u32 s79, s79, 1
    s_cbranch_scc0 {label}
    {label}_ok:
    """)

def lin(insts, st, prev):
    a, st = auto_wait_linear(insts, st)
    a = merge_adjacent_waits(a)
    n = len(prev)
    return check_hazards(prev + a, fix=True)[n:], st

def issue_groups(pr, groups):
    for d in groups:
        pr.extend(d[:-1])
        if len(d) > 1: pr("s_nop 0")
        pr.extend(d[-1:])

def QACC(cb, tb, r=None):
    b = 16 + (cb * 4 + tb) * 4
    return f"v[{b}:{b+3}]" if r is None else f"v{b+r}"
def GACC(cb, tb, r=None):
    b = (cb * 4 + tb) * 4
    return f"a[{b}:{b+3}]" if r is None else f"a{b+r}"
def UACC(cb, tb, r=None):
    b = 64 + (cb * 4 + tb) * 4
    return f"a[{b}:{b+3}]" if r is None else f"a{b+r}"
def AF(cb, u=None):
    b = 128 + cb * 4
    if u is None: return f"a[{b}:{b+3}]"
    return f"a[{b+2*u}:{b+2*u+1}]"
def BF(st, tb):
    b = 144 + st * 16 + tb * 4
    return f"v[{b}:{b+3}]"
VA_Q = lambda ds: f"v{230+ds}"
VA_G = lambda cb: f"v{234+cb}"
VO_X = "v238"; VO_WQ = lambda ii: f"v{239+ii}"; VO_G = "v241"
S_OX = "s50"; S_OWQ = "s51"; S_OGU = "s52"
S_MWQ = "s55"; S_MG = "s56"; S_MU = "s57"
GW = 65536

def a_reads(cb, stage):
    if cb < 8:
        ds, h = cb >> 1, cb & 1
        return [Inst(f"ds_read_b64_tr_b16 {AF(cb,u)}, {VA_Q(ds)} offset:{stage*16384 + 8*h + 1024*u}") for u in range(2)]
    mat, c2 = (cb - 8) >> 2, (cb - 8) & 3
    return [Inst(f"ds_read_b64_tr_b16 {AF(cb,u)}, {VA_G(c2)} offset:{stage*16384 + 8192 + 4096*mat + 512*u}") for u in range(2)]
def w_dma(stage):
    r = []
    r.append([Inst(f"s_add_u32 m0, {S_MWQ}, {stage*16384}"), Inst(f"buffer_load_dwordx4 {VO_WQ(0)}, {SRD_WQ}, {S_OWQ} offen lds")])
    r.append([Inst(f"buffer_load_dwordx4 {VO_WQ(1)}, {SRD_WQ}, {S_OWQ} offen offset:1024 lds")])
    r.append([Inst(f"s_add_u32 m0, {S_MG}, {stage*16384}"), Inst(f"buffer_load_dwordx4 {VO_G}, {SRD_G}, {S_OGU} offen lds")])
    r.append([Inst(f"s_add_u32 m0, {S_MU}, {stage*16384}"), Inst(f"buffer_load_dwordx4 {VO_G}, {SRD_U}, {S_OGU} offen lds")])
    adv = [Inst(f"s_add_u32 {S_OWQ}, {S_OWQ}, {32*8192}"), Inst(f"s_add_u32 {S_OGU}, {S_OGU}, {32*3584}")]
    return r, adv
def x_loads(st):
    r = [[Inst(f"buffer_load_dwordx4 {BF(st,tb)}, {VO_X}, {SRD_WS}, {S_OX} offen offset:{tb*1024} sc1")] for tb in range(4)]
    return r, [Inst(f"s_add_u32 {S_OX}, {S_OX}, 16384")]

def gemm_period(c, groups, adv, read_next=True, extra=(), nvm=8):
    st = c & 3
    NG = 64
    pre = [[] for _ in range(NG + 1)]; mem = [[] for _ in range(NG + 1)]; gaps = [[] for _ in range(NG + 1)]
    pre[0].append(Hint(*[BF(st, t) for t in range(4)]))
    if nvm is not None: pre[0].append(Inst(f"s_waitcnt vmcnt({nvm})"))
    pre[0].append(Inst("s_barrier"))
    if read_next:
        for cb in range(16):
            rd = a_reads(cb, (c + 1) & 3)
            if cb < 15:
                mem[4 * cb + 4].append(rd[0]); mem[4 * cb + 5].append(rd[1])
            else:
                mem[63].append(rd[0]); mem[63].append(rd[1])
    pos = [2, 6, 10, 14, 18, 22, 26, 30, 34, 38, 42, 46]
    for gp, d in zip(pos, groups):
        gaps[gp - 1] += d[:-1]
        mem[gp] += d[-1:]
    for i, a in enumerate(adv): gaps[48 + i].append(a)
    for gp, lst in extra:
        for ins in lst:
            (mem if ins.kind in ("vmem", "dma", "lds") else gaps)[gp].append(ins)
    out = []
    for cb in range(16):
        if cb % 4 == 0:
            pre[4 * cb].insert(0, Hint(*[AF(c_) for c_ in range(cb, cb + 4)]))
        for tb in range(4):
            k = 4 * cb + tb
            d = QACC(cb, tb) if cb < 8 else GACC(cb - 8, tb) if cb < 12 else UACC(cb - 12, tb)
            out += pre[k]
            out.append(Inst(f"v_mfma_f32_16x16x32_bf16 {d}, {AF(cb)}, {BF(st,tb)}, {d}"))
            out += mem[k]; out += gaps[k]
    return out

def act_lane_offset(pr, dst0, dst1=None):
    pr(f"""
    v_and_b32 v2, 15, v1
    v_lshrrev_b32 v3, 4, v1
    v_bfe_u32 v4, v1, 2, 1
    v_lshlrev_b32 v4, 1, v4
    v_bfe_u32 v5, v1, 3, 1
    v_mul_u32_u24 v5, 3, v5
    v_xor_b32 v4, v4, v5
    v_xor_b32 v4, v4, v3
    v_lshlrev_b32 v4, 4, v4
    v_lshl_add_u32 {dst0}, v2, 6, v4
    """)
    if dst1: pr(f"v_add_u32 {dst1}, 8192, {dst0}")


def code_touch(pr, start_label, end_label, idx_sgpr, nblk, vt=(250, 251, 252)):
    a, b, d = vt
    pr(f"""
    s_getpc_b64 s[78:79]
    CT_{start_label}:
    s_sub_u32 s78, s78, CT_{start_label}-{start_label}
    s_subb_u32 s79, s79, 0
    s_lshl_b32 s77, {idx_sgpr}, 13
    v_lshlrev_b32 v{a}, 7, v1
    v_add_u32 v{a}, s77, v{a}
    v_min_u32 v{a}, {end_label}-{start_label}-4, v{a}
    v_mov_b32 v{b}, s79
    v_add_co_u32 v{a}, vcc, s78, v{a}
    v_addc_co_u32 v{b}, vcc, 0, v{b}, vcc
    global_load_dword v{d}, v[{a}:{b}], off
    """)

def gen_ka(opts):
    global emit_phase
    NS = opts.get('nsum', 2) if opts.get('ph2', 1) else 0
    emit_phase = emit_phase2 if opts.get('ph2', 1) else _g.emit_phase
    opts = dict(opts); opts['nsum'] = NS
    T = lambda pr, idx: stamp(pr, opts, idx)
    pr = Prog()
    pr("s_cmp_ge_u32 s2, 256\ns_cbranch_scc1 KA_end")
    T(pr, 0)
    pr(f"""
    s_load_dwordx2 s[76:77], s[0:1], 0
    s_load_dwordx2 s[34:35], s[0:1], 88
    s_load_dwordx4 s[28:31], s[0:1], 8
    s_load_dwordx2 s[32:33], s[0:1], 24
    s_load_dwordx4 s[40:43], s[0:1], 48
    s_load_dwordx2 s[72:73], s[0:1], 80
    v_and_b32 v1, 63, v0
    v_lshrrev_b32 v2, 6, v0
    s_nop 0
    v_readfirstlane_b32 s3, v2
    s_and_b32 s4, s2, 7
    s_lshl_b32 s4, s4, 2
    s_lshr_b32 s5, s2, 3
    s_and_b32 s6, s5, 3
    s_add_u32 s4, s4, s6
    s_lshr_b32 s5, s2, 5
    s_lshl_b32 {S_WB}, s3, 12
    s_lshl_b32 s16, s5, 8
    s_lshl_b32 s17, s4, 3
    s_add_u32 s16, s16, s17
    s_lshl_b32 s17, s3, 1
    s_add_u32 s16, s16, s17
    s_lshl_b32 s17, s16, 10
    v_lshlrev_b32 v2, 4, v1
    s_waitcnt lgkmcnt(0)
    s_mov_b32 s8, s76
    s_and_b32 s9, s77, 0xffff
    s_mov_b32 s10, {2048*1024}
    s_mov_b32 s11, 0x20000
    buffer_load_dwordx4 v[4:7], v2, s[8:11], s17 offen
    buffer_load_dwordx4 v[8:11], v2, s[8:11], s17 offen offset:1024
    s_mov_b32 s20, s34
    s_and_b32 s21, s35, 0xffff
    s_mov_b32 s22, 0x10000000
    s_mov_b32 s23, 0x20000
    s_mov_b32 s36, s32
    s_and_b32 s37, s33, 0xffff
    s_mov_b32 s38, {0 if opts.get("kanow") else 512*8192}
    s_mov_b32 s39, 0x20000
    s_mov_b32 s44, s42
    s_and_b32 s45, s43, 0xffff
    s_and_b32 s41, s41, 0xffff
    s_cmp_lt_u32 s4, 28
    s_cselect_b32 s42, {0 if opts.get("kanow") else 512*3584}, 0
    s_mov_b32 s46, s42
    s_mov_b32 s43, 0x20000
    s_mov_b32 s47, 0x20000
    s_lshl_b32 {S_OX}, s5, 18
    s_add_u32 {S_OX}, {S_OX}, {WS_XN}
    s_add_u32 {S_OX}, {S_OX}, {S_WB}
    {"s_mov_b32 s50, 0xf0000000" if opts.get("kanox") else ""}
    s_lshl_b32 {S_OWQ}, s4, 8
    s_lshl_b32 {S_OGU}, s4, 7
    s_lshl_b32 s6, s3, 11
    s_add_u32 {S_MWQ}, s6, {GW}
    s_lshl_b32 s6, s3, 10
    s_add_u32 {S_MG}, s6, {GW + 8192}
    s_add_u32 {S_MU}, s6, {GW + 12288}
    v_lshrrev_b32 v12, 4, v1
    v_and_b32 v13, 15, v1
    v_lshlrev_b32 v14, 2, v12
    v_xor_b32 v14, v14, v13
    v_lshlrev_b32 v14, 4, v14
    s_lshl_b32 s6, s3, 3
    v_add_u32 v15, s6, v12
    v_lshlrev_b32 v15, 13, v15
    v_add_u32 {VO_WQ(0)}, v15, v14
    v_add_u32 {VO_WQ(1)}, {4*8192-1024}, {VO_WQ(0)}
    v_lshrrev_b32 v12, 3, v1
    v_and_b32 v13, 7, v1
    v_bfe_u32 v14, v1, 4, 1
    s_and_b32 s7, s3, 1
    s_lshl_b32 s7, s7, 1
    v_or_b32 v14, s7, v14
    v_lshlrev_b32 v14, 1, v14
    v_xor_b32 v14, v14, v13
    v_add_u32 v15, s6, v12
    s_movk_i32 s7, 3584
    v_mul_lo_u32 v15, v15, s7
    v_lshl_add_u32 {VO_G}, v14, 4, v15
    """)
    for c in range(3):
        gr, adv = w_dma(c)
        issue_groups(pr, gr); pr.extend(adv)
    if opts.get("wearly", 0):
        pr(f"""
        s_cmp_lt_u32 s3, 2
        s_cbranch_scc0 K_we_gu
        s_mov_b32 s64, s36
        s_mov_b32 s65, s37
        s_mov_b32 s66, s38
        v_lshrrev_b32 v12, 1, v1
        s_and_b32 s6, s3, 1
        s_lshl_b32 s6, s6, 5
        s_lshl_b32 s7, s5, 6
        s_add_u32 s6, s6, s7
        v_add_u32 v12, s6, v12
        v_lshlrev_b32 v12, 13, v12
        v_and_b32 v13, 1, v1
        v_lshl_add_u32 v12, v13, 7, v12
        s_lshl_b32 s6, s4, 8
        s_branch K_we_go
        K_we_gu:
        s_cmp_eq_u32 s3, 2
        s_cselect_b32 s64, s40, s44
        s_cselect_b32 s65, s41, s45
        s_mov_b32 s66, s42
        s_lshl_b32 s7, s5, 6
        v_add_u32 v12, s7, v1
        s_movk_i32 s7, 3584
        v_mul_lo_u32 v12, v12, s7
        s_lshl_b32 s6, s4, 7
        K_we_go:
        s_mov_b32 s67, 0x20000
        buffer_load_dword v249, v12, s[64:67], s6 offen
        """)
    if opts.get("ctouch", 0):
        pr("""
        s_lshr_b32 s6, s2, 3
        s_lshl_b32 s6, s6, 2
        s_add_u32 s6, s6, s3
        s_mul_i32 s7, s6, 43
        s_lshr_b32 s7, s7, 8
        s_mul_i32 s7, s7, 6
        s_sub_u32 s6, s6, s7
        """)
        code_touch(pr, "attn_kernel", "TEXT_END", "s6", 6)
    pr(f"""
    v_bfe_u32 v3, v1, 2, 3
    v_lshlrev_b32 v3, 14, v3
    v_lshrrev_b32 v12, 5, v1
    v_lshl_add_u32 v3, v12, 6, v3
    v_and_b32 v12, 3, v1
    s_lshr_b32 s18, s16, 8
    s_lshl_b32 s18, s18, 18
    s_and_b32 s19, s16, 255
    s_lshl_b32 s6, s19, 6
    s_add_u32 s18, s18, s6
    s_add_u32 s18, s18, {WS_XN}
    s_lshr_b32 s6, s19, 2
    s_and_b32 s6, s6, 3
    s_and_b32 s7, s6, 1
    s_lshl_b32 s7, s7, 1
    s_lshr_b32 s6, s6, 1
    s_mul_i32 s6, s6, 3
    s_xor_b32 s7, s7, s6
    v_xor_b32 v12, s7, v12
    v_lshl_add_u32 v3, v12, 4, v3
    """)
    ln_rows(pr, opts)
    pr(f"""
    s_lshl_b32 s6, s4, 19
    s_add_u32 s16, s28, s6
    s_addc_u32 s17, s29, 0
    s_and_b32 s17, s17, 0xffff
    s_mov_b32 s18, 524288
    s_mov_b32 s19, 0x20000
    s_add_u32 s8, s16, 16384
    s_addc_u32 s9, s17, 0
    s_mov_b32 s10, {524288-16384}
    s_mov_b32 s11, 0x20000
    s_add_u32 s12, s30, s6
    s_addc_u32 s13, s31, 0
    s_and_b32 s13, s13, 0xffff
    s_mov_b32 s14, 524288
    s_mov_b32 s15, 0x20000
    """)
    pr("s_waitcnt vmcnt(0)\ns_barrier")
    T(pr, 6)
    pr(f"""
    s_and_b32 s6, s5, 3
    s_lshl_b32 s6, s6, 6
    s_lshr_b32 s7, s5, 2
    s_lshl_b32 s7, s7, 2
    s_add_u32 s74, s6, s7
    s_cmp_lg_u32 s3, 0
    s_cbranch_scc1 K_xn_skip
    v_mov_b32 v2, s74
    v_mov_b32 v4, 1
    s_mov_b64 exec, 1
    global_atomic_add v2, v4, {SRD_DBG} sc1
    s_mov_b64 exec, -1
    K_xn_skip:
    """)
    pr(f"""
    v_bfe_u32 v2, v1, 2, 2
    v_and_b32 v3, 3, v1
    v_lshrrev_b32 v4, 4, v1
    v_lshl_add_u32 v5, v4, 3, v2
    v_lshlrev_b32 v6, 8, v5
    v_add_u32 v6, {GW}, v6
    v_lshlrev_b32 v7, 2, v2
    """)
    for ds in range(4):
        pr(f"""
        v_add_u32 v8, {4*ds}, v3
        v_xor_b32 v8, v8, v7
        v_lshl_add_u32 {VA_Q(ds)}, v8, 4, v6
        """)
    pr(f"""
    v_lshlrev_b32 v6, 7, v5
    v_add_u32 v6, {GW}, v6
    v_and_b32 v7, 1, v3
    v_lshl_add_u32 v6, v7, 3, v6
    v_bfe_u32 v7, v1, 3, 1
    v_and_b32 v8, 1, v4
    v_lshl_or_b32 v7, v8, 1, v7
    v_lshlrev_b32 v7, 1, v7
    v_lshrrev_b32 v9, 1, v3
    """)
    for cb in range(4):
        pr(f"""
        v_add_u32 v8, {2*cb}, v9
        v_xor_b32 v8, v8, v7
        v_lshl_add_u32 {VA_G(cb)}, v8, 4, v6
        """)
    act_lane_offset(pr, VO_X)
    pr(f"""
    v_lshrrev_b32 v2, 4, v1
    v_and_b32 v3, 15, v1
    v_lshlrev_b32 v4, 8, v2
    v_add_u32 v4, {S_WB}, v4
    """)
    for ii in range(4):
        pr(f"""
        v_add_u32 v5, {4*ii}, v2
        v_xor_b32 v5, v5, v3
        v_lshl_add_u32 {VOFFK(ii)}, v5, 4, v4
        """)
    for par in range(2):
        pr(f"""
        v_add_u32 v5, {4*par}, v2
        v_lshlrev_b32 v5, 1, v5
        v_xor_b32 v5, v5, v3
        v_lshl_add_u32 {VOFFV(par)}, v5, 4, v4
        """)
    pr(f"""
    v_and_b32 v2, 15, v1
    v_lshrrev_b32 v3, 4, v1
    v_lshlrev_b32 v5, 8, v2
    """)
    for ds in range(4):
        pr(f"""
        v_add_u32 v6, {4*ds}, v3
        v_xor_b32 v6, v6, v2
        v_lshl_add_u32 {VKA(ds)}, v6, 4, v5
        """)
    pr(f"""
    v_bfe_u32 v2, v1, 2, 2
    v_and_b32 v3, 3, v1
    v_lshrrev_b32 v4, 4, v1
    v_lshl_add_u32 v6, v4, 2, v2
    v_and_b32 v8, 7, v6
    v_lshlrev_b32 v8, 1, v8
    v_lshlrev_b32 v6, 8, v6
    v_add_u32 v6, 65536, v6
    v_and_b32 v7, 1, v3
    v_lshl_add_u32 v6, v7, 3, v6
    v_lshrrev_b32 v7, 1, v3
    """)
    for db in range(8):
        pr(f"""
        v_add_u32 v9, {2*db}, v7
        v_xor_b32 v9, v9, v8
        v_lshl_add_u32 {VVA(db)}, v9, 4, v6
        """)
    for i in range(128): pr(f"v_mov_b32 v{16+i}, 0")
    for i in range(128): pr(f"v_accvgpr_write_b32 a{i}, 0")
    for cb in range(16): pr.extend(a_reads(cb, 0))
    pr(f"""
    s_cmp_lg_u32 s3, 0
    s_cbranch_scc1 K_xn_wait
    v_mov_b32 v2, s74
    s_mov_b64 exec, 1
    """)
    poll(pr, "K_xn_poll", "v2", 32)
    pr(f"""
    s_mov_b64 exec, -1
    K_xn_wait:
    s_barrier
    """)
    T(pr, 7)
    for c in range(3):
        gr, adv = x_loads(c)
        issue_groups(pr, gr); pr.extend(adv)
    T(pr, 1)
    pr(f"s_mov_b32 {S_CNT}, 3")
    seg_a = pr.insts
    def full(c):
        xg, xa = x_loads((c + 3) & 3); wg_, wa = w_dma((c + 3) & 3)
        return gemm_period(c, xg + wg_, xa + wa)
    body = []
    for c in range(4): body += full(c)
    body += [Inst(f"s_sub_u32 {S_CNT}, {S_CNT}, 1"), Inst(f"s_cmp_lg_u32 {S_CNT}, 0"), Inst("s_cbranch_scc1 K_gloop")]
    def mk_touch():
        tp = Prog()
        tp(f"""
        s_load_dwordx2 s[40:41], s[0:1], 32
        s_load_dwordx2 s[42:43], s[0:1], 64
        s_and_b32 s51, s2, 3
        s_bfe_u32 s58, s2, 0x30003
        s_lshl_b32 s58, s58, 2
        s_lshr_b32 s59, s2, 6
        s_add_u32 s58, s58, s59
        s_lshl_b32 s58, s58, 2
        s_add_u32 s58, s58, s3
        s_lshl_b32 s58, s58, 4
        s_mul_i32 s59, s51, {24*64}
        s_add_u32 s59, s59, s58
        v_lshlrev_b32 v242, 7, v1
        v_add_u32 v243, 8192, v242
        """)
        tp2 = Prog()
        tp2(f"""
        s_waitcnt lgkmcnt(0)
        s_and_b32 s41, s41, 0xffff
        s_sub_u32 s42, s42, {64*65536}
        s_subb_u32 s43, s43, 0
        s_and_b32 s43, s43, 0xffff
        s_cmp_lt_u32 s59, 4096
        s_cselect_b32 s44, s40, s42
        s_cselect_b32 s45, s41, s43
        s_mov_b32 s46, {92*65536}
        s_cselect_b32 s46, {64*65536}, s46
        s_mov_b32 s47, 0x20000
        s_lshl_b32 s59, s59, 10
        s_cmp_lt_u32 s58, {24*64}
        s_cselect_b32 s59, s59, 0xf0000000
        """)
        tp3 = [Inst("buffer_load_dword v240, v242, s[44:47], s59 offen"), Inst("buffer_load_dword v241, v243, s[44:47], s59 offen")]
        return tp.insts, tp2.insts, tp3
    p2 = Prog()
    p2.extend(full(12))
    p2(f"s_mov_b32 s6, 0\ns_mov_b32 s7, 16384")
    p2.extend(gemm_period(13, dma_k(3, SRD_K0, "0") + dma_v(0, "s6"), []))
    p2.extend(gemm_period(14, dma_k(0, SRD_K, "s6") + dma_v(1, "s7"), []))
    p2.extend(gemm_period(15, dma_k(1, SRD_K, "s7"), [], read_next=False, nvm=None))
    T(p2, 2)
    p2(f"s_mov_b32 s6, {f32hex(QSCALE)}\ns_mov_b32 s7, {f32hex(QSCALE)}\ns_nop 7")
    for tb in range(4):
        for ds in range(4):
            for h in range(2):
                b = 16 + ((2 * ds + h) * 4 + tb) * 4
                p2(f"v_pk_mul_f32 v[{b}:{b+1}], v[{b}:{b+1}], s[6:7]\nv_pk_mul_f32 v[{b+2}:{b+3}], v[{b+2}:{b+3}], s[6:7]")
            for h in range(2):
                cb = 2 * ds + h
                for i in range(2):
                    p2(f"v_cvt_pk_bf16_f32 v{Qb(tb,ds)+2*h+i}, {QACC(cb,tb,2*i)}, {QACC(cb,tb,2*i+1)}")
    p2("s_cmp_ge_u32 s4, 28\ns_cbranch_scc1 K_noh")
    p2(f"""
    s_lshl_b32 s6, s5, 1
    s_lshr_b32 s7, s3, 1
    s_add_u32 s6, s6, s7
    s_mul_i32 s6, s6, {92*16384 + opts.get("actpad", 4096)}
    s_add_u32 s7, s4, 64
    s_lshl_b32 s7, s7, 14
    s_add_u32 s6, s6, s7
    s_and_b32 s7, s3, 1
    s_lshl_b32 s7, s7, 12
    s_add_u32 s6, s6, s7
    s_add_u32 s6, s6, {WS_ACT}
    """)
    act_lane_offset(p2, "v2", "v3")
    p2(f"""
    s_mov_b32 s26, {f32hex(-LOG2E)}
    s_mov_b32 s27, {f32hex(-LOG2E)}
    s_mov_b32 s78, 1.0
    s_mov_b32 s79, 1.0
    """)
    for tb in range(4):
        for e in range(2):
            t0 = 16 + e * 32
            for hh in range(2):
                cb = 2 * e + hh
                for r in range(4):
                    j = hh * 4 + r
                    p2(f"v_accvgpr_read_b32 v{t0+j}, {GACC(cb,tb,r)}")
                    p2(f"v_accvgpr_read_b32 v{t0+8+j}, {UACC(cb,tb,r)}")
            pk = lambda op, d, a, b: p2(f"{op} v[{d}:{d+1}], v[{a}:{a+1}], {b}")
            for j in range(0, 8, 2): pk("v_pk_mul_f32", t0 + 16 + j, t0 + j, "s[26:27]")
            for j in range(8): p2(f"v_exp_f32 v{t0+16+j}, v{t0+16+j}")
            for j in range(0, 8, 2): pk("v_pk_mul_f32", t0 + j, t0 + j, f"v[{t0+8+j}:{t0+9+j}]")
            for j in range(0, 8, 2): pk("v_pk_add_f32", t0 + 16 + j, t0 + 16 + j, "s[78:79]")
            for j in range(8): p2(f"v_rcp_f32 v{t0+16+j}, v{t0+16+j}")
            for j in range(0, 8, 2): pk("v_pk_mul_f32", t0 + j, t0 + j, f"v[{t0+16+j}:{t0+17+j}]")
            for i in range(4): p2(f"v_cvt_pk_bf16_f32 v{t0+24+i}, v{t0+2*i}, v{t0+2*i+1}")
            p2(f"buffer_store_dwordx4 v[{t0+24}:{t0+27}], v{2+e}, {SRD_WS}, s6 offen offset:{tb*1024}" + (" sc1" if opts.get("hst") else ""))
    p2("K_noh:")
    p2("s_mov_b32 s27, 0")
    p3 = Prog()
    p3("K_astart:")
    for i in range(128): p3(f"v_accvgpr_write_b32 a{i}, 0")
    for qb in range(4): p3(f"v_mov_b32 {L(qb)}, 0")
    for i in range(4): p3(f"v_mov_b32 v{128+i}, 0x3f803f80")
    for j in range(NS):
        for i in range(4): p3(f"v_mov_b32 v{LREGS[j]+i}, 0")
    p3(f"s_mov_b32 {S_OFF}, 32768")
    if opts.get("kvtouch"):
        D = opts.get("kvdist", 2) * 16384
        p3(f"""
        s_cmp_lt_u32 s3, 2
        s_cselect_b32 s56, s8, s12
        s_cselect_b32 s57, s9, s13
        s_cselect_b32 s58, s10, s14
        s_add_u32 s56, s56, {D}
        s_addc_u32 s57, s57, 0
        s_sub_u32 s58, s58, {D}
        s_mov_b32 s59, 0x20000
        s_lshl_b32 s6, s5, 11
        s_and_b32 s7, s3, 1
        s_lshl_b32 s7, s7, 10
        s_add_u32 s6, s6, s7
        v_lshlrev_b32 v243, 4, v1
        v_add_u32 v243, s6, v243
        """)
    p3("s_waitcnt vmcnt(0) lgkmcnt(0)\ns_barrier")
    T(p3, 3)
    for f in range(4): p3.add(k_read(0, f))
    if opts.get("sent", 1):
        p3(f"""
        s_and_b32 s58, s2, 3
        s_bfe_u32 s59, s2, 0x10002
        s_lshl_b32 s59, s59, 3
        s_bfe_u32 s6, s2, 0x30003
        s_add_u32 s59, s59, s6
        s_lshl_b32 s59, s59, 2
        s_lshr_b32 s6, s2, 6
        s_add_u32 s59, s59, s6
        s_mul_i32 s59, s59, {5*32768 + opts.get('slabpad', 256)}
        s_add_u32 s59, s59, {WS_SLAB}
        s_lshl_b32 s58, s58, 13
        s_add_u32 s59, s59, s58
        s_lshl_b32 s6, s3, 11
        s_add_u32 s59, s59, s6
        v_lshlrev_b32 v8, 4, v1
        v_mov_b32 v4, -1
        v_mov_b32 v5, -1
        v_mov_b32 v6, -1
        v_mov_b32 v7, -1
        """)
        for sl in range(5):
            for jj in range(2):
                p3(f"buffer_store_dwordx4 v[4:7], v8, {SRD_WS}, s59 offen offset:{jj*1024}" + (" sc1" if opts.get("hst") else ""))
            if sl < 4: p3("s_add_u32 s59, s59, 32768")
    ph, carry = emit_phase(-1, opts, [])
    p3.extend(ph)
    p3("s_cmp_lg_u32 s27, 0\ns_cbranch_scc1 K_havemax")
    p3("s_nop 7")
    for qb in range(4):
        m = f"v{244+qb}"
        p3(f"v_max3_f32 {m}, {S(0,0,qb,0)}, {S(0,0,qb,1)}, {S(0,0,qb,2)}")
        p3(f"v_max3_f32 {m}, {m}, {S(0,0,qb,3)}, {S(0,1,qb,0)}")
        p3(f"v_max3_f32 {m}, {m}, {S(0,1,qb,1)}, {S(0,1,qb,2)}")
        p3(f"v_max_f32 {m}, {m}, {S(0,1,qb,3)}")
        p3(f"v_mov_b32 v248, {m}")
        p3(f"v_permlane32_swap_b32 v248, {m}")
        p3(f"v_max_f32 {m}, {m}, v248")
        p3(f"v_mov_b32 v248, {m}")
        p3(f"v_permlane16_swap_b32 v248, {m}")
        p3(f"v_max_f32 {m}, {m}, v248")
    p3("K_havemax:")
    p3("s_nop 7")
    for qb in range(4):
        m = f"v{244+qb}"
        for r in range(4): p3(f"v_sub_f32 {NEGM(qb,r)}, 0, {m}")
        for kb in range(2):
            for r in range(4): p3(f"v_sub_f32 {S(0,kb,qb,r)}, {S(0,kb,qb,r)}, {m}")
    p2 = (p2, p3); p2a, p2 = p2
    ph, carry = emit_phase(0, opts, carry)
    p2.extend(ph)
    p2(f"s_mov_b32 {S_CNT}, 7")
    abody = []
    c2 = carry
    for p in range(1, 9):
        ph, c2 = emit_phase(p, opts, c2)
        abody += ph
    abody += [Inst(f"s_sub_u32 {S_CNT}, {S_CNT}, 1"), Inst(f"s_cmp_lg_u32 {S_CNT}, 0"), Inst("s_cbranch_scc1 K_aloop")]
    if opts.get("wtouch", 1):
        opts = dict(opts)
        ta, tb_, tc = mk_touch()
        opts["extra"] = {58: [(3, ta)], 59: [(41, tb_), (50, tc[:1]), (54, tc[1:])]}
        opts["vmadj"] = {30: 2, 31: 2}
        if opts.get("kbcode", 0):
            cp = Prog()
            cp("""
            s_getpc_b64 s[78:79]
            CT_kb:
            s_add_u32 s78, s78, oproj_kernel-CT_kb
            s_addc_u32 s79, s79, 0
            s_and_b32 s77, s3, 1
            s_lshl_b32 s77, s77, 13
            v_lshlrev_b32 v236, 7, v1
            v_add_u32 v236, s77, v236
            v_min_u32 v236, TEXT_END-oproj_kernel-4, v236
            v_mov_b32 v237, s79
            v_add_co_u32 v236, vcc, s78, v236
            v_addc_co_u32 v237, vcc, 0, v237, vcc
            """)
            opts["extra"][58].append((40, cp.insts))
            opts["extra"][59].append((58, [Inst("global_load_dword v238, v[236:237], off")]))
            opts["vmadj"] = {30: 3, 31: 3}
    tail = []
    c3 = c2
    for p in range(57, 65):
        ph, c3 = emit_phase(p, opts, c3)
        tail += ph
    tail += [c[1] if isinstance(c, tuple) else c for c in c3]
    post = Prog()
    T(post, 4)
    for qb in range(4):
        if qb >= 4 - NS:
            post(f"v_mov_b32 {L(qb)}, v{LREGS[qb - (4 - NS)]}")
            continue
        post(f"""
        v_mov_b32 v248, {L(qb)}
        v_permlane32_swap_b32 v248, {L(qb)}
        v_add_f32 {L(qb)}, {L(qb)}, v248
        v_mov_b32 v248, {L(qb)}
        v_permlane16_swap_b32 v248, {L(qb)}
        v_add_f32 {L(qb)}, {L(qb)}, v248
        """)
    post(f"""
    v_max3_f32 v248, {L(0)}, {L(1)}, {L(2)}
    v_max_f32 v248, v248, {L(3)}
    v_add_f32 v249, {L(0)}, {L(1)}
    v_add_f32 v250, {L(2)}, {L(3)}
    v_add_f32 v249, v249, v250
    s_mov_b32 s6, {f32hex(float(2**24))}
    v_cmp_nlt_f32 vcc, v248, s6
    v_cmp_u_f32 s[6:7], v249, v249
    s_or_b64 vcc, vcc, s[6:7]
    s_cmp_lg_u64 vcc, 0
    s_cselect_b32 s6, 1, 0
    v_mov_b32 v248, s6
    v_mov_b32 v249, 131072
    v_lshl_add_u32 v250, s3, 2, v249
    ds_write_b32 v250, v248
    """)
    for qb in range(4): post(f"v_rcp_f32 {L(qb)}, {L(qb)}")
    post(f"""
    s_lshl_b32 s6, s5, 1
    s_lshr_b32 s7, s3, 1
    s_add_u32 s6, s6, s7
    s_mul_i32 s6, s6, {92*16384 + opts.get("actpad", 4096)}
    s_lshl_b32 s7, s4, 15
    s_add_u32 s6, s6, s7
    s_and_b32 s7, s3, 1
    s_lshl_b32 s7, s7, 12
    s_add_u32 s6, s6, s7
    s_add_u32 s52, s6, {WS_ACT}
    s_add_u32 s53, s52, 16384
    """)
    act_lane_offset(post, "v2", "v3")
    for qb in range(4):
        lp = 226 + (qb & ~1)
        osel = "op_sel:[0,0] op_sel_hi:[1,0]" if qb % 2 == 0 else "op_sel:[0,1] op_sel_hi:[1,1]"
        for e in range(4):
            t0 = 16 + (e & 1) * 16
            for hh in range(2):
                for r in range(4):
                    post(f"v_accvgpr_read_b32 v{t0+hh*4+r}, {O(2*e+hh,qb,r)}")
            for j in range(0, 8, 2): post(f"v_pk_mul_f32 v[{t0+j}:{t0+j+1}], v[{t0+j}:{t0+j+1}], v[{lp}:{lp+1}] {osel}")
            for i in range(4): post(f"v_cvt_pk_bf16_f32 v{t0+8+i}, v{t0+2*i}, v{t0+2*i+1}")
            post(f"buffer_store_dwordx4 v[{t0+8}:{t0+11}], v{2+(e&1)}, {SRD_WS}, s{52+(e>>1)} offen offset:{qb*1024}" + {0: "", 1: " nt", 2: " sc1", 3: " sc0"}[opts.get("ost", 0)])
    post("""
    v_mov_b32 v249, 131072
    s_waitcnt lgkmcnt(0)
    s_barrier
    ds_read_b128 v[248:251], v249
    s_waitcnt lgkmcnt(0)
    v_or3_b32 v248, v248, v249, v250
    v_or_b32 v248, v248, v251
    s_nop 0
    v_readfirstlane_b32 s6, v248
    s_xor_b32 s7, s27, 1
    s_and_b32 s6, s6, s7
    s_cmp_lg_u32 s6, 0
    s_cbranch_scc1 K_fallback
    """)
    if opts.get("time"):
        post("s_waitcnt vmcnt(0)")
        T(post, 5)
        post(f"""
        s_waitcnt lgkmcnt(0)
        s_lshl_b32 s6, s2, 2
        s_add_u32 s6, s6, s3
        s_lshl_b32 s6, s6, 6
        s_add_u32 s6, s6, {WS_TIME}
        v_mov_b32 v3, s6
        """)
        for i in range(8):
            post(f"v_mov_b32 v2, s{SB(i)}\nbuffer_store_dword v2, v3, {SRD_WS}, 0 offen offset:{4*i}")
        for i in range(4):
            post(f"v_mov_b32 v2, s{64+2*i}\nbuffer_store_dword v2, v3, {SRD_WS}, 0 offen offset:{32+4*i}")
    post("KA_end:\ns_endpgm")
    fb = Prog()
    fb(f"""
    K_fallback:
    s_waitcnt vmcnt(0) lgkmcnt(0)
    s_barrier
    s_mov_b32 s27, 1
    v_and_b32 v2, 15, v1
    v_lshrrev_b32 v3, 4, v1
    v_lshlrev_b32 v2, 8, v2
    v_lshl_add_u32 v2, v3, 4, v2
    s_mov_b32 s6, 0
    """)
    for qb in range(4): fb(f"v_mov_b32 v{244+qb}, 0xff800000")
    fb("K_fb_loop:")
    for ds in range(4):
        fb(f"buffer_load_dwordx4 v[{16+4*ds}:{19+4*ds}], v2, {SRD_K0}, s6 offen offset:{64*ds}")
    fb("s_waitcnt vmcnt(0)")
    for qb in range(4):
        for ds in range(4):
            c = "0" if ds == 0 else f"v[{32+4*qb}:{35+4*qb}]"
            fb(f"v_mfma_f32_16x16x32_bf16 v[{32+4*qb}:{35+4*qb}], v[{16+4*ds}:{19+4*ds}], {Q(qb,ds)}, {c}")
    fb("s_nop 15")
    for qb in range(4):
        b = 32 + 4 * qb
        fb(f"v_max3_f32 v{244+qb}, v{244+qb}, v{b}, v{b+1}")
        fb(f"v_max3_f32 v{244+qb}, v{244+qb}, v{b+2}, v{b+3}")
    fb(f"""
    s_add_u32 s6, s6, 4096
    s_cmp_lt_u32 s6, 524288
    s_cbranch_scc1 K_fb_loop
    """)
    for qb in range(4):
        m = f"v{244+qb}"
        fb(f"""
        v_mov_b32 v248, {m}
        s_nop 1
        v_permlane32_swap_b32 v248, {m}
        v_max_f32 {m}, {m}, v248
        v_mov_b32 v248, {m}
        s_nop 1
        v_permlane16_swap_b32 v248, {m}
        v_max_f32 {m}, {m}, v248
        """)
    fb("s_mov_b32 s6, 0\ns_mov_b32 s7, 16384")
    issue_groups(fb, dma_k(3, SRD_K0, "0") + dma_v(0, "s6") + dma_k(0, SRD_K, "s6") + dma_v(1, "s7") + dma_k(1, SRD_K, "s7"))
    fb("s_branch K_astart")
    fb2 = check_hazards([Inst("s_nop 15")] + fb.insts, fix=True)[1:]
    a2, st = lin(seg_a, None, [])
    b2, st = auto_wait_loop(body, st); b2 = merge_adjacent_waits(b2)
    q1, st = lin(p2a.insts, st, b2[-40:])
    q2, st = lin(p2.insts, WaitState(), q1[-40:])
    q2 = q1 + q2
    ab2, st = auto_wait_loop(abody, st); ab2 = merge_adjacent_waits(ab2)
    t2, st = lin(tail, st, ab2[-40:])
    po2, st = lin(post.insts, st, t2[-40:])
    for nm, seq in (("gloop", a2[-60:] + b2 + b2 + q2[:80]), ("aloop", q2[-60:] + ab2 + ab2 + t2 + po2[:40])):
        for p_ in check_hazards(seq): print("HAZARD", nm, p_, file=sys.stderr)
    return a2 + [Inst("K_gloop:")] + b2 + q2 + [Inst("K_aloop:")] + ab2 + t2 + po2 + fb2

def gen_kb(opts):
    T = lambda pr, idx: stamp(pr, opts, idx)
    NCH = 24
    ACC = lambda st_, cb, tb, r=None: (f"v[{16+st_*64+(cb*2+tb)*4}:{16+st_*64+(cb*2+tb)*4+3}]" if r is None else f"v{16+st_*64+(cb*2+tb)*4+r}")
    def AF3(s, cb, u=None):
        b = (s * 8 + cb) * 4
        return f"a[{b}:{b+3}]" if u is None else f"a[{b+2*u}:{b+2*u+1}]"
    G2 = opts.get('kbG', 0)
    R = 8 if G2 else opts.get('kbR', 4); D = R - 1
    RB = (opts.get('kbRB', 4) if G2 else R); DB = (RB - 1 if G2 else D); DW = 5 if G2 else D
    def BF3(st, s, tb):
        b = 64 + st * 16 + (s * 2 + tb) * 4
        return f"a[{b}:{b+3}]"
    VA = lambda cb, hi=0: f"v{208+hi*8+cb}"
    VOW = lambda ii: f"v{224+ii}"; VOA = lambda s: f"v{228+s}"
    SRD_W = "s[8:11]"; SRD_A = "s[12:15]"
    S_GP = "s19"; S_OA = "s24"; S_OW = "s26"; S_MW = "s25"
    PART = "s48"; TM = "s49"; TN = "s50"
    def a_rd(s, cb, stage):
        return [Inst(f"ds_read_b64_tr_b16 {AF3(s,cb,u)}, {VA(cb, stage >> 2)} offset:{(stage & 3)*16384 + (32*s+16*u)*256}") for u in range(2)]
    def sel_w():
        return [Inst(f"s_cmp_lt_u32 {S_GP}, 64"), Inst("s_cselect_b32 s8, s40, s42"), Inst("s_cselect_b32 s9, s41, s43"), Inst(f"s_add_u32 {S_GP}, {S_GP}, {R}")]
    def dma_w(stage):
        r = [[Inst(f"s_add_u32 m0, {S_MW}, {stage*16384}"), Inst(f"buffer_load_dwordx4 {VOW(0)}, {SRD_W}, {S_OW} offen lds")]]
        for ii in range(1, 4):
            r.append([Inst(f"buffer_load_dwordx4 {VOW(ii)}, {SRD_W}, {S_OW} offen offset:{ii*1024} lds")])
        return r, [Inst(f"s_add_u32 {S_OW}, {S_OW}, 65536")]
    def ld_a(st):
        so = S_OA
        if opts.get("kbuniq"):
            so = f"s{60 + (st & 3)}"
        r = [[Inst(f"buffer_load_dwordx4 {BF3(st,s,tb)}, {VOA(s)}, {SRD_A}, {so} offen offset:{tb*1024}")] for s in range(2) for tb in range(2)]
        adv = [Inst(f"s_add_u32 {S_OA}, {S_OA}, 16384")]
        if opts.get("kbuniq"):
            adv = [Inst(f"s_add_u32 s{60+i}, s{60+i}, 16384") for i in range(4)]
        return r, adv
    def period(c, accset):
        st = c % RB
        NG = 32
        pre = [[] for _ in range(NG + 1)]; mem = [[] for _ in range(NG + 1)]; gaps = [[] for _ in range(NG + 1)]
        pre[0] += [Hint(*[BF3(st, s, t) for s in range(2) for t in range(2)])]
        if not G2: pre[0] += [Inst(f"s_waitcnt vmcnt({8*(D-2)})"), Inst("s_barrier")]
        elif c % 2 == 0: pre[0] += [Inst("s_waitcnt vmcnt(16)"), Inst("s_barrier")]
        ag, aadv = ld_a((c + DB) % RB)
        wg_, wadv = dma_w((c + DW) % R)
        for s in range(2):
            for cb in range(8):
                k = 2 * (s * 8 + cb) + 2
                rd = a_rd(s, cb, (c + 1) % R)
                if k < 31: mem[k].append(rd[0]); mem[k + 1].append(rd[1])
                else: mem[31].append(rd[0]); mem[31].append(rd[1])
        mem[0] += ag[0]; mem[1] += ag[1]
        if (c + DW) % R == 0: gaps[0] += sel_w()[:1]; gaps[1] += sel_w()[1:2]; gaps[2] += sel_w()[2:3]; gaps[3] += sel_w()[3:]
        mem[5] += ag[2]; mem[8] += ag[3]; gaps[9] += aadv
        gaps[11] += wg_[0][:-1]
        for gp, d in zip([12, 16, 20, 24], wg_): mem[gp] += d[-1:]
        gaps[26] += wadv
        out = []
        for s in range(2):
            for cb in range(8):
                if cb == 0 or (s == 0 and cb == 4): pre[2 * (s * 8 + cb)].insert(0, Hint(*[AF3(s, c_) for c_ in range(cb, 8 if s else cb + 4)] + ([AF3(0, c_) for c_ in range(4, 8)] if False else [])))
                for tb in range(2):
                    k = 2 * (s * 8 + cb) + tb
                    d = ACC(accset, cb, tb)
                    out += pre[k]
                    out.append(Inst(f"v_mfma_f32_16x16x32_bf16 {d}, {AF3(s,cb)}, {BF3(st,s,tb)}, {d}"))
                    out += mem[k]; out += gaps[k]
        return out
    post = Prog()
    post("s_cmp_ge_u32 s2, 256\ns_cbranch_scc1 KB_end")
    T(post, 0)
    post(f"""
    s_load_dwordx2 s[40:41], s[0:1], 32
    s_load_dwordx2 s[42:43], s[0:1], 64
    s_load_dwordx2 s[34:35], s[0:1], 88
    s_load_dwordx2 s[30:31], s[0:1], 0
    s_load_dwordx2 s[32:33], s[0:1], 72
    s_load_dwordx2 s[72:73], s[0:1], 80
    v_and_b32 v1, 63, v0
    v_lshrrev_b32 v2, 6, v0
    s_nop 0
    v_readfirstlane_b32 s3, v2
    s_and_b32 {PART}, s2, 3
    s_bfe_u32 {TM}, s2, 0x10002
    s_lshl_b32 {TM}, {TM}, 3
    s_bfe_u32 s6, s2, 0x30003
    s_add_u32 {TM}, {TM}, s6
    s_lshr_b32 {TN}, s2, 6
    s_mul_i32 {S_GP}, {PART}, {NCH}
    s_sub_u32 s14, 92, {S_GP}
    s_min_u32 s14, s14, {NCH}
    s_lshl_b32 s14, s14, 14
    s_mul_i32 s6, {TM}, {92*16384 + opts.get("actpad", 4096)}
    s_lshl_b32 s7, {S_GP}, 14
    s_add_u32 s6, s6, s7
    s_add_u32 s36, s6, {WS_ACT}
    s_lshl_b32 {S_OA}, s3, 11
    s_lshl_b32 {S_OW}, {S_GP}, 16
    s_lshl_b32 s7, {TN}, 8
    s_add_u32 {S_OW}, {S_OW}, s7
    s_lshl_b32 {S_MW}, s3, 12
    v_lshrrev_b32 v2, 4, v1
    v_and_b32 v3, 15, v1
    s_lshl_b32 s7, s3, 4
    """)
    for ii in range(4):
        post(f"""
        v_add_u32 v4, {4*(ii&1)}, v2
        v_lshlrev_b32 v4, 1, v4
        v_xor_b32 v4, v4, v3
        v_lshlrev_b32 v4, 4, v4
        v_add_u32 v5, s7, v2
        v_add_u32 v5, {4*ii}, v5
        v_lshl_add_u32 v4, v5, 10, v4
        v_subrev_u32 {VOW(ii)}, {1024*ii}, v4
        """)
    act_lane_offset(post, VOA(0), VOA(1))
    post(f"""
    s_waitcnt lgkmcnt(0)
    s_and_b32 s41, s41, 0xffff
    s_sub_u32 s42, s42, {64*65536}
    s_subb_u32 s43, s43, 0
    s_and_b32 s43, s43, 0xffff
    s_mov_b32 s10, {92*65536}
    s_mov_b32 s11, 0x20000
    s_mov_b32 s20, s34
    s_and_b32 s21, s35, 0xffff
    s_mov_b32 s22, 0x10000000
    s_mov_b32 s23, 0x20000
    s_add_u32 s12, s34, s36
    s_addc_u32 s13, s35, 0
    s_and_b32 s13, s13, 0xffff
    s_mov_b32 s15, 0x20000
    """)
    if opts.get("kbuniq"):
        for i in range(4):
            post(f"s_cmp_eq_u32 {TN}, {i}\ns_cselect_b32 s{60+i}, {S_OA}, 0xf0000000")
        if opts.get("kbuniq") == 2:
            post(f"s_and_b32 s6, {TM}, 7\ns_cmp_eq_u32 s6, 0\ns_cselect_b32 {S_OW}, {S_OW}, 0xf0000000")
    post.extend(sel_w())
    if G2:
        for c in range(3): gr, adv = dma_w(c); issue_groups(post, gr); post.extend(adv)
        for c in range(3): gr, adv = ld_a(c); issue_groups(post, gr); post.extend(adv)
        for c in range(3, 5): gr, adv = dma_w(c); issue_groups(post, gr); post.extend(adv)
        for c in range(3, DB): gr, adv = ld_a(c); issue_groups(post, gr); post.extend(adv)
    else:
        for c in range(D):
            gr, adv = dma_w(c); issue_groups(post, gr); post.extend(adv)
            gr, adv = ld_a(c); issue_groups(post, gr); post.extend(adv)
    NINI = 4 * DW + 4 * DB
    NT = 0
    if opts.get("tlbwarm", 0):
        NT += 2
        post(f"""
        s_lshl_b32 s6, {TM}, 2
        s_add_u32 s6, s6, {TN}
        s_mul_i32 s6, s6, {5*32768 + opts.get('slabpad', 256)}
        s_add_u32 s6, s6, {WS_SLAB + 5*32768}
        v_mov_b32 v4, 0
        buffer_load_dword v230, v4, {SRD_WS}, s6 offen
        s_mov_b32 s44, s32
        s_and_b32 s45, s33, 0xffff
        s_mov_b32 s46, {2048*1024}
        s_mov_b32 s47, 0x20000
        s_lshl_b32 s6, {TM}, 17
        buffer_load_dword v231, v4, s[44:47], s6 offen
        """)
    if opts.get("ctouch", 0):
        post("s_and_b32 s6, s3, 1")
        code_touch(post, "oproj_kernel", "TEXT_END", "s6", 2, vt=(238, 239, 240))
        NT += 1
    if opts.get("kbtouch"):
        NT += 5
        post(f"""
        v_and_b32 v4, 31, v1
        v_lshlrev_b32 v4, 7, v4
        v_lshrrev_b32 v5, 5, v1
        v_lshl_add_u32 v4, v5, 16, v4
        s_lshl_b32 s6, {TN}, 14
        s_lshl_b32 s7, s3, 12
        s_add_u32 s6, s6, s7
        s_add_u32 s6, s6, {4*16384}
        buffer_load_dword v232, v4, {SRD_A}, s6 offen
        s_add_u32 s6, s6, {8*16384}
        buffer_load_dword v233, v4, {SRD_A}, s6 offen
        s_add_u32 s6, s6, {8*16384}
        buffer_load_dword v234, v4, {SRD_A}, s6 offen
        """)
        post(f"""
        s_and_b32 s58, {TM}, 7
        s_lshl_b32 s58, s58, 2
        s_add_u32 s58, s58, {TN}
        s_lshl_b32 s58, s58, 2
        s_add_u32 s58, s58, s3
        s_mul_i32 s58, s58, 10
        s_add_u32 s58, s58, 256
        s_mul_i32 s59, {PART}, {24*64}
        s_add_u32 s59, s59, s58
        s_cmp_lt_u32 s59, 4096
        s_cselect_b32 s44, s40, s42
        s_cselect_b32 s45, s41, s43
        s_cselect_b32 s46, {64*65536}, s10
        s_mov_b32 s47, 0x20000
        s_lshl_b32 s59, s59, 10
        v_lshlrev_b32 v4, 7, v1
        v_add_u32 v5, 8192, v4
        buffer_load_dword v235, v4, s[44:47], s59 offen
        v_cmp_gt_u32 vcc, 16, v1
        s_and_saveexec_b64 s[6:7], vcc
        buffer_load_dword v236, v5, s[44:47], s59 offen
        s_mov_b64 exec, s[6:7]
        """)
    post(f"""
    v_bfe_u32 v2, v1, 2, 2
    v_and_b32 v3, 3, v1
    v_lshrrev_b32 v4, 4, v1
    v_lshl_add_u32 v6, v4, 2, v2
    v_and_b32 v8, 7, v6
    v_lshlrev_b32 v8, 1, v8
    v_lshlrev_b32 v6, 8, v6
    v_and_b32 v7, 1, v3
    v_lshl_add_u32 v6, v7, 3, v6
    v_lshrrev_b32 v7, 1, v3
    """)
    for cb in range(8):
        post(f"""
        v_add_u32 v9, {2*cb}, v7
        v_xor_b32 v9, v9, v8
        v_lshl_add_u32 {VA(cb)}, v9, 4, v6
        v_add_u32 {VA(cb,1)}, 65536, {VA(cb)}
        """)
    for i in range(128): post(f"v_mov_b32 v{16+i}, 0")
    post(f"""
    s_mov_b32 s56, {24//R}
    s_mov_b32 s57, 0
    s_cmp_eq_u32 {PART}, 2
    s_cselect_b32 s56, {16//R}, s56
    s_cselect_b32 s57, {8//R}, s57
    s_cmp_eq_u32 {PART}, 3
    s_cselect_b32 s56, 0, s56
    s_cselect_b32 s57, {24//R if R == 8 else 5}, s57
    s_waitcnt vmcnt({NINI-4+NT})
    s_barrier
    """)
    T(post, 9)
    for s in range(2):
        for cb in range(8): post.extend(a_rd(s, cb, 0))
    post("s_cmp_eq_u32 s56, 0\ns_cbranch_scc1 K3_l1pre")
    body0 = []; body1 = []
    for c in range(R): body0 += period(c, 0); body1 += period(c, 1)
    body0 += [Inst("s_sub_u32 s56, s56, 1"), Inst("s_cmp_lg_u32 s56, 0"), Inst("s_cbranch_scc1 K3_loop0")]
    mid = [Inst("K3_l1pre:"), Inst("s_cmp_eq_u32 s57, 0"), Inst("s_cbranch_scc1 K3_post")]
    body1 += [Inst("s_sub_u32 s57, s57, 1"), Inst("s_cmp_lg_u32 s57, 0"), Inst("s_cbranch_scc1 K3_loop1")]
    fin = Prog()
    fin("K3_post:")
    fin("s_waitcnt lgkmcnt(0)\ns_nop 15")
    T(fin, 10)
    fin(f"""
    s_lshl_b32 s7, {TM}, 2
    s_add_u32 s7, s7, {TN}
    s_mul_i32 s58, s7, {5*32768 + opts.get('slabpad', 256)}
    s_add_u32 s58, s58, {WS_SLAB}
    s_lshl_b32 s59, s3, 13
    s_add_u32 s59, s59, s58
    s_lshl_b32 s6, {PART}, 15
    s_add_u32 s6, s6, s59
    v_lshlrev_b32 v2, 4, v1
    s_mov_b32 s36, 0xfffffffe
    s_cmp_eq_u32 {PART}, 3
    s_cbranch_scc1 K3_st1
    """)
    def slab_store(base):
        for j in range(8):
            t0 = 144 + (j & 3) * 4
            for i in range(4): fin(f"v_cvt_pk_bf16_f32 v{t0+i}, v{16+base+j*8+2*i}, v{16+base+j*8+2*i+1}")
            if opts.get("sent", 1):
                for i in range(4): fin(f"v_min_u32 v{t0+i}, s36, v{t0+i}")
            if j == 4: fin("s_add_u32 s6, s6, 4096")
            fin(f"buffer_store_dwordx4 v[{t0}:{t0+3}], v2, {SRD_WS}, s6 offen offset:{(j%4)*1024} sc1")
    slab_store(0)
    fin(f"""
    K3_st1:
    s_cmp_lt_u32 {PART}, 2
    s_cbranch_scc1 K3_sync
    s_add_u32 s6, {PART}, 1
    s_lshl_b32 s6, s6, 15
    s_add_u32 s6, s6, s59
    """)
    slab_store(64)
    fin(f"""
    K3_sync:
    s_mov_b32 s8, s30
    s_and_b32 s9, s31, 0xffff
    s_mov_b32 s10, {2048*1024}
    s_mov_b32 s11, 0x20000
    s_mov_b32 s12, s32
    s_and_b32 s13, s33, 0xffff
    s_mov_b32 s14, {2048*1024}
    s_mov_b32 s15, 0x20000
    s_lshl_b32 s6, {TM}, 7
    s_lshl_b32 s74, {PART}, 5
    s_add_u32 s6, s6, s74
    s_lshl_b32 s6, s6, 10
    s_lshl_b32 s74, {TN}, 8
    s_add_u32 s6, s6, s74
    s_lshl_b32 s74, s3, 6
    s_add_u32 s37, s6, s74
    v_and_b32 v3, 15, v1
    v_lshrrev_b32 v4, 4, v1
    v_lshlrev_b32 v3, 10, v3
    v_lshl_add_u32 v3, v4, 3, v3
    v_add_u32 v4, 16384, v3
    """)
    for jj in range(2):
        for tb in range(2):
            b = 200 + (jj * 2 + tb) * 2
            fin(f"buffer_load_dwordx2 v[{b}:{b+1}], v{3+tb}, s[8:11], s37 offen offset:{jj*32}")
    fin(f"""
    s_lshl_b32 s59, {PART}, 13
    s_add_u32 s59, s59, s58
    s_lshl_b32 s6, s3, 11
    s_add_u32 s59, s59, s6
    """)
    if opts.get("sent", 1):
        fin("s_mov_b32 s79, 0x40000")
        fin("K3_retry:")
        for sl in range(5):
            fin(f"s_add_u32 s6, s59, {sl*32768}")
            for jj in range(2):
                b = 16 + (sl * 2 + jj) * 4
                fin(f"buffer_load_dwordx4 v[{b}:{b+3}], v2, {SRD_WS}, s6 offen offset:{jj*1024} sc1")
        fin("s_waitcnt vmcnt(0)")
        fin("v_max3_u32 v60, v16, v17, v18")
        for i in range(19, 55, 2): fin(f"v_max3_u32 v60, v60, v{i}, v{i+1}")
        fin("v_max_u32 v60, v60, v55")
        fin("""
        v_cmp_eq_u32 vcc, -1, v60
        s_nop 4
        s_cbranch_vccz K3_ready
        s_sleep 1
        s_sub_u32 s79, s79, 1
        s_cbranch_scc0 K3_retry
        K3_ready:
        """)
        T(fin, 11)
    else:
        fin(f"""
        s_waitcnt vmcnt(4)
        s_barrier
        s_cmp_lg_u32 s3, 0
        s_cbranch_scc1 K3_wait
        s_and_b32 s6, s7, 3
        s_lshl_b32 s6, s6, 6
        s_lshr_b32 s74, s7, 4
        s_lshl_b32 s74, s74, 2
        s_add_u32 s6, s6, s74
        s_bfe_u32 s74, s7, 0x20002
        s_lshl_b32 s74, s74, 3
        s_lshl_b32 s75, 1, s74
        v_mov_b32 v6, s6
        v_mov_b32 v7, s75
        s_mov_b64 exec, 1
        global_atomic_add v6, v7, {SRD_DBG} sc1
        """)
        poll(fin, "K3_spin", "v6", 4, shift="s74", sleep=1)
        fin(f"""
        s_mov_b64 exec, -1
        K3_wait:
        s_barrier
        """)
        T(fin, 11)
        for sl in range(5):
            fin(f"s_add_u32 s6, s59, {sl*32768}")
            for jj in range(2):
                b = 16 + (sl * 2 + jj) * 4
                fin(f"buffer_load_dwordx4 v[{b}:{b+3}], v2, {SRD_WS}, s6 offen offset:{jj*1024} sc1")
    fin(f"s_mov_b32 s7, {f32hex(-LOG2E)}")
    for jj in range(2):
        for tb in range(2):
            src = lambda sl, i: f"v{16+(sl*2+jj)*4+tb*2+i}"
            sv = [f"v{60+r}" for r in range(4)]; yv = [f"v{64+r}" for r in range(4)]; tv = [f"v{68+r}" for r in range(4)]
            def unp(dst, sl):
                fin(f"v_lshlrev_b32 {dst[0]}, 16, {src(sl,0)}\nv_and_b32 {dst[1]}, 0xffff0000, {src(sl,0)}")
                fin(f"v_lshlrev_b32 {dst[2]}, 16, {src(sl,1)}\nv_and_b32 {dst[3]}, 0xffff0000, {src(sl,1)}")
            unp(sv, 0); unp(tv, 1)
            for r in range(4): fin(f"v_add_f32 {sv[r]}, {sv[r]}, {tv[r]}")
            unp(tv, 2)
            for r in range(4): fin(f"v_add_f32 {sv[r]}, {sv[r]}, {tv[r]}")
            unp(yv, 3); unp(tv, 4)
            for r in range(4): fin(f"v_add_f32 {yv[r]}, {yv[r]}, {tv[r]}")
            for r in range(4): fin(f"v_mul_f32 {tv[r]}, s7, {yv[r]}")
            for r in range(4): fin(f"v_exp_f32 {tv[r]}, {tv[r]}")
            for r in range(4): fin(f"v_add_f32 {tv[r]}, 1.0, {tv[r]}")
            for r in range(4): fin(f"v_rcp_f32 {tv[r]}, {tv[r]}")
            for r in range(4): fin(f"v_mul_f32 {yv[r]}, {yv[r]}, {tv[r]}")
            xb = 200 + (jj * 2 + tb) * 2
            fin(f"v_lshlrev_b32 {tv[0]}, 16, v{xb}\nv_and_b32 {tv[1]}, 0xffff0000, v{xb}\nv_lshlrev_b32 {tv[2]}, 16, v{xb+1}\nv_and_b32 {tv[3]}, 0xffff0000, v{xb+1}")
            for r in range(4): fin(f"v_fma_f32 {sv[r]}, {sv[r]}, {yv[r]}, {tv[r]}")
            ob = 72 + 2 * ((jj * 2 + tb) & 1)
            fin(f"v_cvt_pk_bf16_f32 v{ob}, {sv[0]}, {sv[1]}\nv_cvt_pk_bf16_f32 v{ob+1}, {sv[2]}, {sv[3]}")
            fin(f"buffer_store_dwordx2 v[{ob}:{ob+1}], v{3+tb}, s[12:15], s37 offen offset:{jj*32}")
    if opts.get("time"):
        fin("s_waitcnt vmcnt(0)")
        T(fin, 8)
        fin(f"""
        s_waitcnt lgkmcnt(0)
        s_lshl_b32 s6, s2, 2
        s_add_u32 s6, s6, s3
        s_lshl_b32 s6, s6, 6
        s_add_u32 s6, s6, {WS_TIME + 65536}
        v_mov_b32 v3, s6
        """)
        for k_, i in enumerate((0, 9, 10, 11, 8)):
            fin(f"v_mov_b32 v2, s{SB(i)}\nbuffer_store_dword v2, v3, {SRD_WS}, 0 offen offset:{4*k_}")
        for i in range(2):
            fin(f"v_mov_b32 v2, s{64+2*i}\nbuffer_store_dword v2, v3, {SRD_WS}, 0 offen offset:{32+4*i}")
    if opts.get("dbgtime"):
        fin(f"""
        s_cmp_lg_u32 s2, {opts.get("dbgwg", 0)}
        s_cbranch_scc1 KB_end
        s_cmp_lg_u32 s3, 0
        s_cbranch_scc1 KB_end
        s_waitcnt vmcnt(0)
        v_lshlrev_b32 v2, 2, v1
        v_add_u32 v2, {WS_TIME + opts.get("dbgwg", 0) * 256}, v2
        buffer_load_dword v3, v2, {SRD_WS}, 0 offen sc1
        s_waitcnt vmcnt(0)
        v_readfirstlane_b32 s6, v3
        s_nop 1
        v_subrev_u32 v3, s6, v3
        v_mov_b32 v4, s{SB(0)}
        v_subrev_u32 v4, s6, v4
        v_mov_b32 v5, s{SB(8)}
        v_subrev_u32 v5, s6, v5
        v_mov_b32 v6, s{SB(9)}
        v_subrev_u32 v6, s6, v6
        v_mov_b32 v7, s{SB(10)}
        v_subrev_u32 v7, s6, v7
        v_cmp_eq_u32 vcc, 8, v1
        s_nop 1
        v_cndmask_b32 v3, v3, v4, vcc
        v_cmp_eq_u32 vcc, 9, v1
        s_nop 1
        v_cndmask_b32 v3, v3, v6, vcc
        v_cmp_eq_u32 vcc, 10, v1
        s_nop 1
        v_cndmask_b32 v3, v3, v7, vcc
        v_cmp_eq_u32 vcc, 11, v1
        s_nop 1
        v_cndmask_b32 v3, v3, v5, vcc
        v_lshlrev_b32 v2, 2, v1
        v_add_u32 v2, 16, v2
        v_cmp_gt_u32 vcc, 12, v1
        s_and_saveexec_b64 s[6:7], vcc
        global_store_dword v2, v3, {SRD_DBG}
        """)
    fin("KB_end:\ns_endpgm")
    po2, st = lin(post.insts, None, [])
    st_post = st.copy()
    b0, st = auto_wait_loop(body0, st); b0 = merge_adjacent_waits(b0)
    b1, st = auto_wait_loop_multi(body1, [st_post, st]); b1 = merge_adjacent_waits(b1)
    f2, st = lin(fin.insts, st, b1[-40:])
    for nm, seq in (("l3", po2[-40:] + b0 + b0 + b1 + b1 + f2[:30]),):
        for p_ in check_hazards(seq): print("HAZARD", nm, p_, file=sys.stderr)
    return po2 + [Inst("K3_loop0:")] + b0 + mid + [Inst("K3_loop1:")] + b1 + f2

def gen(opts):
    hdr = f"""; @launch kernel=attn_kernel grid=(256,1,1) block=(256,1,1) lds=131328
; @launch kernel=oproj_kernel grid=(256,1,1) block=(256,1,1) lds=131072
;
;
.amdgcn_target "amdgcn-amd-amdhsa--gfx950"
.text
"""
    return hdr + kernel_text("attn_kernel", gen_ka(opts), 512, 256) + kernel_text("oproj_kernel", gen_kb(opts) + [Inst("TEXT_END:")], 384, 256)

if __name__ == "__main__":
    opts = {}
    for a in sys.argv[2:]:
        k, _, v = a.partition("=")
        opts[k] = int(v) if v else 1
    open(sys.argv[1], "w").write(gen(opts))
```
